```python
import torch

def _softmax(x, axis=-1):
    return torch.softmax(x, dim=axis)
def _gelu(x):
    return torch.nn.functional.gelu(x, approximate="tanh")
def _silu(x):
    return torch.nn.functional.silu(x)
def _sigmoid(x):
    return torch.sigmoid(x)
def _layernorm(x, axis=-1, eps=1e-5):
    m = x.mean(dim=axis, keepdim=True)
    v = x.var(dim=axis, keepdim=True, unbiased=False)
    return (x - m) / torch.sqrt(v + eps)
def _scatter_add(tgt, idx, src, axis=0):
    return tgt.clone().index_add_(axis, idx, src)
def _segment_sum(src, seg, n):
    out = torch.zeros((n,) + src.shape[1:], dtype=src.dtype)
    return out.index_add_(0, seg, src)
def _pad(x, pw):
    flat = tuple(v for pair in reversed(pw) for v in pair)
    return torch.nn.functional.pad(x, flat)

kernel_name = 'parallel_sum__ssm_conv_h3__dense_activation_relu__prompt'

def setup_inputs():

    _w = (lambda a: (lambda t: t.to(torch.bfloat16) if t.is_floating_point() else t)(torch.as_tensor(a)))
    def _A_setup():
        B, S, D = 1, 2048, 512
        ks = 4
        return {
            "q": _w((lambda *s: torch.randn(*s, dtype=torch.bfloat16) * 0.05)(B, S, D)),
            "k": _w((lambda *s: torch.randn(*s, dtype=torch.bfloat16) * 0.8)(B, S, D)),
            "v": _w((lambda *s: torch.randn(*s, dtype=torch.bfloat16) * 0.4)(B, S, D)),
            "shift_k": _w((lambda *s: torch.randn(*s, dtype=torch.bfloat16) * 0.8)(D, ks) * 0.5),
            "ssm_k": _w((lambda *s: torch.randn(*s, dtype=torch.bfloat16) * 0.8)(D, S) * (1.0 / S ** 0.5)),
            "ssm_D": _w((lambda *s: torch.randn(*s, dtype=torch.bfloat16) * 0.4)(D)),
        }
    _A_in = _A_setup()

    def _B_setup():
        B, S, D, Dff = 1, 2048, 512, 1792
        return {
            "x": _w((lambda *s: torch.randn(*s, dtype=torch.bfloat16) * 0.05)(B, S, D)),
            "w1": _w((lambda *s: torch.randn(*s, dtype=torch.bfloat16) * 0.05)(D, Dff)),
            "w2": _w((lambda *s: torch.randn(*s, dtype=torch.bfloat16) * 0.05)(Dff, D)),
        }
    _B_in = _B_setup()

    return {
        "A_q": _A_in["q"],
        "A_k": _A_in["k"],
        "A_v": _A_in["v"],
        "A_shift_k": _A_in["shift_k"],
        "A_ssm_k": _A_in["ssm_k"],
        "A_ssm_D": _A_in["ssm_D"],
        "B_x": _B_in["x"],
        "B_w1": _B_in["w1"],
        "B_w2": _B_in["w2"],
    }

def reference(A_q, A_k, A_v, A_shift_k, A_ssm_k, A_ssm_D, B_x, B_w1, B_w2):
    def _A_ref(q, k, v, shift_k, ssm_k, ssm_D):
        B, S, D = q.shape
        ks = shift_k.shape[-1]
        k_pad = _pad(k, ((0, 0), (ks - 1, 0), (0, 0)))
        k_shift = torch.zeros_like(k)
        for t in range(ks):
            k_shift = k_shift + k_pad[:, t:t + S, :] * shift_k[:, ks - 1 - t][None, None, :]
        kv = k_shift * v
        L = 2 * S
        kv_pad = _pad(kv, ((0, 0), (0, S), (0, 0)))
        kf_pad = _pad(ssm_k, ((0, 0), (0, S)))
        kv_f = (lambda x, axes=(-2,-1): torch.fft.rfft2(x.float(), dim=axes))(kv_pad[:, None, :, :], axes=(1, 2))
        kf_f = (lambda x, axes=(-2,-1): torch.fft.rfft2(x.float(), dim=axes))(kf_pad[:, None, :], axes=(1, 2))
        kf_f = (lambda x, *d: x.permute(*d))(kf_f, 1, 2, 0)
        y_f = kv_f * kf_f[None, :, :, :]
        y = (lambda x, s, axes=(-2,-1): torch.fft.irfft2(x, s=s, dim=axes).to(torch.bfloat16))(y_f, (1, L), axes=(1, 2))[:, 0, :S, :]
        y = y + kv * ssm_D[None, None, :]
        return q * y

    def _B_ref(x, w1, w2):
        h = torch.einsum("bsd,df->bsf", x, w1)
        zero = torch.zeros_like(h)
        h = torch.maximum(h, zero)
        return torch.einsum("bsf,fd->bsd", h, w2)

    x = A_q
    xn = _layernorm(x, axis=-1)
    return x + _A_ref(xn, A_k, A_v, A_shift_k, A_ssm_k, A_ssm_D) + _B_ref(xn, B_w1, B_w2)
```

```python
import sys, re

NAME = "parallel_sum__ssm_conv_h3__dense_activation_relu__prompt"

WS_R = 0
WS_Y = 2 << 20
WS_H = 4 << 20
WS_ST = 12 << 20
WS_FA = 13 << 20
WS_FH = WS_FA + 16384
WS_FY = WS_FA + 32768
WS_NONCE = WS_FA + 65536
WS_TS = 14 << 20
WS_SIZE = 16 << 20

HC = 98304
RB = 131584
ROUT = RB
NEGM = 140800
CS = NEGM + 512
KV = 143360
RED = 98304
XT = 131072
YT = 139264
LDS_SIZE = 163840

sQ, sK, sV, sSK, sH, sD, sW1, sW2, sOUT, sDBG, sWS = 4, 6, 8, 10, 12, 14, 18, 20, 22, 24, 26
rA, rB, rWS, rC, rH, rOUT, rDBG = 28, 32, 36, 40, 44, 48, 52
sW8, sW4, sC, sIDX, sMI, sFI, sM2, sN2 = 56, 57, 58, 59, 60, 61, 62, 63
sT0, sT1, sT2, sT3 = 64, 65, 66, 67
sXB, sWB, sLB, sSLOT = 68, 69, 70, 71
sHB, sW2B, sCNT, sDV = 72, 73, 74, 75
sTH, sTW = 76, 78
sNON = 80
sISB = 82
sTS = 84


class Gen:
    def __init__(s, **o):
        s.L = []
        s.o = dict(stamps=False, hflag_at=92, ypoll=7, spin=1 << 16)
        s.o.update(o)
        s.nlab = 0
        s.nst = {}

    def A(s, t):
        for x in t.split("\n"):
            x = x.strip()
            if x: s.L.append(x)

    def lab(s, p):
        s.nlab += 1
        return "L_%s_%d" % (p, s.nlab)

    def srd(s, r, p, size):
        s.A("s_mov_b32 s%d, s%d\ns_mov_b32 s%d, s%d\ns_mov_b32 s%d, 0x%x\ns_mov_b32 s%d, 0x20000" % (r, p, r + 1, p + 1, r + 2, size, r + 3))

    def stamp(s, role, name):
        if not s.o["stamps"]: return
        k = s.nst.setdefault(role, [])
        i = len(k); k.append(name)
        s.A("s_memrealtime s[%d:%d]" % (sTS, sTS + 1))
        s.A("s_waitcnt lgkmcnt(0)")
        s.A("v_writelane_b32 v255, s%d, %d" % (sTS, i))

    def stamp_out(s):
        if not s.o["stamps"]: return
        s.A("s_lshl_b32 s%d, s2, 3\ns_add_u32 s%d, s%d, s%d\ns_lshl_b32 s%d, s%d, 8\ns_add_u32 s%d, s%d, 0x%x" % (sT0, sT0, sT0, sW8, sT0, sT0, sT0, sT0, WS_TS))
        s.A("v_lshlrev_b32 v254, 2, v1\ns_nop 1\nbuffer_store_dword v255, v254, s[%d:%d], s%d offen" % (rWS, rWS + 3, sT0))

    def weave(s, ms, fill):
        for i, m in enumerate(ms):
            s.A(m)
            for f in fill.get(i, []): s.A(f)

    def build(s):
        A = s.A
        A("s_cmp_ge_u32 s2, 256\ns_cbranch_scc1 L_end")
        A("s_load_dwordx16 s[4:19], s[0:1], 0\ns_load_dwordx8 s[20:27], s[0:1], 64")
        A("v_lshrrev_b32 v2, 6, v0\nv_and_b32 v1, 63, v0\nv_readfirstlane_b32 s%d, v2" % sW8)
        if s.o["stamps"]: A("v_mov_b32 v255, 0")
        A("s_and_b32 s%d, s2, 7\ns_lshr_b32 s%d, s2, 3" % (sC, sIDX))
        A("s_and_b32 s%d, s%d, 1\ns_lshl_b32 s%d, s%d, 1\ns_add_u32 s%d, s%d, s%d" % (sMI, sIDX, sT0, sC, sMI, sMI, sT0))
        A("s_lshr_b32 s%d, s%d, 1" % (sFI, sIDX))
        A("s_and_b32 s%d, s%d, 3\ns_lshl_b32 s%d, s%d, 2\ns_add_u32 s%d, s%d, s%d" % (sM2, sIDX, sT0, sC, sM2, sM2, sT0))
        A("s_lshr_b32 s%d, s%d, 2" % (sN2, sIDX))
        A("s_cmp_lt_u32 s%d, 28\ns_cselect_b32 s%d, 1, 0" % (sIDX, sISB))
        A("s_and_b32 s%d, s%d, 3" % (sW4, sW8))
        A("s_cmp_ge_u32 s%d, 4\ns_cbranch_scc1 L_helper" % sW8)
        s.mfma_waves()
        A("L_helper:")
        s.helper_waves()
        A("L_end:")
        return s

    def mfma_waves(s):
        A = s.A
        s.stamp("m", "start")
        A("v_lshrrev_b32 v3, 3, v1\nv_and_b32 v4, 7, v1\nv_lshlrev_b32 v3, 10, v3\nv_lshl_add_u32 v3, v4, 4, v3")
        A("s_lshl_b32 s%d, s%d, 16\ns_lshl_b32 s%d, s%d, 14\ns_add_u32 s%d, s%d, s%d" % (sT0, sIDX, sT1, sW4, sT0, sT0, sT1))
        A("s_lshl_b32 s%d, s%d, 7\ns_add_u32 s%d, s%d, s%d" % (sT1, sC, sT0, sT0, sT1))
        A("v_add_u32 v3, s%d, v3\nv_subrev_u32 v4, 0x2000, v3" % sT0)
        A("s_mul_i32 s%d, s%d, 5120\ns_add_u32 s%d, s%d, %d" % (sLB, sW4, sLB, sLB, KV))
        A("s_lshl_b32 s%d, s%d, 9\nv_lshl_add_u32 v5, v1, 3, s%d" % (sT1, sC, sT1))
        A("s_lshl_b32 s%d, s%d, 7\ns_lshl_b32 s%d, s%d, 2\ns_add_u32 s%d, s%d, s%d" % (sT1, sC, sT2, sIDX, sT1, sT1, sT2))
        A("s_waitcnt lgkmcnt(0)")
        s.srd(rA, sK, 2 << 20); s.srd(rB, sV, 2 << 20); s.srd(rC, sSK, 4096); s.srd(rWS, sWS, WS_SIZE)
        A("s_mov_b32 m0, s%d\ns_movk_i32 s%d, 0x1c00" % (sLB, sT2))
        A("buffer_load_dwordx4 v4, s[%d:%d], 0 offen lds" % (rA, rA + 3))
        A("s_add_u32 m0, s%d, 1024\ns_load_dword s%d, s[%d:%d], s%d" % (sLB, sDV, sD, sD + 1, sT1))
        A("buffer_load_dwordx4 v3, s[%d:%d], 0 offen lds" % (rA, rA + 3))
        A("buffer_load_dwordx4 v3, s[%d:%d], s%d offen offset:1024 lds" % (rA, rA + 3, sT2))
        A("s_add_u32 m0, s%d, 3072\ns_nop 0" % sLB)
        A("buffer_load_dwordx4 v3, s[%d:%d], 0 offen lds" % (rB, rB + 3))
        A("buffer_load_dwordx4 v3, s[%d:%d], s%d offen offset:1024 lds" % (rB, rB + 3, sT2))
        A("buffer_load_dwordx2 v[6:7], v5, s[%d:%d], 0 offen" % (rC, rC + 3))
        ln = s.lab("nonce")
        A("s_or_b32 s%d, s2, s%d\ns_cmp_lg_u32 s%d, 0\ns_cbranch_scc1 %s" % (sT0, sW8, sT0, ln))
        s.srd(rDBG, sDBG, 256)
        A("s_mov_b32 s%d, 0x%x\nv_mov_b32 v8, 0" % (sT0, WS_NONCE))
        A("s_mov_b64 exec, 1")
        A("buffer_load_dwordx2 v[10:11], v8, s[%d:%d], s%d offen sc1\ns_waitcnt vmcnt(0)" % (rWS, rWS + 3, sT0))
        A("v_add_co_u32 v10, vcc, 0x7f4a7c16, v10\nv_mov_b32 v9, 0x9e3779b9\ns_nop 0\nv_addc_co_u32 v11, vcc, v9, v11, vcc\nv_or_b32 v10, 1, v10")
        A("buffer_store_dwordx2 v[10:11], v8, s[%d:%d], 0 offen sc1" % (rDBG, rDBG + 3))
        A("buffer_store_dwordx2 v[10:11], v8, s[%d:%d], s%d offen sc1" % (rWS, rWS + 3, sT0))
        A("s_mov_b64 exec, -1")
        A("%s:" % ln)
        A("v_bfe_u32 v8, v1, 2, 2\nv_lshrrev_b32 v9, 4, v1\nv_and_b32 v10, 3, v1")
        A("v_lshlrev_b32 v11, 7, v8\nv_lshl_add_u32 v11, v9, 5, v11\nv_lshl_add_u32 v11, v10, 3, v11\nv_add_u32 v11, s%d, v11" % sLB)
        A("s_sub_u32 s%d, 3, s%d\ns_lshl_b32 s%d, s%d, 1" % (sT0, sW4, sT0, sT0))
        A("v_and_b32 v12, 7, v1\nv_xor_b32 v12, s%d, v12\nv_lshlrev_b32 v13, 7, v1\nv_lshl_add_u32 v12, v12, 4, v13\nv_add_u32 v12, %d, v12\nv_xor_b32 v13, 16, v12" % (sT0, ROUT))
        A("v_and_b32 v20, 15, v1\nv_lshrrev_b32 v21, 1, v20\nv_xor_b32 v21, v21, v9")
        A("v_lshlrev_b32 v22, 7, v20\nv_lshl_add_u32 v14, v21, 4, v22")
        A("s_lshr_b32 s%d, s%d, 1\ns_lshl_b32 s%d, s%d, 13\nv_add_u32 v14, s%d, v14\nv_xor_b32 v15, 64, v14" % (sT0, sW4, sT0, sT0, sT0))
        A("v_and_b32 v21, 1, v9\nv_lshl_or_b32 v21, v21, 2, v8")
        A("s_and_b32 s%d, s%d, 1\ns_lshl_b32 s%d, s%d, 2\nv_xor_b32 v21, s%d, v21" % (sT0, sW4, sT0, sT0, sT0))
        A("v_lshl_add_u32 v22, v9, 3, v8\nv_lshlrev_b32 v22, 8, v22\nv_lshl_add_u32 v22, v10, 3, v22\nv_add_u32 v22, 0x4000, v22")
        for ft in range(4):
            A("v_xor_b32 v23, %d, v21\nv_lshl_add_u32 v%d, v23, 5, v22" % (ft, 16 + ft))
        ACC = 64
        for i in range(64): A("v_mov_b32 v%d, 0" % (ACC + i))
        A("s_waitcnt vmcnt(0)")
        s.stamp("m", "kv_landed")
        K, V, T, O = 128, 138, 146, 152
        for G in range(5): A("ds_read_b64_tr_b16 v[%d:%d], v11 offset:%d" % (K + 2 * G, K + 2 * G + 1, 512 * (G + 1)))
        for G in range(4): A("ds_read_b64_tr_b16 v[%d:%d], v11 offset:%d" % (V + 2 * G, V + 2 * G + 1, 3072 + 512 * G))
        A("v_alignbyte_b32 v%d, v7, v7, 2" % (T + 0))
        A("v_alignbyte_b32 v%d, v6, v6, 2" % (T + 1))
        A("v_and_b32 v%d, 0xffff0000, v7" % (T + 2))
        A("s_mov_b32 s%d, 0xffff\nv_bfi_b32 v%d, s%d, v7, v6" % (sT0, T + 3, sT0))
        A("v_and_b32 v%d, 0xffff, v6" % (T + 4))
        A("s_waitcnt lgkmcnt(4)")
        for m in range(8):
            A("v_dot2_f32_bf16 v%d, v%d, v%d, 0" % (O + 2 * m, K + m, T + 2))
            A("v_dot2_f32_bf16 v%d, v%d, v%d, 0" % (O + 2 * m + 1, K + m + 1, T + 0))
        for m in range(8):
            A("v_dot2_f32_bf16 v%d, v%d, v%d, v%d" % (O + 2 * m, K + m + 1, T + 3, O + 2 * m))
            A("v_dot2_f32_bf16 v%d, v%d, v%d, v%d" % (O + 2 * m + 1, K + m + 2, T + 1, O + 2 * m + 1))
        for m in range(8):
            A("v_dot2_f32_bf16 v%d, v%d, v%d, v%d" % (O + 2 * m, K + m + 2, T + 4, O + 2 * m))
        A("s_waitcnt lgkmcnt(0)")
        U = 168
        for m in range(8):
            A("v_lshlrev_b32 v%d, 16, v%d\nv_and_b32 v%d, 0xffff0000, v%d" % (U + 2 * m, V + m, U + 2 * m + 1, V + m))
        for m in range(8):
            A("v_pk_mul_f32 v[%d:%d], v[%d:%d], v[%d:%d]" % (O + 2 * m, O + 2 * m + 1, O + 2 * m, O + 2 * m + 1, U + 2 * m, U + 2 * m + 1))
        P = 184
        for d in range(8):
            A("v_cvt_pk_bf16_f32 v%d, v%d, v%d" % (P + d, O + 15 - 2 * d, O + 14 - 2 * d))
        A("ds_write_b128 v12, v[%d:%d]\nds_write_b128 v13, v[%d:%d]" % (P, P + 3, P + 4, P + 7))
        A("s_waitcnt lgkmcnt(0)")
        s.stamp("m", "kv_done")
        A("s_cmp_eq_u32 s%d, 0\ns_cbranch_scc1 L_m_spare" % sISB)
        FA = [128, 160]; FB = [144, 176]
        def rd(ks, st):
            o = []
            for t in range(4):
                o.append("ds_read_b64_tr_b16 v[%d:%d], v%d offset:%d" % (FA[st] + 4 * t, FA[st] + 4 * t + 1, 16 + t, ks * 8192))
                o.append("ds_read_b64_tr_b16 v[%d:%d], v%d offset:%d" % (FA[st] + 4 * t + 2, FA[st] + 4 * t + 3, 16 + t, ks * 8192 + 1024))
                o.append("ds_read_b128 v[%d:%d], v%d offset:%d" % (FB[st] + 4 * t, FB[st] + 4 * t + 3, 14 + ks, t * 2048))
            return o
        def mf(st):
            o = []
            for i in range(4):
                for j in range(4):
                    a = ACC + 4 * (4 * i + j)
                    o.append("v_mfma_f32_16x16x32_bf16 v[%d:%d], v[%d:%d], v[%d:%d], v[%d:%d]" % (a, a + 3, FA[st] + 4 * i, FA[st] + 4 * i + 3, FB[st] + 4 * j, FB[st] + 4 * j + 3, a, a + 3))
            return o
        A("s_barrier")
        s.stamp("m", "B0")
        for o in rd(0, 0): A(o)
        A("s_mov_b32 s%d, 0\ns_mov_b32 s%d, 0" % (sCNT, sT2))
        A("L_g1:")
        A("s_waitcnt lgkmcnt(0)")
        r = rd(1, 1)
        fill = {i: [r[i]] for i in range(12)}
        fill[12] = ["s_cmp_eq_u32 s%d, 2\ns_cselect_b32 s%d, -2, 1" % (sT2, sT1),
                    "s_cselect_b32 s%d, -1, s%d\ns_add_u32 s%d, s%d, 1\ns_lshl_b32 s%d, s%d, 15" % (sT2, sT2, sT2, sT2, sT1, sT1)]
        fill[13] = ["v_add_u32 v14, s%d, v14\nv_add_u32 v15, s%d, v15" % (sT1, sT1)]
        fill[14] = ["v_add_u32 v16, s%d, v16\nv_add_u32 v17, s%d, v17" % (sT1, sT1)]
        fill[15] = ["v_add_u32 v18, s%d, v18\nv_add_u32 v19, s%d, v19" % (sT1, sT1)]
        s.weave(mf(0), fill)
        A("s_add_u32 s%d, s%d, 1\ns_cmp_eq_u32 s%d, 8" % (sCNT, sCNT, sCNT))
        A("s_waitcnt lgkmcnt(0)")
        A("s_cbranch_scc1 L_g1_last")
        A("s_barrier")
        r = rd(0, 0)
        s.weave(mf(1), {i: [r[i]] for i in range(12)})
        A("s_branch L_g1")
        A("L_g1_last:")
        fill = {}
        fill[0] = ["s_lshr_b32 s%d, s%d, 1\ns_lshl_b32 s%d, s%d, 8\ns_add_u32 s%d, s%d, %d" % (sT0, sW4, sT0, sT0, sT0, sT0, NEGM),
                   "v_lshl_add_u32 v24, v20, 2, s%d" % sT0]
        fill[1] = ["s_and_b32 s%d, s%d, 1\ns_lshl_b32 s%d, s%d, 8\ns_add_u32 s%d, s%d, %d" % (sT0, sW4, sT0, sT0, sT0, sT0, CS),
                   "v_lshl_add_u32 v25, v9, 4, s%d" % sT0]
        fill[2] = ["s_lshl_b32 s%d, s%d, 1\ns_lshr_b32 s%d, s%d, 1\ns_add_u32 s%d, s%d, s%d" % (sT0, sMI, sT1, sW4, sT0, sT0, sT1),
                   "s_mul_i32 s%d, s%d, 14\ns_add_u32 s%d, s%d, s%d\ns_lshl_b32 s%d, s%d, 1" % (sT0, sT0, sT0, sT0, sFI, sT0, sT0)]
        fill[3] = ["s_and_b32 s%d, s%d, 1\ns_add_u32 s%d, s%d, s%d\ns_lshl_b32 s%d, s%d, 13\ns_add_u32 s%d, s%d, 0x%x" % (sT1, sW4, sT0, sT0, sT1, sT0, sT0, sHB, sT0, WS_H),
                   "v_lshlrev_b32 v26, 4, v1"]
        s.weave(mf(1), fill)
        s.conv_addr()
        A("s_barrier")
        s.stamp("m", "B8")
        NM, CSV = 28, 32
        for j in range(4): A("ds_read_b32 v%d, v24 offset:%d" % (NM + j, 64 * j))
        for i in range(4): A("ds_read_b128 v[%d:%d], v25 offset:%d" % (CSV + 4 * i, CSV + 4 * i + 3, 64 * i))
        cr = s.conv_reads(0, 0)
        for o in cr[:7]: A(o)
        A("s_waitcnt lgkmcnt(7)")
        rest = cr[7:]
        HP = 48
        n = 0
        for pp in range(2):
            for j in range(4):
                hp = HP + 4 * (n & 3)
                for ii in range(2):
                    i = 2 * pp + ii
                    a = ACC + 4 * (4 * i + j)
                    for u in range(2):
                        A("v_pk_fma_f32 v[%d:%d], v[%d:%d], v[%d:%d], v[%d:%d] op_sel:[0,%d,0] op_sel_hi:[1,%d,1]" % (
                            a + 2 * u, a + 2 * u + 1, CSV + 4 * i + 2 * u, CSV + 4 * i + 2 * u + 1, NM + (j & 2), NM + (j & 2) + 1, a + 2 * u, a + 2 * u + 1, j & 1, j & 1))
                for ii in range(2):
                    a = ACC + 4 * (4 * (2 * pp + ii) + j)
                    for u in range(2):
                        A("v_cvt_pk_bf16_f32 v%d, v%d, v%d" % (hp + 2 * ii + u, a + 2 * u, a + 2 * u + 1))
                for d in range(4): A("v_pk_max_i16 v%d, v%d, 0" % (hp + d, hp + d))
                A("buffer_store_dwordx4 v[%d:%d], v26, s[%d:%d], s%d offen offset:%d sc1" % (hp, hp + 3, rWS, rWS + 3, sHB, j * 1024))
                for o in rest[:3]: A(o)
                rest = rest[3:]
                n += 1
            if pp == 0: A("s_add_u32 s%d, s%d, 4096" % (sHB, sHB))
        assert not rest
        A("s_branch L_m_conv")
        A("L_m_spare:")
        s.conv_addr(first=True)
        for i in range(9): A("s_barrier")
        for o in s.conv_reads(0, 0): A(o)
        A("L_m_conv:")
        A("s_barrier")
        s.stamp("m", "B9")
        CA = 64
        cnt = 0
        for jj in range(4):
            st = jj & 1
            ms = []
            for J in range(8):
                for ct in range(J, 8):
                    a = CA + 4 * ct
                    c = "0" if (jj == 0 and J == 0) else "v[%d:%d]" % (a, a + 3)
                    ms.append("v_mfma_f32_16x16x32_bf16 v[%d:%d], v[%d:%d], v[%d:%d], %s" % (a, a + 3, s.cA(st, J), s.cA(st, J) + 3, s.cB(st, ct - J), s.cB(st, ct - J) + 3, c))
            A("s_waitcnt lgkmcnt(0)")
            fill = {}
            if jj < 3:
                r = s.conv_reads(jj + 1, 1 - st)
                for i, o in enumerate(r): fill[i] = [o]
            else:
                for e in range(4): fill[e] = ["ds_read_b64 v[%d:%d], v6 offset:%d" % (128 + 2 * e, 129 + 2 * e, 512 * (3 - e))]
                da = s.d_addr()
                for i, o in enumerate(da): fill.setdefault(4 + i, []).append(o)
            for i in range(36):
                if cnt + i == s.o["hflag_at"]:
                    fill.setdefault(i, []).append("s_waitcnt vmcnt(0)\ns_barrier")
            cnt += 36
            s.weave(ms, fill)
        s.stamp("m", "conv_done")
        A("s_waitcnt lgkmcnt(0)")
        A("s_barrier")
        A("s_nop 1")
        A("s_bitcmp1_b32 s%d, 0\ns_cbranch_scc1 L_cx1" % sW4)
        for e in range(4): A("ds_write_b128 v7, v[%d:%d] offset:%d" % (CA + 16 + 4 * e, CA + 19 + 4 * e, 1024 * e))
        A("s_branch L_cx2")
        A("L_cx1:")
        for e in range(4): A("ds_write_b128 v7, v[%d:%d] offset:%d" % (CA + 4 * e, CA + 3 + 4 * e, 1024 * e))
        A("s_nop 1")
        for e in range(8): A("v_pk_mov_b32 v[%d:%d], v[%d:%d], v[%d:%d] op_sel:[0,1]" % (CA + 2 * e, CA + 2 * e + 1, CA + 16 + 2 * e, CA + 17 + 2 * e, CA + 16 + 2 * e, CA + 17 + 2 * e))
        A("L_cx2:")
        A("s_bitcmp1_b32 s%d, 1\ns_cselect_b32 s%d, 0, 16\ns_lshl_b32 s%d, s%d, s%d\ns_and_b32 s%d, s%d, 0xffff0000" % (sW4, sT0, sT0, sDV, sT0, sT0, sT0))
        for e in range(4):
            k = 128 + 2 * e; u = 136 + 4 * e
            A("v_and_b32 v%d, 0xffff0000, v%d\nv_lshlrev_b32 v%d, 16, v%d\nv_and_b32 v%d, 0xffff0000, v%d\nv_lshlrev_b32 v%d, 16, v%d" % (u, k + 1, u + 1, k + 1, u + 2, k, u + 3, k))
        A("s_waitcnt lgkmcnt(0)")
        A("s_barrier")
        for e in range(4): A("ds_read_b128 v[%d:%d], v8 offset:%d" % (CA + 16 + 4 * e, CA + 19 + 4 * e, 1024 * e))
        for i in range(16): A("v_fmac_f32 v%d, s%d, v%d" % (CA + i, sT0, 136 + i))
        for pp in range(2):
            A("s_waitcnt lgkmcnt(%d)" % (2 - 2 * pp))
            for i in range(4):
                a = CA + 8 * pp + 2 * i
                A("v_pk_add_f32 v[%d:%d], v[%d:%d], v[%d:%d]" % (a, a + 1, a, a + 1, a + 16, a + 17))
            for i in range(4):
                a = CA + 8 * pp + 2 * i
                A("v_cvt_pk_bf16_f32 v%d, v%d, v%d" % (HP + 4 * pp + i, a, a + 1))
            A("buffer_store_dwordx4 v[%d:%d], v10, s[%d:%d], s%d offen sc1" % (HP + 4 * pp, HP + 4 * pp + 3, rWS, rWS + 3, sT3 if pp else sT2))
        s.stamp("m", "y_stored")
        A("s_barrier")
        DA = 64
        def dfa(st): return 128 + 16 * st
        def drd(ks, st):
            o = []
            for it in range(2):
                for hh in range(2):
                    o.append("ds_read_b64_tr_b16 v[%d:%d], v%d offset:%d" % (dfa(st) + 4 * it + 2 * hh, dfa(st) + 4 * it + 2 * hh + 1, 15 + it, ks * 4096 + hh * 2048))
                o.append("ds_read_b128 v[%d:%d], v14 offset:%d" % (dfa(st) + 8 + 4 * it, dfa(st) + 11 + 4 * it, ks * 4096 + it * 1024))
            return o
        def dmf(st):
            o = []
            for it in range(2):
                for tj in range(2):
                    a = DA + 4 * (2 * it + tj)
                    o.append("v_mfma_f32_16x16x32_bf16 v[%d:%d], v[%d:%d], v[%d:%d], v[%d:%d]" % (a, a + 3, dfa(st) + 4 * it, dfa(st) + 4 * it + 3, dfa(st) + 8 + 4 * tj, dfa(st) + 11 + 4 * tj, a, a + 3))
            return o
        def dnext():
            return ("s_and_b32 s%d, s%d, 15\ns_lshl_b32 s%d, s%d, 14\ns_lshr_b64 s[%d:%d], s[%d:%d], 4\n" % (sT0, sTH, sT0, sT0, sTH, sTH + 1, sTH, sTH + 1) +
                    "s_and_b32 s%d, s%d, 15\ns_lshl_b32 s%d, s%d, 14\ns_lshr_b64 s[%d:%d], s[%d:%d], 4\n" % (sT1, sTW, sT1, sT1, sTW, sTW + 1, sTW, sTW + 1) +
                    "v_add_u32 v14, s%d, v11\nv_add_u32 v15, s%d, v12\nv_add_u32 v16, s%d, v13" % (sT0, sT1, sT1))
        hs, ws_ = s.d_slots()
        th = sum(q << (4 * i) for i, q in enumerate(hs)); tw = sum(q << (4 * i) for i, q in enumerate(ws_))
        A("s_mov_b32 s%d, 0x%x\ns_mov_b32 s%d, 0x%x\ns_mov_b32 s%d, 0x%x\ns_mov_b32 s%d, 0x%x" % (sTH, th & 0xffffffff, sTH + 1, th >> 32, sTW, tw & 0xffffffff, sTW + 1, tw >> 32))
        A(dnext())
        for i in range(16): A("v_mov_b32 v%d, 0" % (DA + i))
        A("s_mov_b32 s%d, 0" % sCNT)
        A("s_barrier")
        s.stamp("m", "D0")
        for o in drd(0, 0) + drd(1, 1): A(o)
        def two(ms, r):
            return {0: r[0:2], 1: r[2:4], 2: r[4:6]}
        A("L_g2:")
        A("s_waitcnt lgkmcnt(6)")
        s.weave(dmf(0), two(0, drd(2, 2)))
        A("s_waitcnt lgkmcnt(6)")
        s.weave(dmf(1), two(0, drd(3, 3)))
        A("s_add_u32 s%d, s%d, 1" % (sCNT, sCNT))
        A("s_waitcnt lgkmcnt(6)")
        s.weave(dmf(2), {0: [dnext()]})
        A("s_cmp_eq_u32 s%d, 14" % sCNT)
        A("s_waitcnt lgkmcnt(0)")
        A("s_cbranch_scc1 L_g2_last")
        ly = s.lab("yw")
        A("s_cmp_lg_u32 s%d, 2\ns_cbranch_scc1 %s" % (sCNT, ly))
        A("s_waitcnt vmcnt(0)")
        A("buffer_load_dword v20, v21, s[%d:%d], s%d offen sc1" % (rWS, rWS + 3, sHB))
        A("buffer_load_dword v22, v21, s[%d:%d], s%d offen offset:128 sc1" % (rWS, rWS + 3, sHB))
        A("%s:" % ly)
        A("s_barrier")
        r = drd(0, 0) + drd(1, 1)
        s.weave(dmf(3), {0: r[0:3], 1: r[3:6], 2: r[6:9], 3: r[9:12]})
        A("s_branch L_g2")
        A("L_g2_last:")
        s.weave(dmf(3), {})
        s.stamp("m", "g2_done")
        A("s_waitcnt vmcnt(0)")
        A("s_nop 4")
        for it in range(2):
            for tj in range(2):
                a = DA + 4 * (2 * it + tj)
                for u in range(2):
                    A("v_pk_mul_f32 v[%d:%d], v[%d:%d], v[%d:%d] op_sel:[0,0] op_sel_hi:[1,0]" % (a + 2 * u, a + 2 * u + 1, a + 2 * u, a + 2 * u + 1, 20 + 2 * tj, 21 + 2 * tj))
                for u in range(2):
                    A("v_cvt_pk_bf16_f32 v%d, v%d, v%d" % (HP + 4 * it + 2 * tj + u, a + 2 * u, a + 2 * u + 1))
                A("ds_write_b64 v%d, v[%d:%d] offset:%d" % (17 + it, HP + 4 * it + 2 * tj, HP + 4 * it + 2 * tj + 1, tj * 2048))
        A("s_waitcnt lgkmcnt(0)")
        A("s_barrier")
        s.stamp("m", "end")
        s.stamp_out()
        A("s_endpgm")

    def cA(s, st, J): return (128 + 4 * J) if st == 0 else (192 + 4 * J)
    def cB(s, st, m): return (160 + 4 * m) if st == 0 else (96 + 4 * m)

    def conv_addr(s, first=False):
        A = s.A
        A("v_and_b32 v27, 3, v20\nv_sub_u32 v27, 3, v27\nv_mul_u32_u24 v27, 4160, v27")
        A("v_lshrrev_b32 v4, 2, v20\nv_lshl_add_u32 v4, v4, 3, v27\nv_lshl_add_u32 v4, v9, 4, v4")
        A("s_lshr_b32 s%d, s%d, 1\ns_and_b32 s%d, s%d, 1" % (sT0, sW4, sT1, sW4))
        A("s_mul_i32 s%d, s%d, 16640\ns_lshl_b32 s%d, s%d, 8\ns_add_u32 s%d, s%d, s%d\ns_add_u32 s%d, s%d, %d" % (sT2, sT0, sT3, sT1, sT2, sT2, sT3, sT2, sT2, HC + 8))
        A("v_add_u32 v4, s%d, v4" % sT2)
        A("s_mul_i32 s%d, s%d, 4608\ns_add_u32 s%d, s%d, s%d\ns_add_u32 s%d, s%d, %d" % (sT2, sT0, sT3, sT3, sT2, sT3, sT3, RB + 4064 - 3584))
        A("v_lshlrev_b32 v27, 5, v20\nv_lshlrev_b32 v5, 4, v9\nv_sub_u32 v5, v5, v27\nv_add_u32 v5, s%d, v5" % sT3)
        A("s_lshl_b32 s%d, s%d, 11\ns_sub_u32 s%d, s%d, s%d\ns_add_u32 s%d, s%d, %d" % (sT3, sT1, sT2, sT2, sT3, sT2, sT2, RB + 4088 - 1536))
        A("v_lshl_add_u32 v6, v9, 3, v27\nv_sub_u32 v6, s%d, v6" % sT2)
        A("s_lshl_b32 s%d, s%d, 12\ns_add_u32 s%d, s%d, %d\nv_lshl_add_u32 v7, v1, 4, s%d\nv_xor_b32 v8, 0x1000, v7" % (sT2, sW4, sT2, sT2, RED, sT2))
        A("v_lshrrev_b32 v10, 3, v20\nv_lshl_add_u32 v10, v9, 1, v10\nv_lshlrev_b32 v10, 16, v10\nv_and_b32 v27, 7, v20\nv_lshl_add_u32 v10, v27, 4, v10")

    def conv_reads(s, jj, st):
        def a(J, h): return "ds_read_b64 v[%d:%d], v4 offset:%d" % (s.cA(st, J) + 2 * h, s.cA(st, J) + 2 * h + 1, 512 * J + 64 * jj + 8 * h)
        def b(m): return "ds_read_b128 v[%d:%d], v5 offset:%d" % (s.cB(st, m), s.cB(st, m) + 3, 512 * (7 - m) + 64 * jj)
        o = [a(0, 0), a(0, 1)] + [b(m) for m in range(8)]
        for J in range(1, 8): o += [a(J, 0), a(J, 1)]
        return o

    def d_addr(s):
        o = []
        o.append("s_lshr_b32 s%d, s%d, 1\ns_lshl_b32 s%d, s%d, 11\nv_lshl_add_u32 v11, v1, 4, s%d" % (sT0, sW4, sT1, sT0, sT1))
        o.append("v_bfe_u32 v12, v1, 2, 2\nv_lshl_add_u32 v13, v9, 2, v12")
        o.append("v_bfe_u32 v12, v13, 1, 2\ns_and_b32 s%d, s%d, 1\ns_lshl_b32 s%d, s%d, 1" % (sT1, sW4, sT1, sT1))
        o.append("v_xor_b32 v12, s%d, v12\nv_lshlrev_b32 v13, 7, v13" % sT1)
        o.append("v_lshl_add_u32 v12, v12, 5, v13\nv_and_b32 v13, 3, v1")
        o.append("v_lshl_add_u32 v12, v13, 3, v12\nv_xor_b32 v13, 32, v12")
        o.append("v_lshrrev_b32 v17, 1, v9\nv_lshl_add_u32 v17, s%d, 1, v17" % sT1)
        o.append("v_and_b32 v18, 7, v20\nv_xor_b32 v17, v17, v18")
        o.append("v_lshrrev_b32 v18, 3, v20\nv_xor_b32 v18, v18, v9")
        o.append("v_and_b32 v18, 1, v18\nv_lshlrev_b32 v18, 3, v18")
        o.append("v_lshl_add_u32 v17, v17, 4, v18\nv_lshl_add_u32 v17, v20, 7, v17")
        o.append("s_lshl_b32 s%d, s%d, 12\ns_add_u32 s%d, s%d, %d\nv_add_u32 v17, s%d, v17" % (sT1, sT0, sT1, sT1, YT, sT1))
        o.append("v_xor_b32 v18, 32, v17\nv_lshlrev_b32 v21, 3, v20")
        o.append("s_lshl_b32 s%d, s%d, 1\ns_add_u32 s%d, s%d, s%d\ns_lshl_b32 s%d, s%d, 8\ns_add_u32 s%d, s%d, 0x%x" % (sHB, sM2, sHB, sHB, sT0, sHB, sHB, sHB, sHB, WS_ST + 4))
        o.append("s_lshl_b32 s%d, s%d, 5\ns_add_u32 s%d, s%d, s%d\ns_lshl_b32 s%d, s%d, 1\ns_add_u32 s%d, s%d, s%d\ns_lshl_b32 s%d, s%d, 7" % (sT2, sC, sT2, sT2, sIDX, sT2, sT2, sT2, sT2, sT0, sT2, sT2))
        o.append("s_and_b32 s%d, s%d, 1\ns_lshl_b32 s%d, s%d, 20\ns_add_u32 s%d, s%d, s%d\ns_add_u32 s%d, s%d, 0x%x\ns_add_u32 s%d, s%d, 0x80000" % (sT3, sW4, sT3, sT3, sT2, sT2, sT3, sT2, sT2, WS_Y, sT3, sT2))
        return o

    def d_slots(s):
        hs = [None] * 14; ws = [None] * 14
        ws[0], ws[1], ws[2], ws[3], ws[4], ws[5] = 4, 5, 0, 1, 2, 3
        hs[0], hs[1], hs[2] = 9, 7, 6
        order = [("h", 3), ("h", 4), ("h", 5), ("h", 6)]
        for k in range(6, 13): order += [("w", k), ("h", k + 1)]
        order += [("w", 13)]
        plan = {}
        b = 1
        while order:
            free = [hs[b - 1], ws[b - 1]]
            plan[b] = []
            for q in free:
                if not order: break
                t, k = order.pop(0)
                (hs if t == "h" else ws)[k] = q
                plan[b].append((t, k))
            b += 1
        s.dplan = plan
        return hs, ws

    def helper_waves(s):
        A = s.A
        s.stamp("h", "start")
        vm = []
        def wait_for(*tags, extra=""):
            last = max(i for i, t in enumerate(vm) if t in tags)
            n = len(vm) - 1 - last
            assert n < 64
            A("s_waitcnt vmcnt(%d)%s" % (n, extra))
        A("v_lshrrev_b32 v3, 5, v1\nv_bfe_u32 v4, v1, 3, 2\nv_lshl_add_u32 v3, v3, 8, v4\nv_lshlrev_b32 v3, 10, v3")
        A("v_and_b32 v5, 7, v1\nv_lshrrev_b32 v9, 4, v1\nv_xor_b32 v6, v5, v9\nv_lshl_add_u32 v10, v6, 4, v3\nv_xor_b32 v11, 64, v10")
        A("s_lshr_b32 s%d, s%d, 2\ns_lshl_b32 s%d, s%d, 7\ns_and_b32 s%d, s%d, 3\ns_add_u32 s%d, s%d, s%d" % (sT0, sMI, sT0, sT0, sT1, sMI, sT0, sT0, sT1))
        A("s_lshl_b32 s%d, s%d, 12\ns_lshl_b32 s%d, s%d, 16\ns_add_u32 s%d, s%d, s%d" % (sT0, sT0, sT1, sW4, sXB, sT0, sT1))
        A("v_and_b32 v20, 15, v1\nv_lshlrev_b32 v6, 1, v9\nv_xor_b32 v6, v6, v20\nv_mul_u32_u24 v7, 3584, v9\nv_lshl_add_u32 v12, v6, 4, v7\nv_xor_b32 v13, 0x80, v12")
        A("s_lshl_b32 s%d, s%d, 8\ns_mul_i32 s%d, s%d, %d\ns_add_u32 s%d, s%d, s%d" % (sT0, sFI, sT1, sW4, 16 * 3584, sWB, sT0, sT1))
        A("s_lshl_b32 s%d, s%d, 12" % (sLB, sW4))
        A("s_waitcnt lgkmcnt(0)")
        s.srd(rA, sQ, 2 << 20); s.srd(rB, sW1, 512 * 3584)
        def stage(k):
            slot = k % 3
            A("s_add_u32 m0, s%d, %d" % (sLB, slot * 32768))
            for j in range(4):
                A("s_add_u32 s%d, s%d, %d" % (sT0, sXB, j * (16384 - 1024) + k * 128))
                A("buffer_load_dwordx4 v%d, s[%d:%d], s%d offen offset:%d lds" % (10 + (j & 1), rA, rA + 3, sT0, j * 1024)); vm.append("s%d" % k)
            A("s_add_u32 m0, s%d, %d" % (sLB, slot * 32768 + 16384))
            for j in range(4):
                A("s_add_u32 s%d, s%d, %d" % (sT0, sWB, j * (4 * 3584 - 1024) + k * 64 * 3584))
                A("buffer_load_dwordx4 v%d, s[%d:%d], s%d offen offset:%d lds" % (12 + (j >> 1), rB, rB + 3, sT0, j * 1024)); vm.append("s%d" % k)
        def ifB(fn):
            l = s.lab("nb")
            A("s_cmp_eq_u32 s%d, 0\ns_cbranch_scc1 %s" % (sISB, l))
            fn()
            A("%s:" % l)
        def spare_drain():
            l = s.lab("sd")
            A("s_cmp_lg_u32 s%d, 0\ns_cbranch_scc1 %s\ns_waitcnt vmcnt(0)\n%s:" % (sISB, l, l))
        ifB(lambda: (stage(0), stage(1)))
        s.srd(rWS, sWS, WS_SIZE); s.srd(rC, sW2, 1792 * 1024); s.srd(rH, sH, 2 << 20); s.srd(rOUT, sOUT, 2 << 20); s.srd(rDBG, sDBG, 256)
        A("s_lshl_b32 s%d, s%d, 5\ns_add_u32 s%d, s%d, s%d\ns_lshl_b32 s%d, s%d, 6" % (sSLOT, sC, sSLOT, sSLOT, sIDX, sSLOT, sSLOT))
        A("v_lshlrev_b32 v14, 4, v1")
        A("v_add_u32 v15, s%d, v14" % sLB)
        A("v_bfe_u32 v3, v1, 2, 2\nv_and_b32 v4, 1, v9\nv_lshl_or_b32 v4, v4, 2, v3\ns_lshl_b32 s%d, s%d, 1\nv_xor_b32 v4, s%d, v4" % (sT0, sW4, sT0))
        A("v_lshl_add_u32 v3, v9, 3, v3\nv_lshlrev_b32 v3, 8, v3\nv_and_b32 v6, 3, v1\nv_lshl_add_u32 v3, v6, 3, v3\nv_add_u32 v3, 0x4000, v3")
        A("v_lshl_add_u32 v16, v4, 5, v3\nv_xor_b32 v17, 32, v16")
        A("v_add_u32 v21, 0x10000, v15\nv_add_u32 v22, 0x10000, v16\nv_add_u32 v23, 0x10000, v17")
        A("s_lshl_b32 s%d, s%d, 11\ns_add_u32 s%d, s%d, %d\nv_add_u32 v18, s%d, v14" % (sT0, sW4, sT0, sT0, ROUT, sT0))
        A("v_lshrrev_b32 v3, 3, v1\nv_xor_b32 v4, v3, v5\nv_lshlrev_b32 v3, 12, v3\nv_lshl_add_u32 v19, v4, 4, v3")
        A("v_lshrrev_b32 v3, 3, v1\nv_lshlrev_b32 v4, 1, v9\nv_xor_b32 v4, v4, v5\nv_lshlrev_b32 v3, 10, v3\nv_lshl_add_u32 v24, v4, 4, v3")
        A("s_lshl_b32 s%d, s%d, 7\ns_lshl_b32 s%d, s%d, 15\ns_add_u32 s%d, s%d, s%d" % (sT0, sN2, sT1, sW4, sW2B, sT0, sT1))
        A("s_mul_i32 s%d, s%d, %d\ns_add_u32 s%d, s%d, s%d\ns_add_u32 s%d, s%d, 0x%x" % (sHB, sM2, 14 * 16384, sHB, sHB, sLB, sHB, sHB, WS_H))
        A("v_lshlrev_b32 v25, 6, v1\nv_mov_b32 v26, 0")
        SUM, SQ, CSA = 32, 36, 40
        for i in range(12): A("v_mov_b32 v%d, 0" % (SUM + i))
        A("s_mov_b32 s%d, 0x3f803f80" % sCNT)
        XR, WR = 64, 80
        def stats(k):
            slot = k % 3
            a = (15, 16, 17) if slot < 2 else (21, 22, 23)
            off = (slot & 1) * 32768 if slot < 2 else 0
            for j in range(4): A("ds_read_b128 v[%d:%d], v%d offset:%d" % (XR + 4 * j, XR + 4 * j + 3, a[0], off + j * 1024))
            for i in range(8):
                ft, q = i & 1, i >> 1
                A("ds_read_b64_tr_b16 v[%d:%d], v%d offset:%d" % (WR + 2 * i, WR + 2 * i + 1, a[1 + ft], off + (q >> 1) * 8192 + (q & 1) * 1024))
            A("s_waitcnt lgkmcnt(8)")
            for d in range(4):
                for j in range(4):
                    A("v_dot2c_f32_bf16 v%d, s%d, v%d" % (SUM + j, sCNT, XR + 4 * j + d))
                for j in range(4):
                    A("v_dot2c_f32_bf16 v%d, v%d, v%d" % (SQ + j, XR + 4 * j + d, XR + 4 * j + d))
            A("s_waitcnt lgkmcnt(0)")
            for i in range(16):
                A("v_dot2c_f32_bf16 v%d, s%d, v%d" % (CSA + ((i >> 1) & 1) + 2 * (i & 1), sCNT, WR + i))
        def w2load(k, q):
            A("s_add_u32 m0, s%d, %d" % (sLB, q * 16384))
            for j in range(4):
                A("s_add_u32 s%d, s%d, %d" % (sT0, sW2B, j * (8192 - 1024) + k * 131072))
                A("buffer_load_dwordx4 v24, s[%d:%d], s%d offen offset:%d lds" % (rC, rC + 3, sT0, j * 1024)); vm.append("w%d" % k)
        def hload(k, q):
            A("s_add_u32 m0, s%d, %d\ns_add_u32 s%d, s%d, %d" % (sLB, q * 16384, sT0, sHB, k * 16384))
            for j in range(4):
                A("buffer_load_dwordx4 v14, s[%d:%d], s%d offen offset:%d sc1 lds" % (rWS, rWS + 3, sT0, j * 1024)); vm.append("h%d" % k)
        def flag(base):
            l = s.lab("fl")
            A("s_cmp_lg_u32 s%d, 0\ns_cbranch_scc1 %s" % (sW4, l))
            A("s_add_u32 s%d, s%d, 0x%x\ns_mov_b64 exec, 1" % (sT0, sSLOT, base))
            A("buffer_store_dwordx2 v[28:29], v26, s[%d:%d], s%d offen sc1\ns_mov_b64 exec, -1" % (rWS, rWS + 3, sT0))
            A("%s:" % l)
        def poll_issue(voff, soff, nl, tag):
            A("s_mov_b64 exec, 0x%x" % ((1 << nl) - 1) if nl < 32 else "s_mov_b32 exec_hi, 0")
            A("buffer_load_dwordx2 v[30:31], v%d, s[%d:%d], s%d offen sc1\ns_mov_b64 exec, -1" % (voff, rWS, rWS + 3, soff)); vm.append(tag)
        def poll_check(voff, soff, nl, tag, drain=False):
            wait_for(tag)
            if drain: spare_drain()
            l0, l1 = s.lab("pl"), s.lab("pd")
            A("s_mov_b64 exec, 0x%x" % ((1 << nl) - 1) if nl < 32 else "s_mov_b32 exec_hi, 0")
            A("s_mov_b32 s%d, 0" % sT3)
            A("%s:" % l0)
            A("v_cmp_ne_u64 vcc, v[28:29], v[30:31]\ns_add_u32 s%d, s%d, 1\ns_cmp_gt_u32 s%d, 0x%x\ns_cbranch_scc1 %s" % (sT3, sT3, sT3, s.o["spin"], l1))
            A("s_cbranch_vccz %s" % l1)
            A("buffer_load_dwordx2 v[30:31], v%d, s[%d:%d], s%d offen sc1\ns_waitcnt vmcnt(0)\ns_branch %s" % (voff, rWS, rWS + 3, soff, l0))
            A("%s:\ns_mov_b64 exec, -1" % l1)
        hs, ws_ = s.d_slots()
        wait_for("s0")
        A("s_barrier")
        s.stamp("h", "B0")
        A("ds_read_b128 v[44:47], v18\nds_read_b128 v[48:51], v18 offset:1024")
        ifB(lambda: stage(2))
        A("s_lshl_b32 s%d, s%d, 18\ns_lshl_b32 s%d, s%d, 16\ns_add_u32 s%d, s%d, s%d" % (sT0, sC, sT1, sW4, sT0, sT0, sT1))
        A("s_sub_u32 s%d, 31, s%d\ns_lshl_b32 s%d, s%d, 7\ns_add_u32 s%d, s%d, s%d\ns_add_u32 s%d, s%d, 0x8000" % (sT1, sIDX, sT1, sT1, sT0, sT0, sT1, sT1, sT0))
        A("s_waitcnt lgkmcnt(0)")
        A("buffer_store_dwordx4 v[44:47], v19, s[%d:%d], s%d offen sc1" % (rWS, rWS + 3, sT0)); vm.append("Rst")
        A("buffer_store_dwordx4 v[48:51], v19, s[%d:%d], s%d offen sc1" % (rWS, rWS + 3, sT1)); vm.append("Rst")
        A("s_lshl_b32 s%d, s%d, 7\ns_lshl_b32 s%d, s%d, 11\ns_add_u32 s%d, s%d, s%d" % (sT2, sSLOT, sT1, sW4, sT2, sT2, sT1))
        A("s_lshr_b32 s%d, s%d, 1\ns_mul_i32 s%d, s%d, %d\ns_add_u32 s%d, s%d, s%d\ns_add_u32 m0, s%d, %d" % (sT0, sW4, sT0, sT0, 16640 - 4096, sT0, sT0, sT1, sT0, HC + 32))
        A("v_mov_b32 v52, 0\nv_mov_b32 v53, 0\nv_mov_b32 v54, 0\nv_mov_b32 v55, 0")
        A("buffer_load_dwordx4 v14, s[%d:%d], s%d offen lds" % (rH, rH + 3, sT2)); vm.append("H")
        A("buffer_load_dwordx4 v14, s[%d:%d], s%d offen offset:1024 lds" % (rH, rH + 3, sT2)); vm.append("H")
        A("v_lshrrev_b32 v3, 1, v1\nv_mul_u32_u24 v3, 4160, v3\nv_and_b32 v4, 1, v1\nv_lshl_add_u32 v3, v4, 4, v3\nv_add_u32 v3, %d, v3" % HC)
        A("s_mov_b64 exec, 0xffff\nds_write_b128 v3, v[52:55]\ns_mov_b64 exec, -1")
        ifB(lambda: stats(0))
        wait_for("s1", extra=" lgkmcnt(0)")
        A("s_barrier")
        A("buffer_load_dwordx2 v[28:29], v26, s[%d:%d], 0 offen sc1" % (rDBG, rDBG + 3)); vm.append("non")
        ifB(lambda: (stage(3), stats(1)))
        wait_for("s2", "Rst", "H", "non")
        spare_drain()
        l0, l1 = s.lab("nl"), s.lab("nd")
        A("s_mov_b32 s%d, 0\n%s:" % (sT3, l0))
        A("v_cmp_eq_u32 vcc, 0, v28\ns_add_u32 s%d, s%d, 1\ns_cmp_gt_u32 s%d, 0x%x\ns_cbranch_scc1 %s" % (sT3, sT3, sT3, s.o["spin"], l1))
        A("s_cbranch_vccz %s" % l1)
        A("buffer_load_dwordx2 v[28:29], v26, s[%d:%d], 0 offen sc1\ns_waitcnt vmcnt(0)\ns_branch %s\n%s:" % (rDBG, rDBG + 3, l0, l1))
        A("s_barrier")
        s.stamp("h", "B2")
        flag(WS_FA)
        ifB(lambda: stage(4))
        A("s_lshl_b32 s%d, s%d, 10\ns_add_u32 s%d, s%d, %d\nv_add_u32 v3, s%d, v14" % (sT0, sW4, sT0, sT0, HC + 24, sT0))
        for ch in range(2):
            b = 96 + 24 * ch
            A("ds_read_b64 v[%d:%d], v3 offset:%d\nds_read_b128 v[%d:%d], v3 offset:%d" % (b, b + 1, ch * 16640, b + 2, b + 5, ch * 16640 + 8))
        for ch in range(2):
            b = 96 + 24 * ch
            A("s_waitcnt lgkmcnt(%d)" % (2 if ch == 0 else 3))
            for j in range(4): A("v_alignbyte_b32 v%d, v%d, v%d, 2" % (b + 6 + j, b + 2 + j, b + 1 + j))
            for j in range(4): A("v_mov_b32 v%d, v%d" % (b + 10 + j, b + 1 + j))
            for j in range(4): A("v_alignbyte_b32 v%d, v%d, v%d, 2" % (b + 14 + j, b + 1 + j, b + j))
            for q in range(1, 4):
                A("ds_write_b128 v3, v[%d:%d] offset:%d" % (b + 2 + 4 * q, b + 5 + 4 * q, ch * 16640 + q * 4160 + 8))
        ifB(lambda: stats(2))
        wait_for("s3", extra=" lgkmcnt(0)")
        A("s_barrier")
        for k in (3, 4):
            ifB(lambda: (stage(k + 2), stats(k)))
            wait_for("s%d" % (k + 1))
            A("s_barrier")
        A("s_lshl_b32 s%d, s%d, 11\ns_add_u32 s%d, s%d, 0x%x" % (sT2, sC, sT2, sT2, WS_FA))
        poll_issue(25, sT2, 32, "pA")
        ifB(lambda: (stage(7), stats(5)))
        poll_check(25, sT2, 32, "pA", True)
        s.stamp("h", "pollA")
        A("s_lshl_b32 s%d, s%d, 7\ns_lshl_b32 s%d, s%d, 11\ns_add_u32 s%d, s%d, s%d" % (sT2, sSLOT, sT1, sW4, sT2, sT2, sT1))
        A("s_lshr_b32 s%d, s%d, 1\ns_lshl_b32 s%d, s%d, 9\ns_add_u32 s%d, s%d, s%d\ns_add_u32 m0, s%d, %d" % (sT0, sW4, sT0, sT0, sT0, sT0, sT1, sT0, RB))
        A("v_lshrrev_b32 v3, 5, v1\nv_mul_u32_u24 v3, 4608, v3\nv_and_b32 v4, 31, v1\nv_lshl_add_u32 v3, v4, 4, v3\nv_add_u32 v3, %d, v3" % (RB + 4096))
        A("buffer_load_dwordx4 v14, s[%d:%d], s%d offen sc1 lds" % (rWS, rWS + 3, sT2)); vm.append("R")
        A("buffer_load_dwordx4 v14, s[%d:%d], s%d offen offset:1024 sc1 lds" % (rWS, rWS + 3, sT2)); vm.append("R")
        A("ds_write_b128 v3, v[52:55]")
        wait_for("s6")
        A("s_barrier")
        w2load(0, ws_[0]); w2load(1, ws_[1])
        ifB(lambda: stats(6))
        wait_for("s7")
        A("s_barrier")
        s.stamp("h", "B7")
        w2load(2, ws_[2]); w2load(3, ws_[3])
        def final_stats():
            stats(7)
            A("s_nop 2")
            for ctl in ("quad_perm:[1,0,3,2]", "quad_perm:[2,3,0,1]", "row_half_mirror"):
                for i in range(8): A("v_add_f32_dpp v%d, v%d, v%d %s row_mask:0xf bank_mask:0xf" % (SUM + i, SUM + i, SUM + i, ctl))
            A("v_add_f32 v%d, v%d, v%d\nv_add_f32 v%d, v%d, v%d" % (CSA, CSA, CSA + 2, CSA + 1, CSA + 1, CSA + 3))
            A("v_and_b32 v3, 3, v1\nv_cmp_eq_u32 vcc, 1, v3\nv_cmp_eq_u32 s[%d:%d], 2, v3" % (sT0, sT0 + 1))
            A("v_permlane32_swap_b32 v%d, v%d" % (CSA, CSA + 1))
            A("v_cndmask_b32 v%d, v%d, v%d, vcc\nv_cndmask_b32 v%d, v%d, v%d, vcc" % (SUM, SUM, SUM + 1, SQ, SQ, SQ + 1))
            A("v_cmp_eq_u32 vcc, 3, v3")
            A("v_add_f32 v%d, v%d, v%d" % (CSA, CSA, CSA + 1))
            A("v_cndmask_b32 v%d, v%d, v%d, s[%d:%d]\nv_cndmask_b32 v%d, v%d, v%d, s[%d:%d]" % (SUM, SUM, SUM + 2, sT0, sT0 + 1, SQ, SQ, SQ + 2, sT0, sT0 + 1))
            A("v_mov_b32 v%d, v%d" % (CSA + 1, CSA))
            A("v_cndmask_b32 v%d, v%d, v%d, vcc\nv_cndmask_b32 v%d, v%d, v%d, vcc" % (SUM, SUM, SUM + 3, SQ, SQ, SQ + 3))
            A("v_permlane16_swap_b32 v%d, v%d" % (CSA, CSA + 1))
            A("v_mul_f32 v%d, 0x3b000000, v%d\nv_mul_f32 v%d, 0x3b000000, v%d" % (SUM, SUM, SQ, SQ))
            A("v_add_f32 v%d, v%d, v%d" % (CSA, CSA, CSA + 1))
            A("v_fma_f32 v%d, -v%d, v%d, v%d\nv_max_f32 v%d, 0, v%d" % (SQ, SUM, SUM, SQ, SQ, SQ))
            A("v_lshrrev_b32 v4, 5, v1\nv_lshl_add_u32 v4, v4, 4, v20\ns_lshl_b32 s%d, s%d, 7\ns_add_u32 s%d, s%d, %d\nv_lshl_add_u32 v4, v4, 2, s%d" % (sT2, sW4, sT2, sT2, CS, sT2))
            A("ds_write_b32 v4, v%d" % CSA)
            A("v_cvt_pk_bf16_f32 v%d, v%d, v%d" % (SUM + 1, SUM, SQ))
            A("v_lshrrev_b32 v4, 3, v1\nv_lshl_add_u32 v4, v3, 3, v4")
            A("v_lshlrev_b32 v%d, 16, v%d\nv_and_b32 v%d, 0xffff0000, v%d" % (SUM + 2, SUM + 1, SQ, SUM + 1))
            A("v_xor_b32 v%d, 0x80000000, v%d" % (SUM, SUM + 2))
            A("s_sub_u32 s%d, s%d, 512\nv_lshl_add_u32 v5, v4, 2, s%d" % (sT2, sT2, sT2))
            A("ds_write_b32 v5, v%d" % SUM)
            l = s.lab("ns")
            A("s_cmp_lg_u32 s%d, 0\ns_cbranch_scc1 %s" % (sFI, l))
            A("v_add_f32 v%d, 0x3727c5ac, v%d" % (SQ, SQ))
            A("v_cvt_pk_bf16_f32 v%d, v%d, v%d\nv_lshlrev_b32 v%d, 16, v%d\nv_sqrt_f32 v%d, v%d" % (SQ, SQ, SQ, SQ, SQ, SQ, SQ))
            A("s_lshl_b32 s%d, s%d, 2\ns_add_u32 s%d, s%d, s%d\ns_lshl_b32 s%d, s%d, 8\ns_add_u32 s%d, s%d, 0x%x" % (sT2, sMI, sT2, sT2, sW4, sT2, sT2, sT2, sT2, WS_ST))
            A("v_cvt_pk_bf16_f32 v%d, v%d, v%d\nv_lshlrev_b32 v%d, 16, v%d\nv_rcp_f32 v%d, v%d" % (SQ, SQ, SQ, SQ, SQ, SUM + 3, SQ))
            A("v_lshlrev_b32 v4, 3, v4\ns_nop 0")
            A("buffer_store_dwordx2 v[%d:%d], v4, s[%d:%d], s%d offen sc1" % (SUM + 2, SUM + 3, rWS, rWS + 3, sT2))
            A("%s:" % l)
        ifB(final_stats)
        wait_for("R", extra=" lgkmcnt(0)")
        A("s_barrier")
        s.stamp("h", "B8")
        A("s_barrier")
        w2load(4, ws_[4]); w2load(5, ws_[5])
        wait_for("w3")
        A("s_waitcnt vmcnt(8)")
        A("s_barrier")
        s.stamp("h", "BH")
        ifB(lambda: flag(WS_FH))
        A("s_lshl_b32 s%d, s%d, 5\ns_bfe_u32 s%d, s%d, 0x10001\ns_add_u32 s%d, s%d, s%d\ns_lshl_b32 s%d, s%d, 6\ns_add_u32 s%d, s%d, 0x%x" % (sT2, sC, sT1, sIDX, sT2, sT2, sT1, sT2, sT2, sT2, sT2, WS_FH))
        A("v_lshlrev_b32 v27, 7, v1")
        A("s_barrier")
        A("s_barrier")
        poll_issue(27, sT2, 14, "pH")
        A("s_barrier")
        poll_check(27, sT2, 14, "pH")
        s.stamp("h", "pollH")
        hload(0, hs[0]); hload(1, hs[1]); hload(2, hs[2])
        A("v_lshrrev_b32 v3, 5, v1\nv_bfe_u32 v4, v1, 3, 2\nv_lshl_add_u32 v3, v3, 8, v4\nv_lshlrev_b32 v3, 10, v3\nv_and_b32 v5, 7, v1\nv_lshl_add_u32 v10, v5, 4, v3")
        A("s_lshr_b32 s%d, s%d, 3\ns_lshl_b32 s%d, s%d, 9\ns_bfe_u32 s%d, s%d, 0x20001\ns_lshl_b32 s%d, s%d, 2\ns_add_u32 s%d, s%d, s%d" % (sT0, sM2, sT0, sT0, sT1, sM2, sT1, sT1, sT0, sT0, sT1))
        A("s_and_b32 s%d, s%d, 1\ns_lshl_b32 s%d, s%d, 7\ns_add_u32 s%d, s%d, s%d\ns_lshl_b32 s%d, s%d, 5\ns_add_u32 s%d, s%d, s%d" % (sT1, sM2, sT1, sT1, sT0, sT0, sT1, sT1, sW4, sT0, sT0, sT1))
        A("s_lshl_b32 s%d, s%d, 10\ns_lshl_b32 s%d, s%d, 7\ns_add_u32 s%d, s%d, s%d" % (sT0, sT0, sT1, sN2, sXB, sT0, sT1))
        A("s_lshl_b32 s%d, s%d, 11\ns_add_u32 s%d, s%d, %d" % (sT0, sW4, sT0, sT0, XT))
        A("v_lshlrev_b32 v3, 7, v20\nv_add_u32 v3, s%d, v3\nv_lshl_add_u32 v11, v9, 3, v3" % sT0)
        A("v_lshrrev_b32 v4, 1, v9\nv_and_b32 v6, 7, v20\nv_xor_b32 v4, v4, v6\nv_lshl_add_u32 v12, v4, 4, v3")
        A("v_lshrrev_b32 v4, 3, v20\nv_xor_b32 v4, v4, v9\nv_and_b32 v4, 1, v4\nv_lshl_add_u32 v12, v4, 3, v12")
        A("v_bfe_u32 v4, v1, 2, 2\nv_lshl_add_u32 v4, v9, 2, v4\nv_lshlrev_b32 v4, 7, v4\nv_and_b32 v6, 3, v1\nv_lshl_add_u32 v4, v6, 3, v4")
        A("s_lshl_b32 s%d, s%d, 5\ns_add_u32 s%d, s%d, %d\nv_add_u32 v13, s%d, v4" % (sT1, sW4, sT1, sT1, YT, sT1))
        A("v_lshrrev_b32 v4, 3, v1\nv_xor_b32 v6, v4, v5\nv_lshlrev_b32 v4, 7, v4\nv_lshl_add_u32 v4, v6, 4, v4\nv_add_u32 v15, s%d, v4" % sT0)
        A("v_lshlrev_b32 v16, 3, v20")
        wait_for("h0", "w0")
        A("s_barrier")
        s.stamp("h", "D0")
        yp = s.o["ypoll"]
        XV, YV, PF = 64, 72, 80
        for b in range(1, 14):
            if b - 1 in s.dplan:
                for t, k in s.dplan[b - 1]:
                    (hload(k, hs[k]) if t == "h" else w2load(k, ws_[k]))
            if b == 1:
                A("s_lshl_b32 s%d, s%d, 11\ns_add_u32 m0, s%d, %d\ns_add_u32 s%d, s%d, %d" % (sT0, sW4, sT0, XT, sT1, sXB, 16384 - 1024))
                A("buffer_load_dwordx4 v10, s[%d:%d], s%d offen lds" % (rA, rA + 3, sXB)); vm.append("x")
                A("buffer_load_dwordx4 v10, s[%d:%d], s%d offen offset:1024 lds" % (rA, rA + 3, sT1)); vm.append("x")
                A("s_lshl_b32 s%d, s%d, 2\ns_add_u32 s%d, s%d, s%d\ns_lshl_b32 s%d, s%d, 7\ns_add_u32 s%d, s%d, 0x%x" % (sT0, sM2, sT0, sT0, sW4, sT0, sT0, sT0, sT0, WS_ST))
                A("buffer_load_dwordx2 v[56:57], v16, s[%d:%d], s%d offen sc1" % (rWS, rWS + 3, sT0)); vm.append("x")
            if b == 3: flag(WS_FY)
            if b == yp:
                A("s_lshl_b32 s%d, s%d, 11\ns_add_u32 s%d, s%d, 0x%x" % (sT2, sN2, sT2, sT2, WS_FY))
                poll_issue(25, sT2, 32, "pY")
            if b == yp + 1:
                poll_check(25, sT2, 32, "pY")
                s.stamp("h", "pollY")
                A("s_lshl_b32 s%d, s%d, 11\ns_add_u32 m0, s%d, %d" % (sT0, sW4, sT0, YT))
                A("s_lshl_b32 s%d, s%d, 16\ns_add_u32 s%d, s%d, s%d\ns_lshl_b32 s%d, s%d, 13\ns_add_u32 s%d, s%d, s%d\ns_add_u32 s%d, s%d, 0x%x" % (sT1, sM2, sT0, sT0, sT1, sT1, sN2, sT0, sT0, sT1, sT0, sT0, WS_Y))
                A("buffer_load_dwordx4 v14, s[%d:%d], s%d offen sc1 lds" % (rWS, rWS + 3, sT0)); vm.append("y")
                A("buffer_load_dwordx4 v14, s[%d:%d], s%d offen offset:1024 sc1 lds" % (rWS, rWS + 3, sT0)); vm.append("y")
            if b == yp + 4:
                for i in range(4):
                    A("ds_read_b64 v[%d:%d], v11 offset:%d" % (XV + 2 * i, XV + 2 * i + 1, 32 * i))
                    A("ds_read_b64_tr_b16 v[%d:%d], v13 offset:%d" % (YV + 2 * i, YV + 2 * i + 1, 2048 * i))
                for i in range(4):
                    A("s_waitcnt lgkmcnt(%d)" % (6 - 2 * i))
                    for u in range(2):
                        x, y, t = XV + 2 * i + u, YV + 2 * i + u, 96
                        A("v_lshlrev_b32 v%d, 16, v%d\nv_and_b32 v%d, 0xffff0000, v%d" % (t, x, t + 1, x))
                        A("v_lshlrev_b32 v%d, 16, v%d\nv_and_b32 v%d, 0xffff0000, v%d" % (t + 2, y, t + 3, y))
                        A("v_sub_f32 v%d, v%d, v56\nv_sub_f32 v%d, v%d, v56" % (t + 4, t, t + 5, t + 1))
                        A("v_mul_f32 v%d, v%d, v57\nv_mul_f32 v%d, v%d, v57" % (t + 4, t + 4, t + 5, t + 5))
                        A("v_fmac_f32 v%d, v%d, v%d\nv_fmac_f32 v%d, v%d, v%d" % (t, t + 4, t + 2, t + 1, t + 5, t + 3))
                        A("v_cvt_pk_bf16_f32 v%d, v%d, v%d" % (x, t, t + 1))
                for i in range(4):
                    A("v_xor_b32 v3, %d, v12\nds_write_b64 v3, v[%d:%d]" % (32 * i, XV + 2 * i, XV + 2 * i + 1))
                A("s_waitcnt lgkmcnt(0)")
                A("ds_read_b128 v[%d:%d], v15\nds_read_b128 v[%d:%d], v15 offset:1024" % (XV, XV + 3, XV + 4, XV + 7))
                A("s_waitcnt lgkmcnt(0)")
                for d in range(8):
                    A("v_lshlrev_b32 v%d, 16, v%d\nv_and_b32 v%d, 0xffff0000, v%d" % (PF + 2 * d, XV + d, PF + 2 * d + 1, XV + d))
                A("v_add_u32 v15, %d, v15" % (YT - XT))
            tags = ["h%d" % b, "w%d" % b]
            if b == yp + 3: tags += ["y", "x"]
            wait_for(*tags)
            A("s_barrier")
        s.stamp("h", "D13")
        A("s_add_u32 s%d, s%d, 16384" % (sT1, sXB))
        A("s_barrier")
        A("ds_read_b128 v[%d:%d], v15\nds_read_b128 v[%d:%d], v15 offset:1024" % (XV, XV + 3, XV + 4, XV + 7))
        for i in range(2):
            A("s_waitcnt lgkmcnt(%d)" % (1 - i))
            for d in range(4):
                x = XV + 4 * i + d; t = 96 + 2 * d
                A("v_lshlrev_b32 v%d, 16, v%d\nv_and_b32 v%d, 0xffff0000, v%d" % (t, x, t + 1, x))
            for d in range(4):
                t = 96 + 2 * d; p = PF + 8 * i + 2 * d
                A("v_pk_add_f32 v[%d:%d], v[%d:%d], v[%d:%d]" % (t, t + 1, t, t + 1, p, p + 1))
            for d in range(4):
                dd = d ^ 2 if i else d
                A("v_cvt_pk_bf16_f32 v%d, v%d, v%d" % (104 + 4 * i + dd, 96 + 2 * d, 97 + 2 * d))
            A("buffer_store_dwordx4 v[%d:%d], v10, s[%d:%d], s%d offen %s" % (104 + 4 * i, 107 + 4 * i, rOUT, rOUT + 3, sT1 if i else sXB, s.o.get("outsc", "sc1")))
        s.stamp("h", "end")
        s.stamp_out()


HEAD = open("cdna_kernels/%s.s.ref" % NAME).read()


def render(g):
    head = HEAD[:HEAD.index("; @launch")]
    t = head + "; @launch grid=(256,1,1) block=(512,1,1) lds=%d\n" % LDS_SIZE
    t += '.amdgcn_target "amdgcn-amd-amdhsa--gfx950"\n.text\n.globl %s_kernel\n.p2align 8\n.type %s_kernel,@function\n%s_kernel:\n' % (NAME, NAME, NAME)
    for x in g.L:
        t += (x if x.endswith(":") else "    " + x) + "\n"
    t += HEAD[HEAD.index("s_endpgm"):]
    return t


if __name__ == "__main__":
    out = sys.argv[1] if len(sys.argv) > 1 else "cdna_kernels/%s.s" % NAME
    opts = dict(eval("dict(%s)" % sys.argv[2])) if len(sys.argv) > 2 else {}
    g = Gen(**opts).build()
    open(out, "w").write(render(g))
    print("wrote", out, len(g.L), "lines", g.nst)
```

```python
import sys, re

NAME = "parallel_sum__ssm_conv_h3__dense_activation_relu__prompt"

WS_R = 0
WS_Y = 2 << 20
WS_H = 4 << 20
WS_ST = 12 << 20
WS_CS = WS_ST + 16384
WS_FA = 13 << 20
WS_FH = WS_FA + 65536
WS_FY = WS_FA + 2 * 65536
WS_FS = WS_FA + 3 * 65536
WS_NONCE = WS_FA + 4 * 65536
WS_TS = 14 << 20
WS_SIZE = 16 << 20

HC = 98304
RB = 131584
ROUT = RB
NEGM = 140800
CS = NEGM + 512
NONL = CS + 512
KV = 143360
RED = 147456
XT = 131072
YT = 139264
LDS_SIZE = 163840

sQ, sK, sV, sSK, sH, sD, sW1, sW2, sOUT, sDBG, sWS = 4, 6, 8, 10, 12, 14, 18, 20, 22, 24, 26
rA, rB, rWS, rC, rH, rOUT, rDBG = 28, 32, 36, 40, 44, 48, 52
sW8, sW4, sC, sIDX, sMI, sFI, sM2, sN2 = 56, 57, 58, 59, 60, 61, 62, 63
sT0, sT1, sT2, sT3 = 64, 65, 66, 67
sXB, sWB, sLB, sSLOT = 68, 69, 70, 71
sHB, sW2B, sCNT, sDV = 72, 73, 74, 75
sFH, sPH, sFY, sST = 76, 77, 78, 79
sOB, sROLE, sISB, sTK = 80, 81, 82, 83
sTS = 84
rX, rY = 88, 92
OOB = 0x80000000


def R(a, n): return "v[%d:%d]" % (a, a + n - 1)
def SR(a, n=4): return "s[%d:%d]" % (a, a + n - 1)


class VM:
    def __init__(s, g): s.q = []; s.g = g
    def add(s, t): s.q.append(t)
    def n(s, *tags):
        last = max(i for i, t in enumerate(s.q) if t in tags)
        n = len(s.q) - 1 - last
        assert n < 64, n
        return n
    def wait(s, *tags, extra=""):
        s.g.A("s_waitcnt vmcnt(%d)%s" % (s.n(*tags), extra))


class Gen:
    def __init__(s, **o):
        s.L = []
        s.o = dict(stamps=False, hflag_at=92, spin=1 << 16, pa=1, pf=3, ps1=5, ps2=6, depth=8, amap=4, dmap=8, pref="x1", nt_kv="nt", nt_x="",
                   outsc="sc1", w2pf=2, codepf=0, w2a=4, prio=3, b8at=5, hb=1, pA=6)
        s.o.update(o)
        s.nlab = 0
        s.nst = {}

    def A(s, t):
        for x in t.split("\n"):
            x = x.strip()
            if x: s.L.append(x)

    def lab(s, p):
        s.nlab += 1
        return "L_%s_%d" % (p, s.nlab)

    def srd(s, r, p, size):
        s.A("s_mov_b32 s%d, s%d\ns_mov_b32 s%d, s%d\ns_mov_b32 s%d, 0x%x\ns_mov_b32 s%d, 0x20000" % (r, p, r + 1, p + 1, r + 2, size, r + 3))

    def stamp_s(s, role, name):
        if not s.o["stamps"]: return ""
        if isinstance(s.o["stamps"], (list, tuple, set)) and name not in s.o["stamps"] and name not in ("start", "end"): return ""
        k = s.nst.setdefault(role, [])
        if name not in k: k.append(name)
        return "s_memrealtime s[%d:%d]\ns_waitcnt lgkmcnt(0)\nv_writelane_b32 v255, s%d, %d" % (sTS, sTS + 1, sTS, k.index(name))

    def stamp(s, role, name): s.A(s.stamp_s(role, name))

    def stamp_out(s):
        if not s.o["stamps"]: return
        s.A("s_lshl_b32 s%d, s2, 3\ns_add_u32 s%d, s%d, s%d\ns_lshl_b32 s%d, s%d, 8\ns_add_u32 s%d, s%d, 0x%x" % (sT0, sT0, sT0, sW8, sT0, sT0, sT0, sT0, WS_TS))
        s.A("v_lshlrev_b32 v254, 2, v1\ns_nop 1\nbuffer_store_dword v255, v254, %s, s%d offen" % (SR(rWS), sT0))

    def weave(s, ms, fill, pre=None):
        for i, m in enumerate(ms):
            for f in (pre or {}).get(i, []): s.A(f)
            s.A(m)
            for f in fill.get(i, []): s.A(f)

    def spin(s, vdst, voff, srd, soff, vnon, mask):
        A = s.A
        l0, l1 = s.lab("pl"), s.lab("pd")
        A("s_mov_b32 s%d, 0\n%s:" % (sT3, l0))
        A("v_cmp_ne_u64 vcc, %s, %s\ns_add_u32 s%d, s%d, 1\ns_cmp_gt_u32 s%d, 0x%x\ns_cbranch_scc1 %s" % (R(vnon, 2), R(vdst, 2), sT3, sT3, sT3, s.o["spin"], l1))
        A("s_and_b32 s%d, vcc_lo, 0x%x\ns_cbranch_scc0 %s" % (sT1, mask, l1))
        A("buffer_load_dwordx2 %s, v%d, %s, s%d offen sc1\ns_waitcnt vmcnt(0)\ns_branch %s\n%s:" % (R(vdst, 2), voff, SR(srd), soff, l0, l1))

    def nonce_wait(s, vn, vz):
        A = s.A
        l0, l1 = s.lab("nl"), s.lab("nd")
        A("s_mov_b32 s%d, 0\n%s:" % (sT3, l0))
        A("v_cmp_eq_u32 vcc, 0, v%d\ns_add_u32 s%d, s%d, 1\ns_cmp_gt_u32 s%d, 0x%x\ns_cbranch_scc1 %s" % (vn, sT3, sT3, sT3, s.o["spin"], l1))
        A("s_cbranch_vccz %s" % l1)
        A("buffer_load_dwordx2 %s, v%d, %s, 0 offen sc1\ns_waitcnt vmcnt(0)\ns_branch %s\n%s:" % (R(vn, 2), vz, SR(rDBG), l0, l1))

    def tokbase(s, dst, m2, t):
        return ("s_lshr_b32 s%d, s%d, 3\ns_lshl_b32 s%d, s%d, 9\ns_bfe_u32 s%d, s%d, 0x20001\ns_lshl_b32 s%d, s%d, 2\ns_add_u32 s%d, s%d, s%d\n" % (dst, m2, dst, dst, t, m2, t, t, dst, dst, t) +
                "s_and_b32 s%d, s%d, 1\ns_lshl_b32 s%d, s%d, 7\ns_add_u32 s%d, s%d, s%d" % (t, m2, t, t, dst, dst, t))

    def build(s):
        A = s.A
        A("s_cmp_ge_u32 s2, 256\ns_cbranch_scc1 L_end")
        A("s_load_dwordx16 s[4:19], s[0:1], 0\ns_load_dwordx8 s[20:27], s[0:1], 64")
        A("v_lshrrev_b32 v2, 6, v0\nv_and_b32 v1, 63, v0\nv_readfirstlane_b32 s%d, v2" % sW8)
        if s.o["stamps"]: A("v_mov_b32 v255, 0")
        A("s_and_b32 s%d, s2, 7\ns_lshr_b32 s%d, s2, 3" % (sC, sIDX))
        if s.o["amap"] == 2:
            A("s_and_b32 s%d, s%d, 1\ns_lshl_b32 s%d, s%d, 1\ns_add_u32 s%d, s%d, s%d" % (sMI, sIDX, sT0, sC, sMI, sMI, sT0))
            A("s_lshr_b32 s%d, s%d, 1" % (sFI, sIDX))
        else:
            A("s_and_b32 s%d, s%d, 3\ns_and_b32 s%d, s%d, 6\ns_lshl_b32 s%d, s%d, 1\ns_add_u32 s%d, s%d, s%d" % (sMI, sIDX, sT0, sC, sT0, sT0, sMI, sMI, sT0))
            A("s_and_b32 s%d, s%d, 1\ns_mul_i32 s%d, s%d, 7\ns_lshr_b32 s%d, s%d, 2\ns_add_u32 s%d, s%d, s%d" % (sT0, sC, sT0, sT0, sFI, sIDX, sFI, sFI, sT0))
        if s.o["dmap"] == 4:
            A("s_and_b32 s%d, s%d, 3\ns_lshl_b32 s%d, s%d, 2\ns_add_u32 s%d, s%d, s%d" % (sM2, sIDX, sT0, sC, sM2, sM2, sT0))
            A("s_lshr_b32 s%d, s%d, 2" % (sN2, sIDX))
        else:
            A("s_and_b32 s%d, s%d, 7\ns_and_b32 s%d, s%d, 6\ns_lshl_b32 s%d, s%d, 2\ns_add_u32 s%d, s%d, s%d" % (sM2, sIDX, sT0, sC, sT0, sT0, sM2, sM2, sT0))
            A("s_and_b32 s%d, s%d, 1\ns_lshl_b32 s%d, s%d, 2\ns_lshr_b32 s%d, s%d, 3\ns_add_u32 s%d, s%d, s%d" % (sT0, sC, sT0, sT0, sN2, sIDX, sN2, sN2, sT0))
        A("s_cmp_lt_u32 s%d, 28\ns_cselect_b32 s%d, 1, 0" % (sIDX, sISB))
        A("s_and_b32 s%d, s%d, 3" % (sW4, sW8))
        A("s_lshl_b32 s%d, s%d, 5\ns_add_u32 s%d, s%d, s%d" % (sSLOT, sC, sSLOT, sSLOT, sIDX))
        A("s_cmp_ge_u32 s%d, 4\ns_cbranch_scc1 L_helper" % sW8)
        s.mfma_waves()
        s.stats_block()
        A("L_helper:")
        s.helper_waves()
        s.tail()
        A("L_end:")
        return s

    def mfma_waves(s):
        A = s.A
        o = s.o
        nkv = o["nt_kv"]
        s.stamp("m", "start")
        A("s_mov_b32 s%d, 0" % sROLE)
        A("v_lshrrev_b32 v3, 3, v1\nv_and_b32 v4, 7, v1\nv_lshlrev_b32 v3, 10, v3\nv_lshl_add_u32 v3, v4, 4, v3")
        A("s_lshl_b32 s%d, s%d, 16\ns_lshl_b32 s%d, s%d, 14\ns_add_u32 s%d, s%d, s%d" % (sT0, sIDX, sT1, sW4, sT0, sT0, sT1))
        A("s_lshl_b32 s%d, s%d, 7\ns_add_u32 s%d, s%d, s%d" % (sT1, sC, sT0, sT0, sT1))
        A("v_add_u32 v3, s%d, v3\nv_subrev_u32 v4, 0x2000, v3" % sT0)
        A("s_mul_i32 s%d, s%d, 5120\ns_add_u32 s%d, s%d, %d" % (sLB, sW4, sLB, sLB, KV))
        A("s_lshl_b32 s%d, s%d, 9\nv_lshl_add_u32 v5, v1, 3, s%d" % (sT1, sC, sT1))
        A("s_lshl_b32 s%d, s%d, 2" % (sT1, sSLOT))
        if o["prio"]: A("s_setprio %d" % o["prio"])
        A("s_waitcnt lgkmcnt(0)")
        s.srd(rA, sK, 2 << 20); s.srd(rB, sV, 2 << 20); s.srd(rC, sSK, 4096); s.srd(rWS, sWS, WS_SIZE)
        A("s_mov_b32 m0, s%d\ns_movk_i32 s%d, 0x1c00" % (sLB, sT2))
        A("buffer_load_dwordx4 v4, %s, 0 offen %s lds" % (SR(rA), nkv))
        A("s_add_u32 m0, s%d, 1024\ns_load_dword s%d, s[%d:%d], s%d" % (sLB, sDV, sD, sD + 1, sT1))
        A("buffer_load_dwordx4 v3, %s, 0 offen %s lds" % (SR(rA), nkv))
        A("buffer_load_dwordx4 v3, %s, s%d offen offset:1024 %s lds" % (SR(rA), sT2, nkv))
        A("s_add_u32 m0, s%d, 3072\ns_nop 0" % sLB)
        A("buffer_load_dwordx4 v3, %s, 0 offen %s lds" % (SR(rB), nkv))
        A("buffer_load_dwordx4 v3, %s, s%d offen offset:1024 %s lds" % (SR(rB), sT2, nkv))
        A("buffer_load_dwordx2 v[6:7], v5, %s, 0 offen" % SR(rC))
        s.srd(rOUT, sOUT, 2 << 20); s.srd(rDBG, sDBG, 256)
        A("v_min_u32 v27, 1, v1\nv_lshlrev_b32 v28, 31, v27\nv_lshlrev_b32 v26, 4, v1\nv_mov_b32 v12, 0")
        ln = s.lab("nonce")
        A("s_xor_b32 s%d, s%d, 3\ns_or_b32 s%d, s2, s%d\ns_cmp_lg_u32 s%d, 0\ns_cbranch_scc1 %s" % (sT0, sW4, sT0, sT0, sT0, ln))
        A("s_add_u32 s%d, s%d, 0x%x\ns_addc_u32 s%d, s%d, 0\ns_load_dwordx2 s[%d:%d], s[%d:%d], 0\ns_waitcnt lgkmcnt(0)" % (sT0, sWS, WS_NONCE, sT1, sWS + 1, sT2, sT3, sT0, sT1))
        A("s_add_u32 s%d, s%d, 0x7f4a7c16\ns_addc_u32 s%d, s%d, 0x9e3779b9\ns_or_b32 s%d, s%d, 1" % (sT2, sT2, sT3, sT3, sT2, sT2))
        A("v_mov_b32 v30, s%d\nv_mov_b32 v31, s%d\ns_mov_b32 s%d, 0x%x" % (sT2, sT3, sT0, WS_NONCE))
        A("buffer_store_dwordx2 v[30:31], v28, %s, 0 offen sc1" % SR(rDBG))
        A("buffer_store_dwordx2 v[30:31], v28, %s, s%d offen sc1" % (SR(rWS), sT0))
        A("%s:" % ln)
        A("s_lshl_b32 s%d, s%d, 2\ns_add_u32 s%d, s%d, s%d\ns_lshl_b32 s%d, s%d, 7\ns_add_u32 s%d, s%d, 127\ns_sub_u32 s%d, s%d, s%d" % (sT0, sIDX, sT0, sT0, sW4, sT1, sC, sT1, sT1, sT0, sT1, sT0))
        A("s_lshl_b32 s%d, s%d, 11\ns_lshl_b32 s%d, s%d, 6\ns_add_u32 s%d, s%d, 0x%x" % (sTK, sT0, sFY, sT0, sFY, sFY, WS_FA))
        A("v_bfe_u32 v8, v1, 2, 2\nv_lshrrev_b32 v9, 4, v1\nv_and_b32 v10, 3, v1")
        A("v_lshlrev_b32 v11, 7, v8\nv_lshl_add_u32 v11, v9, 5, v11\nv_lshl_add_u32 v11, v10, 3, v11\nv_add_u32 v11, s%d, v11" % sLB)
        A("v_and_b32 v20, 15, v1")
        A("s_cmp_eq_u32 s%d, 0\ns_cbranch_scc1 L_stats" % sISB)
        A("v_lshrrev_b32 v21, 1, v20\nv_xor_b32 v21, v21, v9")
        A("v_lshlrev_b32 v22, 7, v20\nv_lshl_add_u32 v14, v21, 4, v22")
        A("s_lshr_b32 s%d, s%d, 1\ns_lshl_b32 s%d, s%d, 13\nv_add_u32 v14, s%d, v14\nv_xor_b32 v15, 64, v14" % (sT0, sW4, sT0, sT0, sT0))
        A("v_and_b32 v21, 1, v9\nv_lshl_or_b32 v21, v21, 2, v8")
        A("s_and_b32 s%d, s%d, 1\ns_lshl_b32 s%d, s%d, 2\nv_xor_b32 v21, s%d, v21" % (sT0, sW4, sT0, sT0, sT0))
        A("v_lshl_add_u32 v22, v9, 3, v8\nv_lshlrev_b32 v22, 8, v22\nv_lshl_add_u32 v22, v10, 3, v22\nv_add_u32 v22, 0x4000, v22")
        for ft in range(4):
            A("v_xor_b32 v23, %d, v21\nv_lshl_add_u32 v%d, v23, 5, v22" % (ft, 16 + ft))
        ACC = 64
        for i in range(64): A("v_mov_b32 v%d, 0" % (ACC + i))
        A("s_lshr_b32 s%d, s%d, 1\ns_lshl_b32 s%d, s%d, 1\ns_add_u32 s%d, s%d, s%d" % (sT0, sW4, sT1, sMI, sT0, sT0, sT1))
        A("s_and_b32 s%d, s%d, 1\ns_lshl_b32 s%d, s%d, 1\ns_add_u32 s%d, s%d, s%d" % (sT1, sW4, sT2, sFI, sT1, sT1, sT2))
        A("s_lshl_b32 s%d, s%d, 9\ns_add_u32 s%d, s%d, 0x%x\ns_lshl_b32 s%d, s%d, 8\ns_add_u32 s%d, s%d, 0x%x" % (sST, sT0, sST, sST, WS_ST, sOB, sT1, sOB, sOB, WS_CS))
        A("s_add_u32 s%d, s%d, 32\ns_lshl_b32 s%d, s%d, 6\ns_lshl_b32 s%d, s%d, 6\ns_mov_b32 s%d, 0x%x" % (sT1, sT1, sT0, sT0, sT1, sT1, sPH, WS_FS))
        A("v_mov_b32 v29, 0x%x\nv_writelane_b32 v29, s%d, 0\nv_writelane_b32 v29, s%d, 1" % (OOB, sT0, sT1))
        A("v_lshlrev_b32 v24, 3, v20\nv_lshlrev_b32 v25, 4, v9")
        vis = [o["pa"], o["pf"], o["ps1"], o["ps2"]]
        A("s_movk_i32 s%d, 0x%x" % (sXB, sum(1 << v for v in set(vis) if v)))
        A("s_mov_b32 s%d, 0\ns_mov_b32 s%d, 0" % (sCNT, sT2))
        A("s_waitcnt lgkmcnt(0)")
        if o["pa"] == 0: A("s_branch L_phaseA")
        FA = [128, 160]; FB = [144, 176]
        def rd(ks, st):
            r = []
            for t in range(4):
                r.append("ds_read_b64_tr_b16 %s, v%d offset:%d" % (R(FA[st] + 4 * t, 2), 16 + t, ks * 8192))
                r.append("ds_read_b64_tr_b16 %s, v%d offset:%d" % (R(FA[st] + 4 * t + 2, 2), 16 + t, ks * 8192 + 1024))
                r.append("ds_read_b128 %s, v%d offset:%d" % (R(FB[st] + 4 * t, 4), 14 + ks, t * 2048))
            return r
        def mf(st):
            r = []
            for i in range(4):
                for j in range(4):
                    a = ACC + 4 * (4 * i + j)
                    r.append("v_mfma_f32_16x16x32_bf16 %s, %s, %s, %s" % (R(a, 4), R(FA[st] + 4 * i, 4), R(FB[st] + 4 * j, 4), R(a, 4)))
            return r
        A("L_g1_start:")
        A("s_barrier")
        s.stamp("m", "B0")
        for x in rd(0, 0): A(x)
        A("L_g1:")
        A("s_waitcnt lgkmcnt(0)")
        r = rd(1, 1)
        fill = {i: [r[i]] for i in range(12)}
        fill[12] = ["s_cmp_eq_u32 s%d, 2\ns_cselect_b32 s%d, -2, 1" % (sT2, sT1),
                    "s_cselect_b32 s%d, -1, s%d\ns_add_u32 s%d, s%d, 1\ns_lshl_b32 s%d, s%d, 15" % (sT2, sT2, sT2, sT2, sT1, sT1)]
        fill[13] = ["v_add_u32 v14, s%d, v14\nv_add_u32 v15, s%d, v15" % (sT1, sT1)]
        fill[14] = ["v_add_u32 v16, s%d, v16\nv_add_u32 v17, s%d, v17" % (sT1, sT1)]
        fill[15] = ["v_add_u32 v18, s%d, v18\nv_add_u32 v19, s%d, v19" % (sT1, sT1)]
        s.weave(mf(0), fill)
        A("s_add_u32 s%d, s%d, 1\ns_cmp_eq_u32 s%d, 8" % (sCNT, sCNT, sCNT))
        A("s_waitcnt lgkmcnt(0)")
        A("s_cbranch_scc1 L_g1_last")
        A("s_barrier")
        r = rd(0, 0)
        fill = {i: [r[i]] for i in range(12)}
        fill[14] = ["s_bitcmp0_b32 s%d, s%d" % (sXB, sCNT)]
        s.weave(mf(1), fill)
        A("s_cbranch_scc1 L_g1")
        NM, CSV = 192, 32
        assert o["pa"] < o["pf"] <= o["ps2"] and o["ps1"] < o["ps2"] and o["pa"] < o["ps1"]
        if o["pa"]: A("s_cmp_eq_u32 s%d, %d\ns_cbranch_scc1 L_phaseA" % (sCNT, o["pa"]))
        A("s_cmp_lg_u32 s%d, %d\ns_cbranch_scc1 L_noflag" % (sCNT, o["pf"]))
        A("L_flagA:")
        A("s_waitcnt vmcnt(0)")
        s.nonce_wait(2, 12)
        A("buffer_store_dwordx2 v[2:3], v28, %s, s%d offen sc1" % (SR(rWS), sFY))
        s.stamp("m", "aflag")
        A("s_cmp_eq_u32 s%d, 0\ns_cbranch_scc1 L_m_spare" % sISB)
        A("L_noflag:")
        A("s_cmp_lg_u32 s%d, %d\ns_cbranch_scc1 L_nops1" % (sCNT, o["ps1"]))
        A("buffer_load_dwordx2 v[30:31], v29, %s, s%d offen sc1" % (SR(rWS), sPH))
        A("L_nops1:")
        A("s_cmp_lg_u32 s%d, %d\ns_cbranch_scc1 L_g1" % (sCNT, o["ps2"]))
        A("s_waitcnt vmcnt(0)")
        s.spin(30, 29, rWS, sPH, 2, 3)
        s.stamp("m", "pollS")
        for j in range(4): A("buffer_load_dword v%d, v24, %s, s%d offen offset:%d sc1" % (NM + j, SR(rWS), sST, 128 * j))
        for i in range(4): A("buffer_load_dwordx4 %s, v25, %s, s%d offen offset:%d sc1" % (R(CSV + 4 * i, 4), SR(rWS), sOB, 64 * i))
        A("s_branch L_g1")
        A("L_phaseA:")
        s.stamp("m", "pa_in")
        A("s_waitcnt vmcnt(0)")
        A("L_phaseA2:")
        s.stamp("m", "kv_landed")
        K, V, T, O, U, P = 192, 202, 210, 216, 232, 192
        for G in range(5): A("ds_read_b64_tr_b16 %s, v11 offset:%d" % (R(K + 2 * G, 2), 512 * (G + 1)))
        for G in range(4): A("ds_read_b64_tr_b16 %s, v11 offset:%d" % (R(V + 2 * G, 2), 3072 + 512 * G))
        A("v_alignbyte_b32 v%d, v7, v7, 2" % (T + 0))
        A("v_alignbyte_b32 v%d, v6, v6, 2" % (T + 1))
        A("v_and_b32 v%d, 0xffff0000, v7" % (T + 2))
        A("s_mov_b32 s%d, 0xffff\nv_bfi_b32 v%d, s%d, v7, v6" % (sT0, T + 3, sT0))
        A("v_and_b32 v%d, 0xffff, v6" % (T + 4))
        A("s_waitcnt lgkmcnt(4)")
        for m in range(8):
            A("v_dot2_f32_bf16 v%d, v%d, v%d, 0" % (O + 2 * m, K + m, T + 2))
            A("v_dot2_f32_bf16 v%d, v%d, v%d, 0" % (O + 2 * m + 1, K + m + 1, T + 0))
        for m in range(8):
            A("v_dot2_f32_bf16 v%d, v%d, v%d, v%d" % (O + 2 * m, K + m + 1, T + 3, O + 2 * m))
            A("v_dot2_f32_bf16 v%d, v%d, v%d, v%d" % (O + 2 * m + 1, K + m + 2, T + 1, O + 2 * m + 1))
        for m in range(8):
            A("v_dot2_f32_bf16 v%d, v%d, v%d, v%d" % (O + 2 * m, K + m + 2, T + 4, O + 2 * m))
        A("s_waitcnt lgkmcnt(0)")
        for m in range(8):
            A("v_lshlrev_b32 v%d, 16, v%d\nv_and_b32 v%d, 0xffff0000, v%d" % (U + 2 * m, V + m, U + 2 * m + 1, V + m))
        for m in range(8):
            A("v_pk_mul_f32 %s, %s, %s" % (R(O + 2 * m, 2), R(O + 2 * m, 2), R(U + 2 * m, 2)))
        for d in range(8):
            A("v_cvt_pk_bf16_f32 v%d, v%d, v%d" % (P + d, O + 15 - 2 * d, O + 14 - 2 * d))
        A("buffer_store_dwordx4 %s, v26, %s, s%d offen sc1" % (R(P, 4), SR(rWS), sTK))
        A("buffer_store_dwordx4 %s, v26, %s, s%d offen offset:1024 sc1" % (R(P + 4, 4), SR(rWS), sTK))
        A("buffer_load_dwordx2 v[2:3], v12, %s, 0 offen sc1" % SR(rDBG))
        s.stamp("m", "kv_done")
        A("s_cmp_lg_u32 s%d, 0\ns_cbranch_scc1 %s" % (sISB, "L_g1" if o["pa"] else "L_g1_start"))
        A("s_branch L_stats2")
        A("L_m_spare:")
        s.conv_addr()
        for i in range(8): A("s_barrier")
        cr = s.conv_reads(0, 0)
        for x in cr:
            if "v4 " in x: A(x)
        A("s_barrier")
        for x in cr:
            if "v5 " in x: A(x)
        A("s_branch L_m_conv")
        A("L_g1_last:")
        fill = {}
        fill[2] = ["s_lshl_b32 s%d, s%d, 1\ns_lshr_b32 s%d, s%d, 1\ns_add_u32 s%d, s%d, s%d" % (sT0, sMI, sT1, sW4, sT0, sT0, sT1),
                   "s_mul_i32 s%d, s%d, 14\ns_add_u32 s%d, s%d, s%d\ns_lshl_b32 s%d, s%d, 1" % (sT0, sT0, sT0, sT0, sFI, sT0, sT0)]
        fill[3] = ["s_and_b32 s%d, s%d, 1\ns_add_u32 s%d, s%d, s%d\ns_lshl_b32 s%d, s%d, 6\ns_add_u32 s%d, s%d, 0x%x" % (sT1, sW4, sT0, sT0, sT1, sFH, sT0, sFH, sFH, WS_FH),
                   "s_lshl_b32 s%d, s%d, 13\ns_add_u32 s%d, s%d, 0x%x" % (sT0, sT0, sHB, sT0, WS_H)]
        ca = s.conv_addr(ret=True)
        for i, x in enumerate(ca): fill.setdefault(4 + i * 12 // len(ca), []).append(x)
        s.weave(mf(1), fill)
        s.stamp("m", "g1_done")
        cr = s.conv_reads(0, 0)
        cra = [x for x in cr if "v4 " in x]; crb = [x for x in cr if "v5 " in x]
        for x in cra[:4]: A(x)
        A("s_waitcnt vmcnt(0)")
        s.stamp("m", "st_landed")
        rest = cra[4:]
        HP = 48
        n = 0
        for pp in range(2):
            for j in range(4):
                hp = HP + 4 * (n & 3)
                for ii in range(2):
                    i = 2 * pp + ii
                    a = ACC + 4 * (4 * i + j)
                    for u in range(2):
                        A("v_pk_fma_f32 %s, %s, %s, %s op_sel:[0,%d,0] op_sel_hi:[1,%d,1] neg_lo:[0,1,0] neg_hi:[0,1,0]" % (R(a + 2 * u, 2), R(CSV + 4 * i + 2 * u, 2), R(NM + (j & 2), 2), R(a + 2 * u, 2), j & 1, j & 1))
                for ii in range(2):
                    a = ACC + 4 * (4 * (2 * pp + ii) + j)
                    for u in range(2):
                        A("v_cvt_pk_bf16_f32 v%d, v%d, v%d" % (hp + 2 * ii + u, a + 2 * u, a + 2 * u + 1))
                for d in range(4): A("v_pk_max_i16 v%d, v%d, 0" % (hp + d, hp + d))
                A("buffer_store_dwordx4 %s, v26, %s, s%d offen offset:%d sc1" % (R(hp, 4), SR(rWS), sHB, j * 1024))
                if n == o["b8at"]:
                    assert not rest
                    s.stamp("m", "B8a")
                    A("s_barrier")
                    s.stamp("m", "B8")
                    rest = crb
                k = (8 if n == 7 else 4) if n >= o["b8at"] else 3
                for x in rest[:k]: A(x)
                rest = rest[k:]
                n += 1
            if pp == 0: A("s_add_u32 s%d, s%d, 4096" % (sHB, sHB))
        assert not rest
        A("L_m_conv:")
        s.stamp("m", "conv0")
        CA = 64
        cnt = 0
        for jj in range(4):
            st = jj & 1
            ms = []
            for J in range(8):
                for ct in range(J, 8):
                    a = CA + 4 * ct
                    c = "0" if (jj == 0 and J == 0) else R(a, 4)
                    ms.append("v_mfma_f32_16x16x32_bf16 %s, %s, %s, %s" % (R(a, 4), R(s.cA(st, J), 4), R(s.cB(st, ct - J), 4), c))
            A("s_waitcnt lgkmcnt(0)")
            fill = {}
            if jj < 3:
                r = s.conv_reads(jj + 1, 1 - st)
                for i, x in enumerate(r): fill[i] = [x]
            else:
                for e in range(4): fill[e] = ["ds_read_b64 %s, v6 offset:%d" % (R(128 + 2 * e, 2), 512 * (3 - e))]
                da = s.d_addr()
                for i, x in enumerate(da): fill.setdefault(4 + i, []).append(x)
                assert len(da) < 28
                fill.setdefault(33, []).append("buffer_load_dwordx2 v[30:31], v29, %s, s%d offen sc1" % (SR(rWS), sPH))
            for i in range(36):
                if cnt + i == o["hflag_at"]:
                    l = s.lab("hf")
                    fill.setdefault(i, []).append("s_cmp_eq_u32 s%d, 0\ns_cbranch_scc1 %s\ns_waitcnt vmcnt(0)\n" % (sISB, l) +
                                                  "buffer_store_dwordx2 v[2:3], v28, %s, s%d offen sc1\n" % (SR(rWS), sFH) + s.stamp_s("m", "hflag") + "\n%s:" % l)
            cnt += 36
            s.weave(ms, fill)
        s.stamp("m", "conv_done")
        A("s_waitcnt lgkmcnt(0)")
        for e in range(4):
            k = 128 + 2 * e; u = 136 + 4 * e
            A("v_and_b32 v%d, 0xffff0000, v%d\nv_lshlrev_b32 v%d, 16, v%d\nv_and_b32 v%d, 0xffff0000, v%d\nv_lshlrev_b32 v%d, 16, v%d" % (u, k + 1, u + 1, k + 1, u + 2, k, u + 3, k))
            if e == 1:
                A("s_bitcmp1_b32 s%d, 0\ns_cbranch_scc1 L_cx1" % sW4)
                for q in range(4): A("ds_write_b128 v7, %s offset:%d" % (R(CA + 16 + 4 * q, 4), 1024 * q))
                A("s_branch L_cx2")
                A("L_cx1:")
                for q in range(4): A("ds_write_b128 v7, %s offset:%d" % (R(CA + 4 * q, 4), 1024 * q))
                A("s_nop 1")
                for q in range(8): A("v_pk_mov_b32 %s, %s, %s op_sel:[0,1]" % (R(CA + 2 * q, 2), R(CA + 16 + 2 * q, 2), R(CA + 16 + 2 * q, 2)))
                A("L_cx2:")
        A("s_bitcmp1_b32 s%d, 1\ns_cselect_b32 s%d, 0, 16\ns_lshl_b32 s%d, s%d, s%d\ns_and_b32 s%d, s%d, 0xffff0000" % (sW4, sT0, sT0, sDV, sT0, sT0, sT0))
        for i in range(16): A("v_fmac_f32 v%d, s%d, v%d" % (CA + i, sT0, 136 + i))
        A("s_waitcnt lgkmcnt(0)")
        s.stamp("m", "BC2a")
        A("s_barrier")
        s.stamp("m", "BC2")
        vm = VM(s)
        vm.add("pH")
        for e in range(4): A("ds_read_b128 %s, v8 offset:%d" % (R(CA + 16 + 4 * e, 4), 1024 * e))
        DA, WF, HR = 64, 96, 152
        dp = o["depth"]; NB = dp + 1
        assert HR + 8 * NB <= 255
        def wrd(stp):
            j, ks = stp >> 2, stp & 3
            hi = j in (0, 3, 4)
            off = (32768 if j in (2, 3, 6) else 0) + ks * 4096
            r = []
            for i in range(4):
                for hh in range(2):
                    r.append("ds_read_b64_tr_b16 %s, v%d offset:%d" % (R(WF + 16 * (stp & 1) + 4 * i + 2 * hh, 2), (36 if hi else 32) + i, off + hh * 2048))
            return r
        def hld(stp):
            b = HR + 8 * (stp % NB)
            r = ["buffer_load_dwordx4 %s, v11, %s, s%d offen sc1" % (R(b, 4), SR(rWS), sHB),
                 "buffer_load_dwordx4 %s, v11, %s, s%d offen offset:1024 sc1\ns_add_u32 s%d, s%d, 4096" % (R(b + 4, 4), SR(rWS), sHB, sHB, sHB)]
            return r
        for x in wrd(0): A(x)
        for pp in range(2):
            A("s_waitcnt lgkmcnt(%d)" % (10 - 2 * pp))
            for i in range(4):
                a = CA + 8 * pp + 2 * i
                A("v_pk_add_f32 %s, %s, %s" % (R(a, 2), R(a, 2), R(a + 16, 2)))
            for i in range(4):
                a = CA + 8 * pp + 2 * i
                A("v_cvt_pk_bf16_f32 v%d, v%d, v%d" % (HP + 4 * pp + i, a, a + 1))
            A("buffer_store_dwordx4 %s, v10, %s, s%d offen sc1" % (R(HP + 4 * pp, 4), SR(rWS), sTK if pp else sT2)); vm.add("y")
        s.stamp("m", "y_stored")
        vm.wait("pH")
        s.spin(30, 29, rWS, sPH, 2, 0x3fff)
        s.stamp("m", "pollH")
        for stp in range(dp):
            for x in hld(stp): A(x); vm.add("h%d" % stp)
        for stp in range(28):
            j, ks = stp >> 2, stp & 3
            bar = ks == 3 and j < 4
            ms = []
            for i in range(4):
                for tj in range(2):
                    a = DA + 4 * (2 * i + tj)
                    c = "0" if stp == 0 else R(a, 4)
                    ms.append("v_mfma_f32_16x16x32_bf16 %s, %s, %s, %s" % (R(a, 4), R(WF + 16 * (stp & 1) + 4 * i, 4), R(HR + 8 * (stp % NB) + 4 * tj, 4), c))
            pre, fill = {}, {}
            nxt = wrd(stp + 1) if stp < 27 else []
            pre[0] = ["s_waitcnt vmcnt(%d) lgkmcnt(6)" % vm.n("h%d" % stp)]
            if stp == 0: pre[0].append(s.stamp_s("m", "h0"))
            if bar:
                pre[2] = ["s_waitcnt lgkmcnt(0)\n" + s.stamp_s("m", "X%da" % j) + "\ns_barrier\n" + s.stamp_s("m", "X%d" % j)]
                for q in range(4): fill[2 + q] = nxt[2 * q:2 * q + 2]
            elif nxt:
                for q in range(4): fill[q] = nxt[2 * q:2 * q + 2]
                pre[2] = ["s_waitcnt lgkmcnt(8)"]; pre[4] = ["s_waitcnt lgkmcnt(10)"]; pre[6] = ["s_waitcnt lgkmcnt(8)"]
            else:
                pre[2] = ["s_waitcnt lgkmcnt(4)"]; pre[4] = ["s_waitcnt lgkmcnt(2)"]; pre[6] = ["s_waitcnt lgkmcnt(0)"]
            if stp == 0:
                fill.setdefault(4, []).append("buffer_store_dwordx2 v[2:3], v28, %s, s%d offen sc1" % (SR(rWS), sFY)); vm.add("fy")
            if stp + dp < 28:
                l = hld(stp + dp)
                fill.setdefault(5, []).append(l[0]); fill.setdefault(7, []).append(l[1])
                vm.add("h%d" % (stp + dp)); vm.add("h%d" % (stp + dp))
            if stp + dp == 28:
                fill.setdefault(5, []).append("buffer_load_dword v20, v21, %s, s%d offen sc1" % (SR(rWS), sST))
                fill.setdefault(7, []).append("buffer_load_dword v22, v21, %s, s%d offen offset:128 sc1" % (SR(rWS), sST))
                vm.add("rs"); vm.add("rs")
            if stp == 26:
                for i, x in enumerate(s.tail_addr(ret=True)): fill.setdefault(4 + (i >> 1), []).append(x)
            s.weave(ms, fill, pre)
        s.stamp("m", "g2_done")
        A("s_waitcnt vmcnt(0)")
        for i in range(4):
            for tj in range(2):
                a = DA + 4 * (2 * i + tj)
                for u in range(2):
                    A("v_pk_mul_f32 %s, %s, %s op_sel:[0,0] op_sel_hi:[1,0]" % (R(a + 2 * u, 2), R(a + 2 * u, 2), R(20 + 2 * tj, 2)))
                p = WF + 2 * (2 * i + tj)
                for u in range(2):
                    A("v_cvt_pk_bf16_f32 v%d, v%d, v%d" % (p + u, a + 2 * u, a + 2 * u + 1))
                A("ds_write_b64 v%d, %s offset:%d" % (40 + i, R(p, 2), tj * 2048))
        A("s_branch L_tail")

    def cA(s, st, J): return (128 + 4 * J) if st == 0 else (192 + 4 * J)
    def cB(s, st, m): return (160 + 4 * m) if st == 0 else (96 + 4 * m)

    def conv_addr(s, ret=False):
        o = []
        o.append("v_and_b32 v27, 3, v20\nv_sub_u32 v27, 3, v27\nv_mul_u32_u24 v27, 4160, v27")
        o.append("v_lshrrev_b32 v4, 2, v20\nv_lshl_add_u32 v4, v4, 3, v27\nv_lshl_add_u32 v4, v9, 4, v4")
        o.append("s_lshr_b32 s%d, s%d, 1\ns_and_b32 s%d, s%d, 1\n" % (sT0, sW4, sT1, sW4) +
                 "s_mul_i32 s%d, s%d, 16640\ns_lshl_b32 s%d, s%d, 8\ns_add_u32 s%d, s%d, s%d\ns_add_u32 s%d, s%d, %d\n" % (sT2, sT0, sT3, sT1, sT2, sT2, sT3, sT2, sT2, HC + 8) +
                 "v_add_u32 v4, s%d, v4" % sT2)
        o.append("s_mul_i32 s%d, s%d, 4608\ns_add_u32 s%d, s%d, s%d\ns_add_u32 s%d, s%d, %d\n" % (sT2, sT0, sT3, sT3, sT2, sT3, sT3, RB + 4064 - 3584) +
                 "v_lshlrev_b32 v27, 5, v20\nv_lshlrev_b32 v5, 4, v9")
        o.append("v_sub_u32 v5, v5, v27\nv_add_u32 v5, s%d, v5" % sT3)
        o.append("s_lshl_b32 s%d, s%d, 11\ns_sub_u32 s%d, s%d, s%d\ns_add_u32 s%d, s%d, %d\n" % (sT3, sT1, sT2, sT2, sT3, sT2, sT2, RB + 4088 - 1536) +
                 "v_lshl_add_u32 v6, v9, 3, v27\nv_sub_u32 v6, s%d, v6" % sT2)
        o.append("s_lshl_b32 s%d, s%d, 12\ns_add_u32 s%d, s%d, %d\nv_lshl_add_u32 v7, v1, 4, s%d\nv_xor_b32 v8, 0x1000, v7" % (sT2, sW4, sT2, sT2, RED, sT2))
        o.append("v_lshrrev_b32 v10, 3, v20\nv_lshl_add_u32 v10, v9, 1, v10")
        o.append("v_lshlrev_b32 v10, 16, v10\nv_and_b32 v27, 7, v20")
        o.append("v_lshl_add_u32 v10, v27, 4, v10")
        if ret: return o
        for x in o: s.A(x)

    def conv_reads(s, jj, st):
        def a(J, h): return "ds_read_b64 %s, v4 offset:%d" % (R(s.cA(st, J) + 2 * h, 2), 512 * J + 64 * jj + 8 * h)
        def b(m): return "ds_read_b128 %s, v5 offset:%d" % (R(s.cB(st, m), 4), 512 * (7 - m) + 64 * jj)
        o = [a(0, 0), a(0, 1)] + [b(m) for m in range(8)]
        for J in range(1, 8): o += [a(J, 0), a(J, 1)]
        return o

    def d_addr(s):
        o = []
        o.append("s_and_b32 s%d, s%d, 1\ns_lshr_b32 s%d, s%d, 1\ns_lshl_b32 s%d, s%d, 11\nv_lshl_add_u32 v11, v1, 4, s%d" % (sT1, sW4, sT0, sW4, sT2, sT1, sT2))
        o.append("v_bfe_u32 v12, v1, 2, 2\nv_lshl_add_u32 v13, v9, 2, v12")
        o.append("v_bfe_u32 v12, v13, 1, 2\nv_lshlrev_b32 v13, 7, v13")
        o.append("v_lshl_add_u32 v12, v12, 5, v13\nv_and_b32 v13, 3, v1")
        o.append("s_lshl_b32 s%d, s%d, 14\nv_lshl_add_u32 v12, v13, 3, v12\nv_add_u32 v32, s%d, v12" % (sT2, sT0, sT2))
        o.append("v_xor_b32 v33, 32, v32\nv_xor_b32 v34, 64, v32")
        o.append("v_xor_b32 v35, 0x60, v32\nv_add_u32 v36, 0x10000, v32")
        o.append("v_add_u32 v37, 0x10000, v33\nv_add_u32 v38, 0x10000, v34")
        o.append("v_add_u32 v39, 0x10000, v35\nv_lshrrev_b32 v40, 1, v9")
        o.append("v_and_b32 v41, 7, v20\nv_xor_b32 v40, v40, v41")
        o.append("v_and_b32 v41, 1, v9\nv_lshlrev_b32 v41, 3, v41")
        o.append("v_lshl_add_u32 v40, v40, 4, v41\nv_lshl_add_u32 v40, v20, 7, v40")
        o.append("s_lshl_b32 s%d, s%d, 12\ns_add_u32 s%d, s%d, %d\nv_add_u32 v40, s%d, v40\nv_xor_b32 v41, 32, v40" % (sT2, sW4, sT2, sT2, RED, sT2))
        o.append("v_xor_b32 v42, 64, v40\nv_xor_b32 v43, 0x60, v40")
        o.append("v_lshlrev_b32 v21, 3, v20\nv_lshlrev_b32 v29, 6, v1")
        o.append("v_cmp_gt_u32 vcc, 14, v1\nv_mov_b32 v12, 0x%x" % OOB)
        o.append("s_lshl_b32 s%d, s%d, 1\ns_add_u32 s%d, s%d, s%d\ns_lshl_b32 s%d, s%d, 8\ns_add_u32 s%d, s%d, 0x%x\n" % (sST, sM2, sST, sST, sT1, sST, sST, sST, sST, WS_ST + 4) +
                 "v_cndmask_b32 v29, v12, v29, vcc")
        o.append("s_lshl_b32 s%d, s%d, 1\ns_add_u32 s%d, s%d, s%d\ns_mul_i32 s%d, s%d, 7" % (sT2, sM2, sT2, sT2, sT0, sT2, sT2))
        o.append("s_lshl_b32 s%d, s%d, 14\ns_add_u32 s%d, s%d, 0x%x\ns_lshl_b32 s%d, s%d, 7\ns_add_u32 s%d, s%d, 0x%x" % (sHB, sT2, sHB, sHB, WS_H, sPH, sT2, sPH, sPH, WS_FH))
        o.append("s_lshl_b32 s%d, s%d, 1\ns_add_u32 s%d, s%d, s%d\ns_lshl_b32 s%d, s%d, 9\ns_add_u32 s%d, s%d, s%d" % (sT2, sSLOT, sT2, sT2, sT0, sFY, sT1, sFY, sFY, sT2))
        o.append("s_lshl_b32 s%d, s%d, 6\ns_add_u32 s%d, s%d, 0x%x\ns_lshl_b32 s%d, s%d, 7" % (sFY, sFY, sFY, sFY, WS_FY, sT2, sT2))
        o.append("s_lshl_b32 s%d, s%d, 20\ns_add_u32 s%d, s%d, s%d\ns_add_u32 s%d, s%d, 0x%x\ns_add_u32 s%d, s%d, 0x80000" % (sT3, sT1, sT2, sT2, sT3, sT2, sT2, WS_Y, sTK, sT2))
        return o

    def tail_addr(s, ret=False):
        o = []
        o.append("s_lshl_b32 s%d, s%d, 10\ns_add_u32 s%d, s%d, %d\nv_lshl_add_u32 v44, v1, 4, s%d" % (sT0, sW8, sT1, sT0, XT, sT1))
        o.append("v_lshrrev_b32 v45, 3, v1\nv_and_b32 v46, 7, v1")
        o.append("v_xor_b32 v47, v45, v46\nv_lshlrev_b32 v45, 7, v45")
        o.append("s_add_u32 s%d, s%d, %d\nv_lshl_add_u32 v45, v47, 4, v45\nv_add_u32 v45, s%d, v45" % (sT1, sT0, RED, sT1))
        o.append("v_lshrrev_b32 v47, 5, v1\nv_lshlrev_b32 v47, 18, v47")
        o.append("v_lshl_add_u32 v46, v46, 4, v47\nv_bfe_u32 v47, v1, 3, 2")
        o.append("v_lshl_add_u32 v46, v47, 10, v46\n" + s.tokbase(sOB, sM2, sT1))
        o.append("s_lshl_b32 s%d, s%d, 4\ns_add_u32 s%d, s%d, s%d\ns_lshl_b32 s%d, s%d, 10\ns_lshl_b32 s%d, s%d, 7\ns_add_u32 s%d, s%d, s%d" % (sT1, sW8, sOB, sOB, sT1, sOB, sOB, sT1, sN2, sOB, sOB, sT1))
        if ret: return o
        for x in o: s.A(x)

    def tail(s):
        A = s.A
        A("L_tail:")
        A("s_waitcnt lgkmcnt(0)")
        if s.o["stamps"]:
            s.nst["m"].append("DEa"); s.nst["h"].append("DEa")
            A("s_memrealtime s[%d:%d]\ns_waitcnt lgkmcnt(0)\nv_writelane_b32 v255, s%d, 62" % (sTS, sTS + 1, sTS))
        A("s_barrier")
        A("ds_read_b128 v[64:67], v44\nds_read_b128 v[68:71], v45\nds_read_b128 v[72:75], v45 offset:8192")
        for t in range(3):
            A("s_waitcnt lgkmcnt(%d)" % (2 - t))
            for d in range(4):
                A("v_lshlrev_b32 v%d, 16, v%d\nv_and_b32 v%d, 0xffff0000, v%d" % (80 + 8 * t + 2 * d, 64 + 4 * t + d, 81 + 8 * t + 2 * d, 64 + 4 * t + d))
        for d in range(4): A("v_pk_add_f32 %s, %s, %s" % (R(88 + 2 * d, 2), R(88 + 2 * d, 2), R(96 + 2 * d, 2)))
        for d in range(4): A("v_pk_add_f32 %s, %s, %s" % (R(80 + 2 * d, 2), R(80 + 2 * d, 2), R(88 + 2 * d, 2)))
        for d in range(4): A("v_cvt_pk_bf16_f32 v%d, v%d, v%d" % (64 + d, 80 + 2 * d, 81 + 2 * d))
        A("buffer_store_dwordx4 v[64:67], v46, %s, s%d offen %s" % (SR(rOUT), sOB, s.o["outsc"]))
        if s.o["stamps"]:
            s.nst["m"].append("end"); s.nst["h"].append("end")
            A("s_memrealtime s[%d:%d]\ns_waitcnt lgkmcnt(0)\nv_writelane_b32 v255, s%d, 63" % (sTS, sTS + 1, sTS))
        s.stamp_out()

    def stats_block(s):
        A = s.A
        XR, WR, SUM, CS8 = 128, 160, 100, 104
        A("L_stats:")
        if s.o["codepf"]:
            A("s_getpc_b64 s[%d:%d]\nL_pc:\ns_sub_u32 s%d, s%d, L_pc-%s_kernel\ns_subb_u32 s%d, s%d, 0" % (sT2, sT3, sT2, sT2, NAME, sT3, sT3))
            A("v_lshlrev_b32 v96, 7, v0\nv_min_u32 v96, L_end-%s_kernel, v96\nv_mov_b32 v97, s%d\nv_add_co_u32 v96, vcc, s%d, v96\ns_nop 1\nv_addc_co_u32 v97, vcc, 0, v97, vcc" % (NAME, sT3, sT2))
            A("global_load_dword v98, v[96:97], off")
        s.srd(rX, sQ, 2 << 20); s.srd(rY, sW1, 512 * 3584)
        A("v_lshrrev_b32 v112, 5, v1\nv_bfe_u32 v113, v1, 3, 2\nv_lshl_add_u32 v112, v112, 8, v113\nv_and_b32 v114, 7, v1")
        A("v_lshlrev_b32 v112, 10, v112\nv_lshl_add_u32 v112, v114, 4, v112")
        A("s_and_b32 s%d, s%d, 3\ns_lshl_b32 s%d, s%d, 2\ns_add_u32 s%d, s%d, s%d" % (sT0, sIDX, sMI, sC, sMI, sMI, sT0))
        if s.o["amap"] == 2:
            A("s_mov_b32 s%d, s%d" % (sFI, sMI))
        else:
            A("s_and_b32 s%d, s%d, 6\ns_lshl_b32 s%d, s%d, 1\ns_add_u32 s%d, s%d, s%d" % (sT1, sC, sT1, sT1, sT0, sT0, sT1))
            A("s_and_b32 s%d, s%d, 1\ns_mul_i32 s%d, s%d, 14\ns_add_u32 s%d, s%d, s%d" % (sT1, sC, sT1, sT1, sFI, sT0, sT1))
            A("s_cmp_lt_u32 s%d, 14\ns_cselect_b32 s%d, s%d, 28" % (sT0, sFI, sFI))
        A(s.tokbase(sT0, sMI, sT1))
        A("s_lshl_b32 s%d, s%d, 4\ns_add_u32 s%d, s%d, s%d\ns_lshl_b32 s%d, s%d, 10" % (sT1, sW8, sT0, sT0, sT1, sT0, sT0))
        for j in range(8): A("buffer_load_dwordx4 %s, v112, %s, s%d offen offset:%d %s" % (R(XR + 4 * j, 4), SR(rX), sT0, 128 * j, s.o["nt_x"]))
        A("v_lshrrev_b32 v113, 3, v1\nv_mul_u32_u24 v115, 3584, v113\nv_lshl_add_u32 v115, v114, 4, v115")
        A("s_mul_i32 s%d, s%d, %d\ns_lshl_b32 s%d, s%d, 7\ns_add_u32 s%d, s%d, s%d" % (sT0, sW8, 64 * 3584, sT1, sFI, sT0, sT0, sT1))
        A("s_cmp_lt_u32 s%d, 28\ns_cselect_b32 s%d, s%d, 0x%x" % (sFI, sT0, sT0, 512 * 3584))
        for j in range(8):
            A("buffer_load_dwordx4 %s, v115, %s, s%d offen" % (R(WR + 4 * j, 4), SR(rY), sT0))
            if j < 7: A("s_add_u32 s%d, s%d, %d" % (sT0, sT0, 8 * 3584))
        lh = s.lab("sh")
        A("s_cmp_lg_u32 s%d, 0\ns_cbranch_scc1 %s\ns_waitcnt vmcnt(16)\ns_branch L_phaseA2\n%s:" % (sROLE, lh, lh))
        A("v_mov_b32 v118, 0")
        A("buffer_load_dwordx2 v[116:117], v118, %s, 0 offen sc1" % SR(rDBG))
        A("L_stats2:")
        for i in range(12): A("v_mov_b32 v%d, 0" % (SUM + i))
        A("s_mov_b32 s%d, 0x3f803f80\ns_mov_b32 s%d, 0x3f80\ns_mov_b32 s%d, 0x3f800000" % (sT0, sT1, sT2))
        for j in range(8):
            A("s_waitcnt vmcnt(%d)" % (16 - j))
            for d in range(4):
                A("v_dot2c_f32_bf16 v%d, s%d, v%d" % (SUM + (d & 1), sT0, XR + 4 * j + d))
                A("v_dot2c_f32_bf16 v%d, v%d, v%d" % (SUM + 2 + (d & 1), XR + 4 * j + d, XR + 4 * j + d))
        for j in range(8):
            A("s_waitcnt vmcnt(%d)" % (8 - j))
            for d in range(4):
                A("v_dot2c_f32_bf16 v%d, s%d, v%d" % (CS8 + 2 * d, sT1, WR + 4 * j + d))
                A("v_dot2c_f32_bf16 v%d, s%d, v%d" % (CS8 + 2 * d + 1, sT2, WR + 4 * j + d))
        SQ = SUM + 1
        A("v_add_f32 v%d, v%d, v%d\nv_add_f32 v%d, v%d, v%d\ns_nop 0" % (SUM, SUM, SUM + 1, SQ, SUM + 2, SUM + 3))
        for e in range(8): A("v_add_f32_dpp v%d, v%d, v%d row_ror:8 row_mask:0xf bank_mask:0xf" % (CS8 + e, CS8 + e, CS8 + e))
        for ctl, prs in (("quad_perm:[1,0,3,2]", ((0, 2), (1, 3))), ("quad_perm:[2,3,0,1]", ((4, 6), (5, 7))), ("row_half_mirror", ())):
            for i in range(2): A("v_add_f32_dpp v%d, v%d, v%d %s row_mask:0xf bank_mask:0xf" % (SUM + i, SUM + i, SUM + i, ctl))
            for a, b in prs: A("v_permlane16_swap_b32 v%d, v%d" % (CS8 + a, CS8 + b))
        for a, b in ((0, 2), (1, 3), (4, 6), (5, 7)): A("v_add_f32 v%d, v%d, v%d" % (CS8 + a, CS8 + a, CS8 + b))
        A("v_mul_f32 v%d, 0x3b000000, v%d\nv_mul_f32 v%d, 0x3b000000, v%d" % (SUM, SUM, SQ, SQ))
        A("v_permlane32_swap_b32 v%d, v%d\nv_permlane32_swap_b32 v%d, v%d" % (CS8, CS8 + 4, CS8 + 1, CS8 + 5))
        A("v_fma_f32 v%d, -v%d, v%d, v%d\nv_max_f32 v%d, 0, v%d" % (SQ, SUM, SUM, SQ, SQ, SQ))
        A("v_add_f32 v%d, v%d, v%d\nv_add_f32 v%d, v%d, v%d" % (CS8, CS8, CS8 + 4, CS8 + 1, CS8 + 1, CS8 + 5))
        A("v_cvt_pk_bf16_f32 v%d, v%d, v%d" % (SUM + 2, SUM, SQ))
        A("v_lshrrev_b32 v115, 4, v1\nv_lshl_add_u32 v115, v114, 2, v115\ns_lshl_b32 s%d, s%d, 8\nv_lshl_add_u32 v115, v115, 3, s%d" % (sT0, sW8, sT0))
        A("v_lshlrev_b32 v%d, 16, v%d\nv_and_b32 v%d, 0xffff0000, v%d" % (SUM, SUM + 2, SQ, SUM + 2))
        A("ds_write_b64 v115, %s offset:1024" % R(CS8, 2))
        A("v_add_f32 v%d, 0x3727c5ac, v%d" % (SQ, SQ))
        A("v_cvt_pk_bf16_f32 v%d, v%d, v%d\nv_lshlrev_b32 v%d, 16, v%d\nv_sqrt_f32 v%d, v%d" % (SQ, SQ, SQ, SQ, SQ, SQ, SQ))
        A("s_lshl_b32 s%d, s%d, 6\nv_lshl_add_u32 v113, v113, 3, s%d" % (sT0, sW8, sT0))
        A("v_cvt_pk_bf16_f32 v%d, v%d, v%d\nv_lshlrev_b32 v%d, 16, v%d\nv_rcp_f32 v%d, v%d\ns_nop 0" % (SQ, SQ, SQ, SQ, SQ, SQ, SQ))
        A("ds_write_b64 v113, %s" % R(SUM, 2))
        A("s_waitcnt lgkmcnt(0)\ns_barrier")
        A("s_cmp_eq_u32 s%d, 0\ns_cbranch_scc1 L_flagA" % sROLE)
        lc, lf = s.lab("sc"), s.lab("sf")
        A("s_cmp_ge_u32 s%d, 6\ns_cbranch_scc1 L_h_back" % sW8)
        A("s_cmp_eq_u32 s%d, 5\ns_cbranch_scc1 %s" % (sW8, lc))
        A("v_lshlrev_b32 v113, 3, v1\nds_read_b64 %s, v113" % R(SUM, 2))
        A("s_lshl_b32 s%d, s%d, 9\ns_add_u32 s%d, s%d, 0x%x\ns_mov_b32 s%d, s%d\ns_waitcnt lgkmcnt(0)" % (sT0, sMI, sT0, sT0, WS_ST, sT2, sMI))
        A("buffer_store_dwordx2 %s, v113, %s, s%d offen sc1\ns_branch %s" % (R(SUM, 2), SR(rWS), sT0, lf))
        A("%s:" % lc)
        A("s_cmp_ge_u32 s%d, 28\ns_cbranch_scc1 L_h_back" % sFI)
        A("v_lshlrev_b32 v113, 2, v1")
        for e in range(8): A("ds_read_b32 v%d, v113 offset:%d" % (CS8 + e, 1024 + 256 * e))
        A("s_lshl_b32 s%d, s%d, 8\ns_add_u32 s%d, s%d, 0x%x\ns_add_u32 s%d, s%d, 32\ns_waitcnt lgkmcnt(0)" % (sT0, sFI, sT0, sT0, WS_CS, sT2, sFI))
        for a, b in ((0, 1), (2, 3), (4, 5), (6, 7), (0, 2), (4, 6), (0, 4)): A("v_add_f32 v%d, v%d, v%d" % (CS8 + a, CS8 + a, CS8 + b))
        A("buffer_store_dword v%d, v113, %s, s%d offen sc1" % (CS8, SR(rWS), sT0))
        A("%s:" % lf)
        A("s_lshl_b32 s%d, s%d, 6\ns_add_u32 s%d, s%d, 0x%x\ns_waitcnt vmcnt(0)" % (sT2, sT2, sT2, sT2, WS_FS))
        s.nonce_wait(116, 118)
        A("buffer_store_dwordx2 v[116:117], v27, %s, s%d offen sc1" % (SR(rWS), sT2))
        s.stamp("h", "sflag")
        A("s_branch L_h_back")

    def helper_waves(s):
        A = s.A
        o = s.o
        nkv = o["nt_kv"]
        s.stamp("h", "start")
        A("s_mov_b32 s%d, 1" % sROLE)
        vm = VM(s)
        A("v_lshrrev_b32 v3, 5, v1\nv_bfe_u32 v4, v1, 3, 2\nv_lshl_add_u32 v3, v3, 8, v4\nv_lshlrev_b32 v3, 10, v3")
        A("v_and_b32 v5, 7, v1\nv_lshrrev_b32 v9, 4, v1\nv_xor_b32 v6, v5, v9\nv_lshl_add_u32 v10, v6, 4, v3\nv_xor_b32 v11, 64, v10")
        A("s_lshr_b32 s%d, s%d, 2\ns_lshl_b32 s%d, s%d, 7\ns_and_b32 s%d, s%d, 3\ns_add_u32 s%d, s%d, s%d" % (sT0, sMI, sT0, sT0, sT1, sMI, sT0, sT0, sT1))
        A("s_lshl_b32 s%d, s%d, 12\ns_lshl_b32 s%d, s%d, 16\ns_add_u32 s%d, s%d, s%d" % (sT0, sT0, sT1, sW4, sXB, sT0, sT1))
        A("v_and_b32 v20, 15, v1\nv_lshlrev_b32 v6, 1, v9\nv_xor_b32 v6, v6, v20\nv_mul_u32_u24 v7, 3584, v9\nv_lshl_add_u32 v12, v6, 4, v7\nv_xor_b32 v13, 0x80, v12")
        A("s_lshl_b32 s%d, s%d, 8\ns_mul_i32 s%d, s%d, %d\ns_add_u32 s%d, s%d, s%d" % (sT0, sFI, sT1, sW4, 16 * 3584, sWB, sT0, sT1))
        A("s_lshl_b32 s%d, s%d, 12" % (sLB, sW4))
        A("s_waitcnt lgkmcnt(0)")
        s.srd(rA, sQ, 2 << 20); s.srd(rB, sW1, 512 * 3584)
        def stage(k):
            slot = k % 3
            A("s_add_u32 m0, s%d, %d" % (sLB, slot * 32768))
            for j in range(4):
                A("s_add_u32 s%d, s%d, %d" % (sT0, sXB, j * (16384 - 1024) + k * 128))
                A("buffer_load_dwordx4 v%d, %s, s%d offen offset:%d %s lds" % (10 + (j & 1), SR(rA), sT0, j * 1024, o["nt_x"])); vm.add("s%d" % k)
            A("s_add_u32 m0, s%d, %d" % (sLB, slot * 32768 + 16384))
            for j in range(4):
                A("s_add_u32 s%d, s%d, %d" % (sT0, sWB, j * (4 * 3584 - 1024) + k * 64 * 3584))
                A("buffer_load_dwordx4 v%d, %s, s%d offen offset:%d lds" % (12 + (j >> 1), SR(rB), sT0, j * 1024)); vm.add("s%d" % k)
        def ifB(fn):
            l = s.lab("nb")
            A("s_cmp_eq_u32 s%d, 0\ns_cbranch_scc1 %s" % (sISB, l))
            fn()
            A("%s:" % l)
        def drain():
            l = s.lab("sd")
            A("s_cmp_lg_u32 s%d, 0\ns_cbranch_scc1 %s\ns_waitcnt vmcnt(0)\n%s:" % (sISB, l, l))
        ifB(lambda: (stage(0), stage(1)))
        s.srd(rWS, sWS, WS_SIZE); s.srd(rDBG, sDBG, 256)
        A("v_min_u32 v27, 1, v1\nv_lshlrev_b32 v27, 31, v27\nv_mov_b32 v26, 0")
        A("v_lshlrev_b32 v25, 6, v1\nv_mov_b32 v3, 0x%x\nv_cmp_gt_u32 vcc, 16, v1\nv_lshlrev_b32 v4, 7, v1\ns_nop 0\nv_cndmask_b32 v21, v3, v4, vcc" % OOB)
        if "x" in o["pref"]:
            if o["amap"] == 2:
                A("s_lshr_b32 s%d, s%d, 1\ns_lshl_b32 s%d, s%d, 6\ns_and_b32 s%d, s%d, 1\ns_add_u32 s%d, s%d, s%d" % (sT3, sC, sT3, sT3, sT2, sC, sT3, sT3, sT2))
                A("s_lshl_b32 s%d, s%d, 1\ns_add_u32 s%d, s%d, s%d\ns_lshl_b32 s%d, s%d, 13" % (sT2, sIDX, sT3, sT3, sT2, sT3, sT3))
            else:
                A("s_lshl_b32 s%d, s%d, 13" % (sT3, sSLOT))
            A("s_lshl_b32 s%d, s%d, 11\ns_add_u32 s%d, s%d, s%d" % (sT2, sW4, sT3, sT3, sT2))
            A("buffer_load_dword v56, v21, %s, s%d offen %s" % (SR(rA), sT3, o["nt_x"])); vm.add("pf")
        if "1" in o["pref"]:
            if o["amap"] == 2:
                A("s_mul_i32 s%d, s2, 7168\ns_lshl_b32 s%d, s%d, 11\ns_add_u32 s%d, s%d, s%d" % (sT3, sT2, sW4, sT3, sT3, sT2))
            else:
                A("s_and_b32 s%d, s%d, 6\ns_lshl_b32 s%d, s%d, 4\ns_add_u32 s%d, s%d, s%d\ns_lshl_b32 s%d, s%d, 2\ns_add_u32 s%d, s%d, s%d" % (sT3, sC, sT3, sT3, sT3, sT3, sIDX, sT3, sT3, sT3, sT3, sW4))
                A("s_lshl_b32 s%d, s%d, 1\ns_and_b32 s%d, s%d, 1\ns_add_u32 s%d, s%d, s%d\ns_mul_i32 s%d, s%d, 1792" % (sT3, sT3, sT2, sC, sT3, sT3, sT2, sT3, sT3))
            A("v_min_u32 v4, 0x680, v4\nv_cndmask_b32 v4, v3, v4, vcc")
            A("buffer_load_dword v57, v4, %s, s%d offen" % (SR(rB), sT3)); vm.add("pf")
        s.srd(rC, sW2, 1792 * 1024); s.srd(rH, sH, 2 << 20); s.srd(rOUT, sOUT, 2 << 20)
        A("v_lshlrev_b32 v14, 4, v1")
        A("v_lshrrev_b32 v3, 1, v1\nv_and_b32 v4, 1, v1\nv_lshlrev_b32 v19, 10, v3\nv_lshl_add_u32 v19, v4, 4, v19")
        A("s_lshl_b32 s%d, s%d, 10\ns_add_u32 s%d, s%d, %d\nv_mul_u32_u24 v4, 4608, v4\nv_lshl_add_u32 v18, v3, 4, v4\nv_add_u32 v18, s%d, v18" % (sT0, sW4, sT0, sT0, RB, sT0))
        A("v_lshrrev_b32 v3, 3, v1\nv_lshlrev_b32 v4, 1, v9\nv_xor_b32 v4, v4, v5\nv_lshlrev_b32 v3, 10, v3\nv_lshl_add_u32 v24, v4, 4, v3")
        A("s_lshl_b32 s%d, s%d, 7\ns_lshl_b32 s%d, s%d, 15\ns_add_u32 s%d, s%d, s%d" % (sT0, sN2, sT1, sW4, sW2B, sT0, sT1))
        A("v_mov_b32 v3, 0x%x\nv_cmp_gt_u32 s[%d:%d], 32, v1\nv_mov_b32 v52, 0\ns_nop 0\nv_cndmask_b32 v22, v3, v25, s[%d:%d]\nv_cndmask_b32 v25, v3, v25, vcc" % (OOB, sT0, sT1, sT0, sT1))
        A("v_mov_b32 v53, 0\nv_mov_b32 v54, 0\nv_mov_b32 v55, 0")
        A("s_cmp_eq_u32 s%d, 0\ns_cbranch_scc1 L_stats" % sISB)
        A("L_h_back:")
        WREG = 120
        QS = {0: 4, 1: 0, 2: 2, 3: 6, 4: 4, 5: 0, 6: 2}
        def w2load(j, kh):
            t = 7 * kh + j
            if j < 3: A("s_add_u32 m0, s%d, %d" % (sLB, (QS[j] + kh) * 16384))
            for q in range(4):
                if j < 3:
                    A("s_add_u32 s%d, s%d, %d" % (sT0, sW2B, q * (8192 - 1024) + t * 131072))
                    A("buffer_load_dwordx4 v24, %s, s%d offen offset:%d lds" % (SR(rC), sT0, q * 1024))
                else:
                    A("s_add_u32 s%d, s%d, %d" % (sT0, sW2B, q * 8192 + t * 131072))
                    A("buffer_load_dwordx4 %s, v24, %s, s%d offen" % (R(WREG + 32 * (j - 3) + 16 * kh + 4 * q, 4), SR(rC), sT0))
                vm.add("w%d_%d" % (j, kh))
        def w2write(j):
            a = 15 if QS[j] < 4 else 16
            for kh in range(2):
                vm.wait("w%d_%d" % (j, kh))
                for q in range(4):
                    A("ds_write_b128 v%d, %s offset:%d" % (a, R(WREG + 32 * (j - 3) + 16 * kh + 4 * q, 4), ((QS[j] & 3) + kh) * 16384 + q * 1024))
        w2q = [(j, kh) for j in range(7) for kh in range(2)]
        def w2next(n, lim):
            for _ in range(n):
                c = [t for t in w2q if t[0] <= lim or t[0] >= 3]
                if not c: break
                w2q.remove(c[0]); w2load(*c[0])
        def h_rows():
            A("s_lshl_b32 s%d, s%d, 13\ns_lshl_b32 s%d, s%d, 11\ns_add_u32 s%d, s%d, s%d" % (sT2, sSLOT, sT1, sW4, sT2, sT2, sT1))
            A("s_lshr_b32 s%d, s%d, 1\ns_mul_i32 s%d, s%d, %d\ns_add_u32 s%d, s%d, s%d\ns_add_u32 m0, s%d, %d" % (sT0, sW4, sT0, sT0, 16640 - 4096, sT0, sT0, sT1, sT0, HC + 32))
            A("v_lshrrev_b32 v3, 1, v20\nv_mul_u32_u24 v3, 4160, v3")
            A("buffer_load_dwordx4 v14, %s, s%d offen %s lds" % (SR(rH), sT2, nkv)); vm.add("H")
            A("buffer_load_dwordx4 v14, %s, s%d offen offset:1024 %s lds" % (SR(rH), sT2, nkv)); vm.add("H")
            A("v_and_b32 v4, 1, v1\nv_lshl_add_u32 v3, v4, 4, v3\nv_add_u32 v3, %d, v3" % HC)
            A("ds_write_b128 v3, v[52:55]")
        def h_copies():
            A("s_lshl_b32 s%d, s%d, 10\ns_add_u32 s%d, s%d, %d\nv_add_u32 v3, s%d, v14" % (sT0, sW4, sT0, sT0, HC + 24, sT0))
            for ch in range(2):
                b = 64 + 24 * ch
                A("ds_read_b64 %s, v3 offset:%d\nds_read_b128 %s, v3 offset:%d" % (R(b, 2), ch * 16640, R(b + 2, 4), ch * 16640 + 8))
            for ch in range(2):
                b = 64 + 24 * ch
                A("s_waitcnt lgkmcnt(%d)" % (2 if ch == 0 else 3))
                for j in range(4): A("v_alignbyte_b32 v%d, v%d, v%d, 2" % (b + 6 + j, b + 2 + j, b + 1 + j))
                for j in range(4): A("v_mov_b32 v%d, v%d" % (b + 10 + j, b + 1 + j))
                for j in range(4): A("v_alignbyte_b32 v%d, v%d, v%d, 2" % (b + 14 + j, b + 1 + j, b + j))
                for q in range(1, 4):
                    A("ds_write_b128 v3, %s offset:%d" % (R(b + 2 + 4 * q, 4), ch * 16640 + q * 4160 + 8))
        hb = o["hb"]
        hc = hb + 2
        vm.wait("s0")
        s.stamp("h", "s0")
        A("s_barrier")
        for k in range(8):
            s.stamp("h", "B%d" % k)
            tags = []
            if k <= 5: ifB(lambda: stage(k + 2))
            if k == hb: h_rows()
            if k == o["w2pf"]:
                if o["dmap"] == 4:
                    A("s_mul_i32 s%d, s2, 7168\ns_lshl_b32 s%d, s%d, 11\ns_add_u32 s%d, s%d, s%d" % (sT0, sT1, sW4, sT0, sT0, sT1))
                    A("buffer_load_dword v56, v21, %s, s%d offen" % (SR(rC), sT0)); vm.add("pf")
                else:
                    A("s_and_b32 s%d, s%d, 6\ns_lshl_b32 s%d, s%d, 4\ns_add_u32 s%d, s%d, s%d\ns_mul_i32 s%d, s%d, 14" % (sT0, sC, sT0, sT0, sT0, sT0, sIDX, sT0, sT0))
                    A("s_lshl_b32 s%d, s%d, 2\ns_add_u32 s%d, s%d, s%d\ns_lshl_b32 s%d, s%d, 1\ns_and_b32 s%d, s%d, 1\ns_add_u32 s%d, s%d, s%d\ns_lshl_b32 s%d, s%d, 9" % (sT1, sW4, sT0, sT0, sT1, sT0, sT0, sT1, sC, sT0, sT0, sT1, sT0, sT0))
                    A("v_and_b32 v3, 0x80000180, v21\nv_and_b32 v4, 0x600, v21\nv_lshl_or_b32 v3, v4, 1, v3")
                    A("buffer_load_dword v56, v3, %s, s%d offen" % (SR(rC), sT0)); vm.add("pf")
            if k == hc - 1: tags.append("H")
            if k == hc: h_copies()
            if k == 4:
                A("buffer_load_dwordx2 v[28:29], v26, %s, 0 offen sc1" % SR(rDBG)); vm.add("non")
                A("v_lshrrev_b32 v3, 5, v1\nv_mul_u32_u24 v3, 4608, v3\nv_and_b32 v4, 31, v1\nv_lshl_add_u32 v3, v4, 4, v3\nv_add_u32 v3, %d, v3" % (RB + 4096))
                A("ds_write_b128 v3, v[52:55]")
            if k == o["pA"]:
                A("s_lshl_b32 s%d, s%d, 2\ns_add_u32 s%d, s%d, s%d\ns_lshl_b32 s%d, s%d, 11\ns_add_u32 s%d, s%d, 0x%x" % (sT0, sC, sT0, sT0, sW4, sT1, sT0, sPH, sT1, WS_FA))
                A("buffer_load_dwordx2 v[30:31], v22, %s, s%d offen sc1" % (SR(rWS), sPH)); vm.add("pA")
                A("s_lshl_b32 s%d, s%d, 16\ns_lshl_b32 s%d, s%d, 5\ns_add_u32 s%d, s%d, s%d\ns_add_u32 s%d, s%d, 0x8000" % (sT0, sT0, sT1, sIDX, sFH, sT0, sT1, sFY, sFH))
            if k == o["pA"] + 1:
                vm.wait("pA")
                s.nonce_wait(28, 26)
                s.spin(30, 22, rWS, sPH, 28, 0xffffffff)
                s.stamp("h", "pollA")
                A("buffer_load_dwordx4 v[44:47], v19, %s, s%d offen sc1" % (SR(rWS), sFH)); vm.add("R")
                A("buffer_load_dwordx4 v[48:51], v19, %s, s%d offen sc1" % (SR(rWS), sFY)); vm.add("R")
            if k == 7:
                w2next(o["w2a"], 1)
                s.stamp("h", "w2a")
                vm.wait("R")
                A("ds_write_b128 v18, v[44:47]\nds_write_b128 v18, v[48:51] offset:512\ns_waitcnt lgkmcnt(0)")
                s.stamp("h", "B8a")
            if k < 7:
                vm.wait("s%d" % (k + 1), *tags, extra=" lgkmcnt(0)")
                if tags: drain()
                s.stamp("h", "B%da" % (k + 1))
            A("s_barrier")
        w2next(14, 2)
        s.stamp("h", "w2_issued")
        A("v_add_u32 v15, s%d, v14\nv_add_u32 v16, 0x10000, v15" % sLB)
        s.tail_addr()
        A("v_mov_b32 v10, v46")
        A("s_lshl_b32 s%d, s%d, 14\ns_sub_u32 s%d, s%d, s%d\ns_lshl_b32 s%d, s%d, 15\ns_add_u32 s%d, s%d, s%d" % (sT0, sW8, sXB, sOB, sT0, sT0, sW4, sXB, sXB, sT0))
        A("s_lshl_b32 s%d, s%d, 5\ns_add_u32 s%d, s%d, %d" % (sT0, sW4, sT0, sT0, XT))
        A("v_lshlrev_b32 v3, 7, v20\nv_add_u32 v3, s%d, v3\nv_lshl_add_u32 v11, v9, 3, v3" % sT0)
        A("v_bfe_u32 v4, v1, 2, 2\nv_lshl_add_u32 v4, v9, 2, v4\nv_lshlrev_b32 v4, 7, v4\nv_and_b32 v6, 3, v1\nv_lshl_add_u32 v4, v6, 3, v4")
        A("s_lshl_b32 s%d, s%d, 11\ns_add_u32 s%d, s%d, %d\nv_add_u32 v13, s%d, v4" % (sT1, sW4, sT1, sT1, YT, sT1))
        A("v_lshlrev_b32 v17, 3, v20")
        A("s_lshl_b32 s%d, s%d, 9\ns_add_u32 s%d, s%d, 0x%x" % (sST, sM2, sST, sST, WS_ST))
        A("s_lshl_b32 s%d, s%d, 2\ns_add_u32 s%d, s%d, s%d\ns_lshr_b32 s%d, s%d, 4\ns_lshl_b32 s%d, s%d, 5" % (sT0, sN2, sT0, sT0, sW4, sT1, sM2, sT1, sT1))
        A("s_add_u32 s%d, s%d, s%d\ns_lshl_b32 s%d, s%d, 10\ns_add_u32 s%d, s%d, 0x%x" % (sT1, sT1, sT0, sT1, sT1, sPH, sT1, WS_FY))
        A("s_lshl_b32 s%d, s%d, 11\ns_lshl_b32 s%d, s%d, 16\ns_add_u32 s%d, s%d, s%d\ns_add_u32 s%d, s%d, 0x%x" % (sT0, sT0, sT1, sM2, sT0, sT0, sT1, sFY, sT0, WS_Y))
        vm.wait("w0_0", "w0_1")
        s.stamp("h", "BC2a")
        A("s_barrier")
        A("s_lshl_b32 s%d, s%d, 11\ns_add_u32 m0, s%d, %d\ns_add_u32 s%d, s%d, %d" % (sT0, sW4, sT0, XT, sT1, sXB, 16384 - 1024))
        A("buffer_load_dwordx4 v10, %s, s%d offen lds" % (SR(rA), sXB)); vm.add("x")
        A("buffer_load_dwordx4 v10, %s, s%d offen offset:1024 lds" % (SR(rA), sT1)); vm.add("x")
        w2write(3)
        vm.wait("w1_0", "w1_1")
        s.stamp("h", "X0a")
        A("s_barrier")
        for i in range(4):
            A("buffer_load_dwordx2 %s, v17, %s, s%d offen offset:%d sc1" % (R(56 + 2 * i, 2), SR(rWS), sST, 128 * i)); vm.add("ms")
        w2write(4)
        vm.wait("w2_0", "w2_1")
        s.stamp("h", "X1a")
        A("s_barrier")
        w2write(5)
        A("s_waitcnt lgkmcnt(15)")
        s.stamp("h", "X2a")
        A("s_barrier")
        A("buffer_load_dwordx2 v[30:31], v25, %s, s%d offen sc1" % (SR(rWS), sPH)); vm.add("pY")
        w2write(6)
        vm.wait("x", extra=" lgkmcnt(0)")
        s.stamp("h", "X3a")
        A("s_barrier")
        XV, YV = 64, 72
        for i in range(4): A("ds_read_b64 %s, v11 offset:%d" % (R(XV + 2 * i, 2), 2048 * i))
        vm.wait("pY")
        s.spin(30, 25, rWS, sPH, 28, 0xffff)
        s.stamp("h", "pollY")
        A("s_lshl_b32 s%d, s%d, 11\ns_add_u32 m0, s%d, %d\ns_nop 0" % (sT0, sW4, sT0, YT))
        A("buffer_load_dwordx4 v14, %s, s%d offen sc1 lds" % (SR(rWS), sFY))
        A("buffer_load_dwordx4 v14, %s, s%d offen offset:1024 sc1 lds" % (SR(rWS), sFY))
        A("s_waitcnt lgkmcnt(0)")
        for i in range(4):
            for u in range(2):
                x = XV + 2 * i + u; t = 80 + 4 * i + 2 * u
                A("v_lshlrev_b32 v%d, 16, v%d\nv_and_b32 v%d, 0xffff0000, v%d" % (t, x, t + 1, x))
            for e in range(4): A("v_sub_f32 v%d, v%d, v%d" % (96 + 4 * i + e, 80 + 4 * i + e, 56 + 2 * i))
            for e in range(4): A("v_mul_f32 v%d, v%d, v%d" % (96 + 4 * i + e, 96 + 4 * i + e, 57 + 2 * i))
        A("s_waitcnt vmcnt(0)")
        s.stamp("h", "y_landed")
        for i in range(4): A("ds_read_b64_tr_b16 %s, v13 offset:%d" % (R(YV + 2 * i, 2), 32 * i))
        for i in range(4):
            A("s_waitcnt lgkmcnt(%d)" % 3)
            for u in range(2):
                y = YV + 2 * i + u; t = 80 + 4 * i + 2 * u
                A("v_lshlrev_b32 v112, 16, v%d\nv_and_b32 v113, 0xffff0000, v%d" % (y, y))
                A("v_fmac_f32 v%d, v%d, v112\nv_fmac_f32 v%d, v%d, v113" % (t, t + 16, t + 1, t + 17))
                A("v_cvt_pk_bf16_f32 v%d, v%d, v%d" % (XV + 2 * i + u, t, t + 1))
            A("ds_write_b64 v11, %s offset:%d" % (R(XV + 2 * i, 2), 2048 * i))


HEAD = open("cdna_kernels/%s.s.ref" % NAME).read()


def render(g):
    head = HEAD[:HEAD.index("; @launch")]
    t = head + "; @launch grid=(256,1,1) block=(512,1,1) lds=%d\n" % LDS_SIZE
    t += '.amdgcn_target "amdgcn-amd-amdhsa--gfx950"\n.text\n.globl %s_kernel\n.p2align 8\n.type %s_kernel,@function\n%s_kernel:\n' % (NAME, NAME, NAME)
    for x in g.L:
        t += (x if x.endswith(":") else "    " + x) + "\n"
    t += HEAD[HEAD.index("s_endpgm"):]
    return t


if __name__ == "__main__":
    out = sys.argv[1] if len(sys.argv) > 1 else "cdna_kernels/%s.s" % NAME
    opts = dict(eval("dict(%s)" % sys.argv[2])) if len(sys.argv) > 2 else {}
    g = Gen(**opts).build()
    open(out, "w").write(render(g))
    print("wrote", out, len(g.L), "lines", g.nst)
```

```python
import sys, re

NAME = "parallel_sum__ssm_conv_h3__dense_activation_relu__prompt"

WS_R = 0
WS_Y = 2 << 20
WS_H = 4 << 20
WS_ST = 12 << 20
WS_FA = 13 << 20
WS_FH = WS_FA + 65536
WS_FY = WS_FA + 2 * 65536
WS_FS = WS_FA + 3 * 65536
WS_NONCE = WS_FA + 4 * 65536
WS_TS = 14 << 20
WS_SIZE = 16 << 20

HC = 98304
RB = 131584
ROUT = RB
NONL = 140800
KV = 143360
XCH = 143360
RED = 147456
XT = 131072
YT = 139264
LDS_SIZE = 163840

sQ, sK, sV, sSK, sH, sD, sW1, sW2, sOUT, sDBG, sWS = 4, 6, 8, 10, 12, 14, 18, 20, 22, 24, 26
rA, rB, rWS, rC, rH, rOUT, rDBG = 28, 32, 36, 40, 44, 48, 52
sN = 52
sW8, sW4, sC, sIDX, sMI, sFI, sM2, sN2 = 56, 57, 58, 59, 60, 61, 62, 63
sT0, sT1, sT2, sT3 = 64, 65, 66, 67
sXB, sWB, sLB, sSLOT = 68, 69, 70, 71
sHB, sW2B, sCNT, sDV = 72, 73, 74, 75
sFH, sPH, sFY, sST = 76, 77, 78, 79
sOB, sY0, sISB, sY1 = 80, 81, 82, 83
P0, P1 = 4, 84
sHS = 84
sTS = 100
OOB = 0x80000000


def R(a, n): return "v[%d:%d]" % (a, a + n - 1)
def SR(a, n=4): return "s[%d:%d]" % (a, a + n - 1)


class VM:
    def __init__(s, g): s.q = []; s.g = g
    def add(s, t, n=1): s.q += [t] * n
    def n(s, *tags):
        last = max(i for i, t in enumerate(s.q) if t in tags)
        n = len(s.q) - 1 - last
        assert n < 64, n
        return n
    def wait(s, *tags, extra=""):
        s.g.A("s_waitcnt vmcnt(%d)%s" % (s.n(*tags), extra))


class Gen:
    def __init__(s, **o):
        s.L = []
        s.o = dict(stamps=False, hflag_at=92, spin=1 << 16, depth=6, nt_kv="nt", outsc="sc1", prio=3, sfirst=1, rot=1, fsp=8,
                   ord="01|r2|3zf|4h|5D|6c|7d|Rw||nwwvv", nreg=2, rchk=8, ysplit=3, barpos=1, sord="H|U", pH="nt", ph="")
        s.o.update(o)
        s.nlab = 0
        s.nst = {}

    def A(s, t):
        for x in t.split("\n"):
            x = x.strip()
            if x: s.L.append(x)

    def lab(s, p):
        s.nlab += 1
        return "L_%s_%d" % (p, s.nlab)

    def srd(s, r, p, size):
        s.A("s_mov_b32 s%d, s%d\ns_mov_b32 s%d, s%d\ns_mov_b32 s%d, 0x%x\ns_mov_b32 s%d, 0x20000" % (r, p, r + 1, p + 1, r + 2, size, r + 3))

    def stamp_s(s, role, name):
        if not s.o["stamps"]: return ""
        if isinstance(s.o["stamps"], (list, tuple, set)) and name not in s.o["stamps"] and name not in ("start", "end"): return ""
        k = s.nst.setdefault(role, [])
        if name not in k: k.append(name)
        if s.o.get("cyc"):
            return "s_memrealtime s[%d:%d]\ns_memtime s[54:55]\ns_waitcnt lgkmcnt(0)\nv_writelane_b32 v255, s%d, %d\nv_writelane_b32 v255, s54, %d" % (sTS, sTS + 1, sTS, k.index(name), 30 + k.index(name))
        return "s_memrealtime s[%d:%d]\ns_waitcnt lgkmcnt(0)\nv_writelane_b32 v255, s%d, %d" % (sTS, sTS + 1, sTS, k.index(name))

    def stamp(s, role, name): s.A(s.stamp_s(role, name))

    def stamp_out(s):
        if not s.o["stamps"]: return
        s.A("s_lshl_b32 s%d, s2, 3\ns_add_u32 s%d, s%d, s%d\ns_lshl_b32 s%d, s%d, 8\ns_add_u32 s%d, s%d, 0x%x" % (sT0, sT0, sT0, sW8, sT0, sT0, sT0, sT0, WS_TS))
        s.A("v_lshlrev_b32 v254, 2, v1\ns_nop 1\nbuffer_store_dword v255, v254, %s, s%d offen" % (SR(rWS), sT0))

    def weave(s, ms, fill, pre=None):
        for i, m in enumerate(ms):
            for f in (pre or {}).get(i, []): s.A(f)
            s.A(m)
            for f in fill.get(i, []): s.A(f)

    def freg(s, i): return (P0 if i < 8 else P1 - 16) + 2 * i

    def poll_issue(s, n, soff):
        A = s.A
        fsp = s.o["fsp"]
        if fsp == 8:
            i = 0
            while i < n:
                w = 8 if n - i >= 8 else (4 if n - i >= 4 else (2 if n - i >= 2 else 1))
                if i: A("s_add_u32 s%d, s%d, %d" % (sT2, soff, 8 * i))
                A("s_load_dwordx%d %s, %s, s%d glc" % (2 * w, SR(s.freg(i), 2 * w), SR(sWS, 2), sT2 if i else soff))
                i += w
        else:
            for i in range(n):
                if i: A("s_add_u32 s%d, s%d, %d" % (sT2, soff, fsp * i))
                A("s_load_dwordx2 %s, %s, s%d glc" % (SR(s.freg(i), 2), SR(sWS, 2), sT2 if i else soff))

    def poll_check(s, n, soff):
        A = s.A
        l0, l1, l2 = s.lab("pl"), s.lab("pr"), s.lab("pd")
        A("s_mov_b32 s%d, 0\n%s:\ns_waitcnt lgkmcnt(0)" % (sT3, l0))
        for i in range(n - 1):
            A("s_cmp_lg_u64 %s, %s\ns_cbranch_scc1 %s" % (SR(s.freg(i), 2), SR(sN, 2), l1))
        A("s_cmp_eq_u64 %s, %s\ns_cbranch_scc1 %s" % (SR(s.freg(n - 1), 2), SR(sN, 2), l2))
        A("%s:\ns_add_u32 s%d, s%d, 1\ns_cmp_gt_u32 s%d, 0x%x\ns_cbranch_scc1 %s" % (l1, sT3, sT3, sT3, s.o["spin"], l2))
        s.poll_issue(n, soff)
        A("s_branch %s\n%s:" % (l0, l2))

    def nonce_issue(s, vm):
        s.srd(P1, sDBG, 256)
        s.A("buffer_load_dwordx2 v[28:29], v52, %s, 0 offen sc1" % SR(P1)); vm.add("non")

    def nonce_check(s, vm):
        A = s.A
        l0, l1 = s.lab("nl"), s.lab("nd")
        vm.wait("non")
        A("s_mov_b32 s%d, 0\n%s:\nv_readfirstlane_b32 s%d, v28\nv_readfirstlane_b32 s%d, v29" % (sT3, l0, sN, sN + 1))
        A("s_add_u32 s%d, s%d, 1\ns_cmp_lg_u32 s%d, 0\ns_cbranch_scc1 %s" % (sT3, sT3, sN, l1))
        A("s_cmp_gt_u32 s%d, 0x%x\ns_cbranch_scc1 %s" % (sT3, s.o["spin"], l1))
        A("buffer_load_dwordx2 v[28:29], v52, %s, 0 offen sc1\ns_waitcnt vmcnt(0)\ns_branch %s\n%s:" % (SR(P1), l0, l1))

    def tokbase(s, dst, m2, t):
        return ("s_lshr_b32 s%d, s%d, 3\ns_lshl_b32 s%d, s%d, 9\ns_bfe_u32 s%d, s%d, 0x20001\ns_lshl_b32 s%d, s%d, 2\ns_add_u32 s%d, s%d, s%d\n" % (dst, m2, dst, dst, t, m2, t, t, dst, dst, t) +
                "s_and_b32 s%d, s%d, 1\ns_lshl_b32 s%d, s%d, 7\ns_add_u32 s%d, s%d, s%d" % (t, m2, t, t, dst, dst, t))

    def flagoff(s, dst, base):
        s.A("s_lshl_b32 s%d, s%d, %d\ns_add_u32 s%d, s%d, 0x%x" % (dst, dst, s.o["fsp"].bit_length() - 1, dst, dst, base))

    def build(s):
        A = s.A
        A("s_cmp_ge_u32 s2, 256\ns_cbranch_scc1 L_end")
        A("s_load_dwordx16 s[4:19], s[0:1], 0\ns_load_dwordx8 s[20:27], s[0:1], 64")
        A("v_lshrrev_b32 v2, 6, v0\nv_and_b32 v1, 63, v0\nv_readfirstlane_b32 s%d, v2" % sW8)
        if s.o["stamps"]: A("v_mov_b32 v255, 0\ns_memtime s[%d:%d]\ns_waitcnt lgkmcnt(0)\nv_writelane_b32 v255, s%d, 60" % (sTS, sTS + 1, sTS))
        A("s_and_b32 s%d, s2, 7\ns_lshr_b32 s%d, s2, 3" % (sC, sIDX))
        if s.o["sfirst"]: A("s_add_u32 s%d, s%d, 28\ns_and_b32 s%d, s%d, 31" % (sIDX, sIDX, sIDX, sIDX))
        A("s_and_b32 s%d, s%d, 3\ns_and_b32 s%d, s%d, 6\ns_lshl_b32 s%d, s%d, 1\ns_add_u32 s%d, s%d, s%d" % (sMI, sIDX, sT0, sC, sT0, sT0, sMI, sMI, sT0))
        A("s_and_b32 s%d, s%d, 1\ns_mul_i32 s%d, s%d, 7\ns_lshr_b32 s%d, s%d, 2\ns_add_u32 s%d, s%d, s%d" % (sT0, sC, sT0, sT0, sFI, sIDX, sFI, sFI, sT0))
        A("s_and_b32 s%d, s%d, 7\ns_and_b32 s%d, s%d, 6\ns_lshl_b32 s%d, s%d, 2\ns_add_u32 s%d, s%d, s%d" % (sM2, sIDX, sT0, sC, sT0, sT0, sM2, sM2, sT0))
        A("s_and_b32 s%d, s%d, 1\ns_lshl_b32 s%d, s%d, 2\ns_lshr_b32 s%d, s%d, 3\ns_add_u32 s%d, s%d, s%d" % (sT0, sC, sT0, sT0, sN2, sIDX, sN2, sN2, sT0))
        A("s_cmp_lt_u32 s%d, 28\ns_cselect_b32 s%d, 1, 0" % (sIDX, sISB))
        A("s_and_b32 s%d, s%d, 3" % (sW4, sW8))
        A("s_lshl_b32 s%d, s%d, 5\ns_add_u32 s%d, s%d, s%d" % (sSLOT, sC, sSLOT, sSLOT, sIDX))
        A("s_cmp_ge_u32 s%d, 4\ns_cbranch_scc1 L_helper" % sW8)
        s.mfma_waves()
        A("L_helper:")
        s.helper_waves()
        s.tail()
        s.spare_m()
        s.spare_h()
        A("L_end:")
        return s

    def mfma_waves(s):
        A = s.A
        o = s.o
        nkv = o["nt_kv"]
        s.stamp("m", "start")
        A("v_lshrrev_b32 v184, 3, v1\nv_and_b32 v191, 7, v1\nv_lshlrev_b32 v184, 10, v184\nv_lshl_add_u32 v184, v191, 4, v184")
        A("s_lshl_b32 s%d, s%d, 16\ns_lshl_b32 s%d, s%d, 14\ns_add_u32 s%d, s%d, s%d" % (sT0, sIDX, sT1, sW4, sT0, sT0, sT1))
        A("s_lshl_b32 s%d, s%d, 7\ns_add_u32 s%d, s%d, s%d" % (sT1, sC, sT0, sT0, sT1))
        A("v_add_u32 v184, s%d, v184\nv_subrev_u32 v185, 0x2000, v184" % sT0)
        A("s_mul_i32 s%d, s%d, 5120\ns_add_u32 s%d, s%d, %d" % (sLB, sW4, sLB, sLB, KV))
        A("s_lshl_b32 s%d, s%d, 9\nv_lshl_add_u32 v186, v1, 3, s%d" % (sT1, sC, sT1))
        A("s_lshl_b32 s%d, s%d, 2" % (sT1, sSLOT))
        if o["prio"]: A("s_setprio %d" % o["prio"])
        A("s_mov_b32 m0, s%d\ns_movk_i32 s%d, 0x1c00" % (sLB, sT2))
        A("s_waitcnt lgkmcnt(0)")
        s.srd(rA, sK, 2 << 20)
        A("buffer_load_dwordx4 v185, %s, 0 offen %s lds" % (SR(rA), nkv))
        A("s_add_u32 m0, s%d, 1024" % sLB)
        s.srd(rB, sV, 2 << 20)
        A("buffer_load_dwordx4 v184, %s, 0 offen %s lds" % (SR(rA), nkv))
        A("buffer_load_dwordx4 v184, %s, s%d offen offset:1024 %s lds" % (SR(rA), sT2, nkv))
        s.srd(rC, sSK, 4096)
        A("buffer_load_dwordx2 v[188:189], v186, %s, 0 offen" % SR(rC))
        A("s_add_u32 m0, s%d, 3072" % sLB)
        A("s_load_dword s%d, s[%d:%d], s%d" % (sDV, sD, sD + 1, sT1))
        A("buffer_load_dwordx4 v184, %s, 0 offen %s lds" % (SR(rB), nkv))
        A("buffer_load_dwordx4 v184, %s, s%d offen offset:1024 %s lds" % (SR(rB), sT2, nkv))
        s.srd(rWS, sWS, WS_SIZE)
        A("v_min_u32 v27, 1, v1\nv_lshlrev_b32 v28, 31, v27\nv_lshlrev_b32 v26, 4, v1")
        ln = s.lab("nonce")
        A("s_xor_b32 s%d, s%d, 3\ns_or_b32 s%d, s2, s%d\ns_cmp_lg_u32 s%d, 0\ns_cbranch_scc1 %s" % (sPH, sW4, sPH, sPH, sPH, ln))
        A("s_mov_b32 s%d, 0x%x\ns_load_dwordx2 s[88:89], s[%d:%d], s%d" % (sW2B, WS_NONCE, sWS, sWS + 1, sW2B))
        A("%s:" % ln)
        s.srd(rOUT, sOUT, 2 << 20)
        A("v_bfe_u32 v8, v1, 2, 2\nv_lshrrev_b32 v9, 4, v1\nv_and_b32 v10, 3, v1\nv_and_b32 v20, 15, v1")
        A("v_lshlrev_b32 v187, 7, v8\nv_lshl_add_u32 v187, v9, 5, v187\nv_lshl_add_u32 v187, v10, 3, v187\nv_add_u32 v187, s%d, v187" % sLB)
        A("s_lshl_b32 s%d, s%d, 1\ns_sub_u32 s%d, 6, s%d\nv_xor_b32 v191, s%d, v191\nv_lshlrev_b32 v190, 7, v1" % (sT0, sW4, sT0, sT0, sT0))
        A("v_lshl_add_u32 v190, v191, 4, v190\nv_add_u32 v190, %d, v190\nv_xor_b32 v191, 16, v190" % ROUT)
        A("s_lshr_b32 s%d, s%d, 1\ns_and_b32 s%d, s%d, 1" % (sT0, sW4, sT1, sW4))
        A("v_lshrrev_b32 v21, 1, v20\nv_xor_b32 v21, v21, v9\nv_lshlrev_b32 v22, 7, v20\nv_lshl_add_u32 v12, v21, 4, v22")
        A("s_lshl_b32 s%d, s%d, 12\nv_add_u32 v12, s%d, v12" % (sT2, sW4, sT2))
        A("v_xor_b32 v13, 0x1000, v12\nv_xor_b32 v14, 64, v12\nv_xor_b32 v15, 64, v13")
        A("v_and_b32 v21, 1, v9\nv_lshl_or_b32 v21, v21, 2, v8")
        A("s_lshl_b32 s%d, s%d, 1\ns_add_u32 s%d, s%d, s%d\ns_lshl_b32 s%d, s%d, 1\nv_xor_b32 v21, s%d, v21" % (sT2, sT1, sT2, sT2, sT0, sT2, sT2, sT2))
        A("v_lshl_add_u32 v22, v9, 3, v8\nv_lshlrev_b32 v22, 8, v22\nv_lshl_add_u32 v22, v10, 3, v22\nv_add_u32 v22, 0x4000, v22")
        for ft in range(4):
            A("v_xor_b32 v23, %d, v21\nv_lshl_add_u32 v%d, v23, 5, v22" % (ft, 16 + ft))
        A("s_lshl_b32 s%d, s%d, 1\ns_add_u32 s%d, s%d, s%d\ns_mul_i32 s%d, s%d, 14\ns_add_u32 s%d, s%d, s%d" % (sT2, sMI, sT2, sT2, sT0, sT3, sT2, sT3, sT3, sFI))
        A("s_lshl_b32 s%d, s%d, 3\ns_mul_i32 s%d, s%d, 6\ns_add_u32 s%d, s%d, s%d\ns_add_u32 s%d, s%d, s%d" % (sT3, sT3, sHS, sT1, sT3, sT3, sHS, sT3, sT3, sT0))
        A("s_lshl_b32 s%d, s%d, 11\ns_add_u32 s%d, s%d, 0x%x" % (sT3, sT3, sHS, sT3, WS_H))
        A("s_xor_b32 s%d, s%d, 0x800\ns_xor_b32 s%d, s%d, 0x2000\ns_xor_b32 s%d, s%d, 0x2800" % (sHS + 1, sHS, sHS + 2, sHS, sHS + 3, sHS))
        A("s_lshl_b32 s%d, s%d, 5\ns_and_b32 s%d, s%d, 28\ns_add_u32 s%d, s%d, s%d" % (sFH, sT2, sT3, sIDX, sFH, sFH, sT3))
        A("s_and_b32 s%d, s%d, 1\ns_lshl_b32 s%d, s%d, 1\ns_add_u32 s%d, s%d, s%d\ns_add_u32 s%d, s%d, s%d" % (sT3, sC, sT3, sT3, sFH, sFH, sT3, sFH, sFH, sT1))
        s.flagoff(sFH, WS_FH)
        ONE, SX, SW, CB, CA_, TM = 192, 196, 200, 204, 212, 220
        A("s_lshl_b32 s%d, s%d, 10\ns_add_u32 s%d, s%d, %d\nv_lshl_add_u32 v21, v1, 2, s%d\nv_xor_b32 v22, 0x400, v21\nv_xor_b32 v23, 0x800, v21" % (sT2, sW4, sT2, sT2, XCH, sT2))
        A("v_mov_b32 v24, 0xbb000000\nv_cmp_gt_u32 vcc, 16, v1\nv_lshrrev_b32 v27, 5, v1\nv_bfe_u32 v30, v1, 1, 1\nv_cndmask_b32 v24, 0, v24, vcc")
        A("v_cmp_eq_u32 vcc, v27, v30\nv_mov_b32 v27, 0x3f803f80\nv_and_b32 v30, 1, v1")
        for i in range(4): A("v_cndmask_b32 v%d, 0, v27, vcc" % (ONE + i))
        A("v_mul_u32_u24 v25, 0xaaaa, v30\nv_add_u32 v25, 0x4444, v25\nv_mov_b32 v29, %d" % NONL)
        for i in range(SX, TM): A("v_mov_b32 v%d, 0" % i)
        ACC = 64
        for i in range(64): A("v_mov_b32 v%d, 0" % (ACC + i))
        s.conv_addr(); s.d_addr(); s.tail_addr()
        A("s_mov_b32 s%d, 0\ns_mov_b32 s%d, 0" % (sCNT, sXB))
        ln = s.lab("nonce")
        A("s_cmp_lg_u32 s%d, 0\ns_cbranch_scc1 %s" % (sPH, ln))
        s.srd(rDBG, sDBG, 256)
        A("s_waitcnt lgkmcnt(0)\ns_add_u32 s88, s88, 0x7f4a7c16\ns_addc_u32 s89, s89, 0x9e3779b9\ns_or_b32 s88, s88, 1")
        A("v_mov_b32 v30, s88\nv_mov_b32 v31, s89")
        A("buffer_store_dwordx2 v[30:31], v28, %s, 0 offen sc1" % SR(rDBG))
        A("buffer_store_dwordx2 v[30:31], v28, %s, s%d offen sc1" % (SR(rWS), sW2B))
        A("%s:" % ln)
        s.stamp("m", "pa_in")
        A("s_waitcnt vmcnt(2)")
        s.stamp("m", "k_landed")
        K, V, T, O, U, P = 128, 138, 146, 152, 168, 128
        for G in range(5): A("ds_read_b64_tr_b16 %s, v187 offset:%d" % (R(K + 2 * G, 2), 512 * (G + 1)))
        A("v_alignbyte_b32 v%d, v189, v189, 2" % (T + 0))
        A("v_alignbyte_b32 v%d, v188, v188, 2" % (T + 1))
        A("v_and_b32 v%d, 0xffff0000, v189" % (T + 2))
        A("s_mov_b32 s%d, 0xffff\nv_bfi_b32 v%d, s%d, v189, v188" % (sT0, T + 3, sT0))
        A("v_and_b32 v%d, 0xffff, v188" % (T + 4))
        A("s_waitcnt lgkmcnt(0)")
        for m in range(8):
            A("v_dot2_f32_bf16 v%d, v%d, v%d, 0" % (O + 2 * m, K + m, T + 2))
            A("v_dot2_f32_bf16 v%d, v%d, v%d, 0" % (O + 2 * m + 1, K + m + 1, T + 0))
        for m in range(8):
            A("v_dot2_f32_bf16 v%d, v%d, v%d, v%d" % (O + 2 * m, K + m + 1, T + 3, O + 2 * m))
            A("v_dot2_f32_bf16 v%d, v%d, v%d, v%d" % (O + 2 * m + 1, K + m + 2, T + 1, O + 2 * m + 1))
        A("s_waitcnt vmcnt(0)")
        for G in range(4): A("ds_read_b64_tr_b16 %s, v187 offset:%d" % (R(V + 2 * G, 2), 3072 + 512 * G))
        for m in range(8):
            A("v_dot2_f32_bf16 v%d, v%d, v%d, v%d" % (O + 2 * m, K + m + 2, T + 4, O + 2 * m))
        A("s_waitcnt lgkmcnt(0)")
        for hf in range(2):
            ms_ = range(4, 8) if hf == 0 else range(0, 4)
            for m in ms_:
                A("v_lshlrev_b32 v%d, 16, v%d\nv_and_b32 v%d, 0xffff0000, v%d" % (U + 2 * m, V + m, U + 2 * m + 1, V + m))
            for m in ms_:
                A("v_pk_mul_f32 %s, %s, %s" % (R(O + 2 * m, 2), R(O + 2 * m, 2), R(U + 2 * m, 2)))
            for d in range(4 * hf, 4 * hf + 4):
                A("v_cvt_pk_bf16_f32 v%d, v%d, v%d" % (P + d, O + 15 - 2 * d, O + 14 - 2 * d))
            A("ds_write_b128 v%d, %s" % (190 + hf, R(P + 4 * hf, 4)))
        A("s_cmp_eq_u32 s%d, 0\ns_waitcnt lgkmcnt(0)" % sISB)
        s.stamp("m", "kv_done")
        A("s_barrier")
        A("s_cbranch_scc1 L_spare_m")
        s.stamp("m", "B0")
        FA = [128, 160]; FB = [144, 176]
        def rd(ks, st):
            r = []
            for t in range(4):
                r.append("ds_read_b64_tr_b16 %s, v%d offset:%d" % (R(FA[st] + 4 * t, 2), 16 + t, ks * 8192))
                r.append("ds_read_b64_tr_b16 %s, v%d offset:%d" % (R(FA[st] + 4 * t + 2, 2), 16 + t, ks * 8192 + 1024))
                r.append("ds_read_b128 %s, v%d offset:%d" % (R(FB[st] + 4 * t, 4), 12 + 2 * ks + (t >> 1), (t & 1) * 2048))
            return r
        def mm(st, i, j):
            a = ACC + 4 * (4 * i + j)
            return "v_mfma_f32_16x16x32_bf16 %s, %s, %s, %s" % (R(a, 4), R(FA[st] + 4 * i, 4), R(FB[st] + 4 * j, 4), R(a, 4))
        def sm(st):
            return ["v_smfmac_f32_16x16x64_bf16 %s, %s, %s, v25" % (R(SX, 4), R(ONE, 4), R(FB[st], 8)),
                    "v_smfmac_f32_16x16x64_bf16 %s, %s, %s, v25" % (R(SW, 4), R(ONE, 4), R(FA[st], 8))]
        def mf(st): return sm(st) + [mm(st, i, j) for i in range(4) for j in range(4)]
        for x in rd(0, 0): A(x)
        A("L_g1:")
        A("s_waitcnt lgkmcnt(0)")
        r = rd(1, 1)
        fill = {i: [r[i]] for i in range(12)}
        fill[0].append("s_cmp_eq_u32 s%d, 2" % sXB); fill[1].append("s_cselect_b32 s%d, -2, 1" % sT1)
        fill[2].append("s_add_u32 s%d, s%d, s%d" % (sXB, sXB, sT1)); fill[3].append("s_lshl_b32 s%d, s%d, 15" % (sT1, sT1))
        fill[4].append("s_add_u32 s%d, s%d, 1" % (sCNT, sCNT)); fill[5].append("s_cmp_eq_u32 s%d, 8" % sCNT)
        for q in range(4): fill[12 + q] = ["v_add_u32 v%d, s%d, v%d\nv_add_u32 v%d, s%d, v%d" % (12 + 2 * q, sT1, 12 + 2 * q, 13 + 2 * q, sT1, 13 + 2 * q)]
        s.weave(mf(0), fill)
        A("s_waitcnt lgkmcnt(0)")
        A("s_cbranch_scc1 L_g1_last")
        r = rd(0, 0)
        bp = o["barpos"]
        fill = {bp + i: [r[i]] for i in range(12)}
        s.weave(mf(1), fill, {bp: ["s_barrier"]})
        A("s_branch L_g1")
        A("L_g1_last:")
        order = [(2 * pp + ii, j) for pp in range(2) for j in range(4) for ii in range(2)]
        ms = sm(1) + [mm(1, i, j) for i, j in order]
        cr = s.conv_reads(0, 0)
        cra = [x for x in cr if "v4 " in x]; crb = [x for x in cr if "v5 " in x]
        a0, a1, b0, b1, t_, u0, u1 = range(TM, TM + 7)
        fill = {0: ["ds_read_b64 v[2:3], v29", cra[0]], 1: cra[1:3], 2: cra[3:5], 3: cra[5:7],
                4: ["v_add_f32 v%d, v%d, v%d" % (a0, SX, SX + 1), "v_add_f32 v%d, v%d, v%d" % (a1, SX + 2, SX + 3)],
                5: ["v_mul_f32 v%d, v24, v%d" % (a0, a0), "v_mul_f32 v%d, v24, v%d" % (a1, a1)],
                6: ["v_add_f32 v%d, v%d, v%d" % (b0, SW, SW + 1), "v_add_f32 v%d, v%d, v%d" % (b1, SW + 2, SW + 3)],
                7: ["v_cvt_pk_bf16_f32 v%d, v%d, v%d" % (CB, a0, a0), "v_cvt_pk_bf16_f32 v%d, v%d, v%d" % (CB + 2, a1, a1)],
                8: ["v_cvt_pk_bf16_f32 v%d, v%d, v%d" % (t_, b0, b1), "ds_write2st64_b32 v21, v%d, v%d offset0:0 offset1:1" % (CB, CB + 2)],
                9: ["v_lshlrev_b32 v%d, 16, v%d" % (u0, t_), "v_and_b32 v%d, 0xffff0000, v%d" % (u1, t_)],
                10: ["v_sub_f32 v%d, v%d, v%d" % (u0, b0, u0), "v_sub_f32 v%d, v%d, v%d" % (u1, b1, u1)],
                11: ["v_cvt_pk_bf16_f32 v%d, v%d, v%d" % (CA_, b0, u0), "v_cvt_pk_bf16_f32 v%d, v%d, v%d" % (CA_ + 2, b1, u1)],
                12: ["ds_write2st64_b32 v21, v%d, v%d offset0:2 offset1:3" % (CA_, CA_ + 2), cra[7]],
                13: cra[8:10], 14: cra[10:12],
                16: ["s_waitcnt lgkmcnt(0)", s.stamp_s("m", "B8a"), "s_barrier", s.stamp_s("m", "B8")],
                17: ["ds_read_b32 v%d, v22" % (CB + 4), "ds_read_b32 v%d, v22 offset:256" % (CB + 6)]}
        s.weave(ms, fill)
        s.stamp("m", "g1_done")
        HP = 48
        def cm(n, ii):
            pp, j = n >> 2, n & 3
            i = 2 * pp + ii
            a = ACC + 4 * (4 * i + j)
            return "v_mfma_f32_16x16x16bf16_1k %s, %s, %s, %s" % (R(a, 4), R(CA_ + 2 * i, 2), R(CB + 2 * j, 2), R(a, 4))
        A(cm(0, 0)); A("ds_read_b32 v%d, v23 offset:512\nds_read_b32 v%d, v23 offset:768" % (CA_ + 4, CA_ + 6))
        A(cm(0, 1)); A(cra[12]); A(cra[13])
        A(cm(1, 0)); A(cra[14]); A(cra[15])
        A(cm(1, 1)); A("s_waitcnt lgkmcnt(4)")
        rest = []
        rchk = o["rchk"]
        def rcheck():
            l0, l1 = s.lab("rl"), s.lab("rd")
            A("s_mov_b32 s%d, 0\n%s:\ns_waitcnt lgkmcnt(0)\nv_readfirstlane_b32 s%d, v27" % (sT3, l0, sT0))
            A("s_add_u32 s%d, s%d, 1\ns_cmp_ge_u32 s%d, 4\ns_cbranch_scc1 %s" % (sT3, sT3, sT0, l1))
            A("s_cmp_gt_u32 s%d, 0x%x\ns_cbranch_scc1 %s\nds_read_b32 v27, v29 offset:8\ns_branch %s\n%s:" % (sT3, 16 * o["spin"], l1, l0, l1))
            s.stamp("m", "rchk")
        s.rcheck = rcheck
        for n in range(8):
            pp, j = n >> 2, n & 3
            hp = HP + 4 * (n & 3)
            if n == rchk: rcheck(); rest = list(crb)
            if n == rchk - 1: A("ds_read_b32 v27, v29 offset:8")
            v = []
            for ii in range(2):
                a = ACC + 4 * (4 * (2 * pp + ii) + j)
                for u in range(2): v.append("v_cvt_pk_bf16_f32 v%d, v%d, v%d" % (hp + 2 * ii + u, a + 2 * u, a + 2 * u + 1))
            for d in range(4): v.append("v_pk_max_i16 v%d, v%d, 0" % (hp + d, hp + d))
            if n + 2 < 8:
                v.insert(0, cm(n + 2, 0)); v.insert(5, cm(n + 2, 1))
            for x in v: A(x)
            A("buffer_store_dwordx4 %s, v26, %s, s%d offen offset:%d sc1" % (R(hp, 4), SR(rWS), sHS + 2 * (j >> 1) + pp, (j & 1) * 1024))
            k = -(-len(rest) // (8 - n))
            for x in rest[:k]: A(x)
            rest = rest[k:]
        s.stamp("m", "h_stored")
        if rchk == 8:
            A("L_m_rchk:")
            rcheck()
            for x in crb: A(x)
        A("L_m_conv:")
        s.stamp("m", "conv0")
        CA = 64
        cnt = 0
        for jj in range(4):
            st = jj & 1
            ms = []
            for J in range(8):
                for ct in range(J, 8):
                    a = CA + 4 * ct
                    c = "0" if (jj == 0 and J == 0) else R(a, 4)
                    ms.append("v_mfma_f32_16x16x32_bf16 %s, %s, %s, %s" % (R(a, 4), R(s.cA(st, J), 4), R(s.cB(st, ct - J), 4), c))
            pre = {}
            if jj == 0:
                for m in range(8): pre[m] = ["s_waitcnt lgkmcnt(%d)" % (7 - m)]
            else: A("s_waitcnt lgkmcnt(0)")
            fill = {}
            if jj < 3:
                r = s.conv_reads(jj + 1, 1 - st)
                for i, x in enumerate(r): fill[i + (8 if jj == 0 else 0)] = [x]
            else:
                for e in range(4): fill[e] = ["ds_read_b64 %s, v6 offset:%d" % (R(128 + 2 * e, 2), 512 * (3 - e))]
                fill[12] = ["s_waitcnt lgkmcnt(0)"]
                for e in range(4):
                    k = 128 + 2 * e; u = 136 + 4 * e
                    fill[13 + 2 * e] = ["v_and_b32 v%d, 0xffff0000, v%d\nv_lshlrev_b32 v%d, 16, v%d" % (u, k + 1, u + 1, k + 1)]
                    fill[14 + 2 * e] = ["v_and_b32 v%d, 0xffff0000, v%d\nv_lshlrev_b32 v%d, 16, v%d" % (u + 2, k, u + 3, k)]
                fill[22] = ["s_bitcmp1_b32 s%d, 1\ns_cselect_b32 s%d, 0, 16" % (sW4, sT0)]
                fill[23] = ["s_lshl_b32 s%d, s%d, s%d\ns_and_b32 s%d, s%d, 0xffff0000" % (sT0, sDV, sT0, sDV, sT0)]
                fill[24] = ["s_bitcmp1_b32 s%d, 0" % sW4]
            for i in range(36):
                if cnt + i == o["hflag_at"]:
                    assert jj < 3 or i < 22
                    l = s.lab("hf")
                    fill.setdefault(i, []).append("s_cmp_eq_u32 s%d, 0\ns_cbranch_scc1 %s\ns_waitcnt vmcnt(0)\n" % (sISB, l) +
                                                  "buffer_store_dwordx2 v[2:3], v28, %s, s%d offen sc1\n" % (SR(rWS), sFH) + s.stamp_s("m", "hflag") + "\n%s:" % l)
            cnt += 36
            s.weave(ms, fill, pre)
        s.stamp("m", "conv_done")
        A("s_cbranch_scc1 L_cx1")
        for i in range(9): A("v_fmac_f32 v%d, s%d, v%d" % (CA + i, sDV, 136 + i))
        for q in range(4): A("ds_write_b128 v7, %s offset:%d" % (R(CA + 16 + 4 * q, 4), 1024 * q))
        for i in range(9, 16): A("v_fmac_f32 v%d, s%d, v%d" % (CA + i, sDV, 136 + i))
        A("s_branch L_cx2")
        A("L_cx1:")
        for q in range(4): A("ds_write_b128 v7, %s offset:%d" % (R(CA + 4 * q, 4), 1024 * q))
        A("s_nop 1")
        for i in range(16): A("v_fma_f32 v%d, s%d, v%d, v%d" % (CA + i, sDV, 136 + i, CA + 16 + i))
        A("L_cx2:")
        A("s_waitcnt lgkmcnt(0)")
        s.stamp("m", "BC2a")
        A("s_barrier")
        s.stamp("m", "BC2")
        vm = VM(s)
        DA, WF, HR = 64, 96, 152
        dp = o["depth"]; NB = dp + 1
        assert HR + 8 * NB <= 255 and dp + 2 <= 11
        def wrd(stp):
            j, ks = stp >> 2, stp & 3
            hi = j in (0, 3, 4)
            off = (32768 if j in (2, 3, 6) else 0) + ks * 4096
            r = []
            for i in range(4):
                for hh in range(2):
                    r.append("ds_read_b64_tr_b16 %s, v%d offset:%d" % (R(WF + 16 * (stp & 1) + 4 * i + 2 * hh, 2), (36 if hi else 32) + i, off + hh * 2048))
            return r
        def hld(stp):
            b = HR + 8 * (stp % NB)
            r = ["buffer_load_dwordx4 %s, v26, %s, s%d offen offset:%d sc1" % (R(b + 4 * t, 4), SR(rWS), sHB, (stp & 1) * 2048 + t * 1024) for t in range(2)]
            if stp & 1 and stp < 27: r.append("s_add_u32 s%d, s%d, %d" % (sHB, sHB, 12288 if stp & 2 else 4096))
            return r
        ysp = o["ysplit"]
        for e in range(4): A("ds_read_b128 %s, v8 offset:%d" % (R(CA + 16 + 4 * e, 4), 1024 * e))
        for stp in range(ysp):
            for x in hld(stp): A(x)
            vm.add("h%d" % stp, 2)
        for pp in range(2):
            A("s_waitcnt lgkmcnt(%d)" % (2 - 2 * pp))
            for i in range(4):
                a = CA + 8 * pp + 2 * i
                A("v_pk_add_f32 %s, %s, %s" % (R(a, 2), R(a, 2), R(a + 16, 2)))
            for i in range(4):
                a = CA + 8 * pp + 2 * i
                A("v_cvt_pk_bf16_f32 v%d, v%d, v%d" % (HP + 4 * pp + i, a, a + 1))
            A("buffer_store_dwordx4 %s, v10, %s, s%d offen sc1" % (R(HP + 4 * pp, 4), SR(rWS), sY1 if pp else sY0)); vm.add("y")
        s.stamp("m", "y_stored")
        for x in wrd(0): A(x)
        for stp in range(ysp, dp):
            for x in hld(stp): A(x)
            vm.add("h%d" % stp, 2)
        lx = 3 if o["nreg"] == 4 else 4
        bars = (0, 1, 2, lx)
        prevbar = False
        for stp in range(28):
            j, ks = stp >> 2, stp & 3
            bar = ks == 3 and j in bars
            ms = []
            for i in range(4):
                for tj in range(2):
                    a = DA + 4 * (2 * i + tj)
                    c = "0" if stp == 0 else R(a, 4)
                    ms.append("v_mfma_f32_16x16x32_bf16 %s, %s, %s, %s" % (R(a, 4), R(WF + 16 * (stp & 1) + 4 * i, 4), R(HR + 8 * (stp % NB) + 4 * tj, 4), c))
            pre, fill = {}, {}
            nxt = wrd(stp + 1) if stp < 27 else []
            pre[0] = ["s_waitcnt vmcnt(%d) lgkmcnt(4)" % vm.n("h%d" % stp)]
            if stp == 0: pre[0].append(s.stamp_s("m", "h0"))
            if bar:
                pre[2] = ["s_waitcnt lgkmcnt(0)\n" + s.stamp_s("m", "X%da" % j) + "\ns_barrier\n" + s.stamp_s("m", "X%d" % j)]
                for q, g_ in enumerate((2, 2, 3, 3, 4, 5, 6, 7)): fill.setdefault(g_, []).append(nxt[q])
                lp = (0, 5, 7)
            elif nxt:
                for q in range(8): fill[q] = [nxt[q]]
                pre[4] = ["s_waitcnt lgkmcnt(4)"]
                lp = (1, 5, 6)
            else:
                pre[4] = ["s_waitcnt lgkmcnt(0)"]
            if stp == ysp:
                fill.setdefault(2 if not bar else 1, []).append("buffer_store_dwordx2 v[2:3], v28, %s, s%d offen sc1" % (SR(rWS), sFY))
                yf = True
            else: yf = False
            if stp + dp < 28:
                l = hld(stp + dp)
                for q, x in enumerate(l): fill.setdefault(lp[q], []).append(x)
                vm.add("h%d" % (stp + dp))
                if yf: vm.add("fy")
                vm.add("h%d" % (stp + dp))
            elif stp + dp == 28:
                fill.setdefault(1, []).append("buffer_load_dword v47, v47, %s, s%d offen sc1" % (SR(rWS), sST)); vm.add("rs")
            s.weave(ms, fill, pre)
        s.stamp("m", "g2_done")
        for i in range(4):
            for tj in range(2):
                a = DA + 4 * (2 * i + tj)
                p = WF + 2 * (2 * i + tj)
                for u in range(2):
                    A("v_cvt_pk_bf16_f32 v%d, v%d, v%d" % (p + u, a + 2 * u, a + 2 * u + 1))
                A("ds_write_b64 v%d, %s offset:%d" % (40 + i, R(p, 2), tj * 2048))
        A("s_branch L_tail")

    def cA(s, st, J): return (128 + 4 * J) if st == 0 else (192 + 4 * J)
    def cB(s, st, m): return (160 + 4 * m) if st == 0 else (96 + 4 * m)

    def conv_addr(s):
        A = s.A
        A("v_and_b32 v27, 3, v20\nv_sub_u32 v27, 3, v27\nv_mul_u32_u24 v27, 4160, v27")
        A("v_lshrrev_b32 v4, 2, v20\nv_lshl_add_u32 v4, v4, 3, v27\nv_lshl_add_u32 v4, v9, 4, v4")
        A("s_lshr_b32 s%d, s%d, 1\ns_and_b32 s%d, s%d, 1\n" % (sT0, sW4, sT1, sW4) +
          "s_mul_i32 s%d, s%d, 16640\ns_lshl_b32 s%d, s%d, 8\ns_add_u32 s%d, s%d, s%d\ns_add_u32 s%d, s%d, %d\n" % (sT2, sT0, sT3, sT1, sT2, sT2, sT3, sT2, sT2, HC + 8) +
          "v_add_u32 v4, s%d, v4" % sT2)
        A("s_mul_i32 s%d, s%d, 4608\ns_add_u32 s%d, s%d, s%d\ns_add_u32 s%d, s%d, %d\n" % (sT2, sT0, sT3, sT3, sT2, sT3, sT3, RB + 4064 - 3584) +
          "v_lshlrev_b32 v27, 5, v20\nv_lshlrev_b32 v5, 4, v9")
        A("v_sub_u32 v5, v5, v27\nv_add_u32 v5, s%d, v5" % sT3)
        A("s_lshl_b32 s%d, s%d, 11\ns_sub_u32 s%d, s%d, s%d\ns_add_u32 s%d, s%d, %d\n" % (sT3, sT1, sT2, sT2, sT3, sT2, sT2, RB + 4088 - 1536) +
          "v_lshl_add_u32 v6, v9, 3, v27\nv_sub_u32 v6, s%d, v6" % sT2)
        A("s_lshl_b32 s%d, s%d, 12\ns_add_u32 s%d, s%d, %d\nv_lshl_add_u32 v7, v1, 4, s%d\nv_xor_b32 v8, 0x1000, v7" % (sT2, sW4, sT2, sT2, RED, sT2))
        A("v_lshrrev_b32 v10, 3, v20\nv_lshl_add_u32 v10, v9, 1, v10")
        A("v_lshlrev_b32 v10, 16, v10\nv_and_b32 v27, 7, v20")
        A("v_lshl_add_u32 v10, v27, 4, v10")

    def conv_reads(s, jj, st):
        def a(J, h): return "ds_read_b64 %s, v4 offset:%d" % (R(s.cA(st, J) + 2 * h, 2), 512 * J + 64 * jj + 8 * h)
        def b(m): return "ds_read_b128 %s, v5 offset:%d" % (R(s.cB(st, m), 4), 512 * (7 - m) + 64 * jj)
        o = [a(0, 0), a(0, 1)] + [b(m) for m in range(8)]
        for J in range(1, 8): o += [a(J, 0), a(J, 1)]
        return o

    def d_addr(s):
        A = s.A
        A("s_and_b32 s%d, s%d, 1\ns_lshr_b32 s%d, s%d, 1" % (sT1, sW4, sT0, sW4))
        A("v_bfe_u32 v27, v1, 2, 2\nv_lshl_add_u32 v30, v9, 2, v27")
        A("v_bfe_u32 v27, v30, 1, 2\nv_lshlrev_b32 v30, 7, v30")
        A("v_lshl_add_u32 v27, v27, 5, v30\nv_and_b32 v30, 3, v1")
        A("s_lshl_b32 s%d, s%d, 14\nv_lshl_add_u32 v27, v30, 3, v27\nv_add_u32 v32, s%d, v27" % (sT2, sT0, sT2))
        A("v_xor_b32 v33, 32, v32\nv_xor_b32 v34, 64, v32\nv_xor_b32 v35, 0x60, v32")
        for i in range(4): A("v_add_u32 v%d, 0x10000, v%d" % (36 + i, 32 + i))
        A("v_lshrrev_b32 v40, 1, v9\nv_and_b32 v41, 7, v20\nv_xor_b32 v40, v40, v41")
        A("v_and_b32 v41, 1, v9\nv_lshlrev_b32 v41, 3, v41")
        A("v_lshl_add_u32 v40, v40, 4, v41\nv_lshl_add_u32 v40, v20, 7, v40")
        A("s_lshl_b32 s%d, s%d, 12\ns_add_u32 s%d, s%d, %d\nv_add_u32 v40, s%d, v40\nv_xor_b32 v41, 32, v40" % (sT2, sW4, sT2, sT2, RED, sT2))
        A("v_xor_b32 v42, 64, v40\nv_xor_b32 v43, 0x60, v40")
        A("s_lshl_b32 s%d, s%d, 1\ns_add_u32 s%d, s%d, s%d\ns_mul_i32 s%d, s%d, 14\ns_add_u32 s%d, s%d, s%d" % (sT2, sM2, sT2, sT2, sT0, sT2, sT2, sT2, sT2, sT1))
        A("s_lshl_b32 s%d, s%d, 13\ns_add_u32 s%d, s%d, 0x%x" % (sHB, sT2, sHB, sHB, WS_H))
        A("s_lshl_b32 s%d, s%d, 1\ns_add_u32 s%d, s%d, s%d\ns_lshl_b32 s%d, s%d, 9\ns_add_u32 s%d, s%d, s%d" % (sT2, sSLOT, sT2, sT2, sT0, sFY, sT1, sFY, sFY, sT2))
        s.flagoff(sFY, WS_FY)
        A("s_lshl_b32 s%d, s%d, 7\ns_lshl_b32 s%d, s%d, 20\ns_add_u32 s%d, s%d, s%d\ns_add_u32 s%d, s%d, 0x%x\ns_add_u32 s%d, s%d, 0x80000" % (sT2, sT2, sT3, sT1, sT2, sT2, sT3, sY0, sT2, WS_Y, sY1, sY0))

    def tail_addr(s):
        A = s.A
        A("s_lshl_b32 s%d, s%d, 10\ns_add_u32 s%d, s%d, %d\nv_lshl_add_u32 v44, v1, 4, s%d" % (sT0, sW8, sT1, sT0, XT, sT1))
        A("v_lshrrev_b32 v45, 3, v1\nv_and_b32 v46, 7, v1")
        A("v_xor_b32 v47, v45, v46\nv_lshlrev_b32 v45, 7, v45")
        A("s_add_u32 s%d, s%d, %d\nv_lshl_add_u32 v45, v47, 4, v45\nv_add_u32 v45, s%d, v45" % (sT1, sT0, RED, sT1))
        A("v_lshrrev_b32 v47, 5, v1\nv_lshlrev_b32 v47, 18, v47")
        A("v_lshl_add_u32 v46, v46, 4, v47\nv_bfe_u32 v47, v1, 3, 2")
        A("v_lshl_add_u32 v46, v47, 10, v46\n" + s.tokbase(sOB, sM2, sT1))
        A("s_lshl_b32 s%d, s%d, 4\ns_add_u32 s%d, s%d, s%d\ns_lshl_b32 s%d, s%d, 10\ns_lshl_b32 s%d, s%d, 7\ns_add_u32 s%d, s%d, s%d" % (sT1, sW8, sOB, sOB, sT1, sOB, sOB, sT1, sN2, sOB, sOB, sT1))
        A("s_lshl_b32 s%d, s%d, 6\ns_add_u32 s%d, s%d, 4\nv_and_b32 v47, 0x38, v1\nv_add_u32 v47, s%d, v47" % (sT1, sW8, sT1, sT1, sT1))
        A("s_lshl_b32 s%d, s%d, 9\ns_add_u32 s%d, s%d, 0x%x" % (sST, sM2, sST, sST, WS_ST))

    def tail(s):
        A = s.A
        A("L_tail:")
        A("s_waitcnt vmcnt(0) lgkmcnt(0)")
        if s.o["stamps"]:
            s.nst["m"].append("DEa"); s.nst["h"].append("DEa")
            A("s_memrealtime s[%d:%d]\ns_waitcnt lgkmcnt(0)\nv_writelane_b32 v255, s%d, 62" % (sTS, sTS + 1, sTS))
        A("s_barrier")
        A("ds_read_b128 v[68:71], v45\nds_read_b128 v[72:75], v45 offset:8192\nds_read_b128 v[64:67], v44")
        for t in (1, 2, 0):
            A("s_waitcnt lgkmcnt(%d)" % ((3 - t) % 3))
            for d in range(4):
                A("v_lshlrev_b32 v%d, 16, v%d\nv_and_b32 v%d, 0xffff0000, v%d" % (80 + 8 * t + 2 * d, 64 + 4 * t + d, 81 + 8 * t + 2 * d, 64 + 4 * t + d))
            if t == 2:
                for d in range(4): A("v_pk_add_f32 %s, %s, %s" % (R(88 + 2 * d, 2), R(88 + 2 * d, 2), R(96 + 2 * d, 2)))
        for d in range(4): A("v_pk_fma_f32 %s, %s, v[46:47], %s op_sel:[0,1,0] op_sel_hi:[1,1,1]" % (R(80 + 2 * d, 2), R(88 + 2 * d, 2), R(80 + 2 * d, 2)))
        for d in range(4): A("v_cvt_pk_bf16_f32 v%d, v%d, v%d" % (64 + d, 80 + 2 * d, 81 + 2 * d))
        A("buffer_store_dwordx4 v[64:67], v46, %s, s%d offen %s" % (SR(rOUT), sOB, s.o["outsc"]))
        if s.o["stamps"]:
            s.nst["m"].append("end"); s.nst["h"].append("end")
            A("s_memrealtime s[%d:%d]\ns_waitcnt lgkmcnt(0)\nv_writelane_b32 v255, s%d, 63" % (sTS, sTS + 1, sTS))
            A("s_memtime s[%d:%d]\ns_waitcnt lgkmcnt(0)\nv_writelane_b32 v255, s%d, 61" % (sTS, sTS + 1, sTS))
        s.stamp_out()
        A("s_endpgm")

    def spare_m(s):
        A = s.A
        o = s.o
        A("L_spare_m:")
        A("s_setprio 0")
        s.srd(rA, sH, 2 << 20); s.srd(rB, sW2, 1792 * 1024)
        A("v_lshlrev_b32 v128, 7, v1\nv_lshrrev_b32 v129, 2, v1\nv_and_b32 v130, 3, v1\nv_lshlrev_b32 v129, 10, v129\nv_lshl_add_u32 v129, v130, 7, v129")
        def item(ch):
            if ch == "H":
                A("s_and_b32 s%d, s%d, 3\ns_lshl_b32 s%d, s%d, 2\ns_add_u32 s%d, s%d, s%d\ns_lshl_b32 s%d, s%d, 2\ns_add_u32 s%d, s%d, s%d" % (sT0, sIDX, sT1, sC, sT0, sT0, sT1, sT0, sT0, sT0, sT0, sW4))
                A("s_lshl_b32 s%d, s%d, 14\ns_add_u32 s%d, s%d, 8192" % (sT0, sT0, sT1, sT0))
                A("buffer_load_dword v132, v128, %s, s%d offen %s\nbuffer_load_dword v133, v128, %s, s%d offen %s" % (SR(rA), sT0, o["pH"], SR(rA), sT1, o["pH"]))
            elif ch == "U":
                A("s_and_b32 s%d, s%d, 3\ns_and_b32 s%d, s%d, 6\ns_lshl_b32 s%d, s%d, 1\ns_add_u32 s%d, s%d, s%d\ns_lshl_b32 s%d, s%d, 2\ns_add_u32 s%d, s%d, s%d" % (sT0, sIDX, sT1, sC, sT1, sT1, sT0, sT0, sT1, sT0, sT0, sT0, sT0, sW4))
                A("s_mul_i32 s%d, s%d, 56\ns_and_b32 s%d, s%d, 1\ns_add_u32 s%d, s%d, s%d\ns_lshl_b32 s%d, s%d, 9\ns_add_u32 s%d, s%d, 12288" % (sT0, sT0, sT1, sC, sT0, sT0, sT1, sT0, sT0, sT1, sT0))
                A("buffer_load_dword v134, v129, %s, s%d offen\nbuffer_load_dword v135, v129, %s, s%d offen" % (SR(rB), sT0, SR(rB), sT1))
        a, b = o["sord"].split("|")
        for ch in a: item(ch)
        s.stamp("m", "S1a")
        A("s_barrier")
        for ch in b: item(ch)
        s.stamp("m", "S2a")
        A("s_barrier")
        if o["prio"]: A("s_setprio %d" % o["prio"])
        A("s_waitcnt vmcnt(0)")
        cr = s.conv_reads(0, 0)
        A("ds_read_b64 v[2:3], v29")
        for x in cr:
            if "v4 " in x: A(x)
        A("ds_read_b32 v27, v29 offset:8")
        if o["rchk"] == 8: A("s_branch L_m_rchk")
        else:
            s.rcheck()
            for x in cr:
                if "v5 " in x: A(x)
            A("s_branch L_m_conv")

    def spare_h(s):
        A = s.A
        o = s.o
        XR, SUM = 128, 100
        vm = VM(s)
        A("L_spare_h0:")
        A("v_lshrrev_b32 v112, 5, v1\nv_bfe_u32 v113, v1, 3, 2\nv_lshl_add_u32 v112, v112, 8, v113\nv_and_b32 v114, 7, v1")
        A("v_lshlrev_b32 v112, 10, v112\nv_lshl_add_u32 v112, v114, 4, v112")
        A("s_and_b32 s%d, s%d, 3\ns_lshl_b32 s%d, s%d, 2\ns_add_u32 s%d, s%d, s%d" % (sT0, sIDX, sMI, sC, sMI, sMI, sT0))
        A(s.tokbase(sT0, sMI, sT1))
        A("s_lshl_b32 s%d, s%d, 5\ns_add_u32 s%d, s%d, s%d\ns_lshl_b32 s%d, s%d, 10\ns_add_u32 s%d, s%d, 16384" % (sT1, sW4, sT0, sT0, sT1, sT0, sT0, sT1, sT0))
        for b in range(2):
            for j in range(8): A("buffer_load_dwordx4 %s, v112, %s, s%d offen offset:%d" % (R(XR + 32 * b + 4 * j, 4), SR(rA), sT1 if b else sT0, 128 * j)); vm.add("x%d" % (8 * b + j))
        A("s_setprio 1\ns_branch L_h_setup")
        A("L_spare_h1:")
        A("s_waitcnt lgkmcnt(0)\ns_barrier")
        s.stamp("h", "B0")
        H = s.hitems(vm)
        H["r"](); H["h"]()
        for i in range(8): A("v_mov_b32 v%d, 0" % (SUM + i))
        A("s_mov_b32 s%d, 0x3f803f80" % sT0)
        for b in range(2):
            for j in range(8):
                vm.wait("x%d" % (8 * b + j))
                for d in range(4):
                    x = XR + 32 * b + 4 * j + d
                    A("v_dot2c_f32_bf16 v%d, s%d, v%d" % (SUM + 4 * b + (d & 1), sT0, x))
                    A("v_dot2c_f32_bf16 v%d, v%d, v%d" % (SUM + 4 * b + 2 + (d & 1), x, x))
        H["f"]()
        for b in range(2):
            A("v_add_f32 v%d, v%d, v%d\nv_add_f32 v%d, v%d, v%d" % (SUM + 2 * b, SUM + 4 * b, SUM + 4 * b + 1, SUM + 2 * b + 1, SUM + 4 * b + 2, SUM + 4 * b + 3))
        A("s_nop 0")
        for ctl in ("quad_perm:[1,0,3,2]", "quad_perm:[2,3,0,1]", "row_half_mirror"):
            for i in range(4): A("v_add_f32_dpp v%d, v%d, v%d %s row_mask:0xf bank_mask:0xf" % (SUM + i, SUM + i, SUM + i, ctl))
        A("v_cmp_eq_u32 vcc, 1, v114\nv_lshrrev_b32 v113, 3, v1\nv_lshl_add_u32 v113, v114, 3, v113")
        SQ = SUM + 1
        A("v_cndmask_b32 v%d, v%d, v%d, vcc\nv_cndmask_b32 v%d, v%d, v%d, vcc" % (SUM, SUM, SUM + 2, SQ, SQ, SUM + 3))
        A("v_mul_f32 v%d, 0x3b000000, v%d\nv_mul_f32 v%d, 0x3b000000, v%d" % (SUM, SUM, SQ, SQ))
        A("v_fma_f32 v%d, -v%d, v%d, v%d\nv_max_f32 v%d, 0, v%d" % (SQ, SUM, SUM, SQ, SQ, SQ))
        A("v_cvt_pk_bf16_f32 v%d, v%d, v%d" % (SUM + 2, SUM, SQ))
        A("v_lshlrev_b32 v%d, 16, v%d\nv_and_b32 v%d, 0xffff0000, v%d" % (SUM, SUM + 2, SQ, SUM + 2))
        A("v_add_f32 v%d, 0x3727c5ac, v%d" % (SQ, SQ))
        A("v_cvt_pk_bf16_f32 v%d, v%d, v%d\nv_lshlrev_b32 v%d, 16, v%d\nv_sqrt_f32 v%d, v%d" % (SQ, SQ, SQ, SQ, SQ, SQ, SQ))
        A("v_cmp_gt_u32 vcc, 2, v114\nv_lshlrev_b32 v113, 3, v113\nv_mov_b32 v115, 0x%x" % OOB)
        A("v_cvt_pk_bf16_f32 v%d, v%d, v%d\nv_lshlrev_b32 v%d, 16, v%d\nv_rcp_f32 v%d, v%d" % (SQ, SQ, SQ, SQ, SQ, SQ, SQ))
        A("v_cndmask_b32 v113, v115, v113, vcc")
        A("s_lshl_b32 s%d, s%d, 2\ns_add_u32 s%d, s%d, s%d\ns_lshl_b32 s%d, s%d, 7\ns_add_u32 s%d, s%d, 0x%x" % (sT0, sMI, sT0, sT0, sW4, sT0, sT0, sT0, sT0, WS_ST))
        A("buffer_store_dwordx2 %s, v113, %s, s%d offen sc1" % (R(SUM, 2), SR(rWS), sT0)); vm.add("st")
        A("s_lshl_b32 s%d, s%d, 3\ns_add_u32 s%d, s%d, s%d" % (sMI, sMI, sMI, sMI, sW4))
        s.flagoff(sMI, WS_FS)
        H["D"]()
        vm.wait("H", extra=" lgkmcnt(0)")
        s.stamp("h", "S1a")
        A("s_barrier")
        H["z"](); H["c"](); H["d"]()
        vm.wait("st")
        A("buffer_store_dwordx2 v[28:29], v27, %s, s%d offen sc1" % (SR(rWS), sMI)); vm.add("fs")
        s.stamp("h", "sflag")
        late = [ch for sec in s.sched[:9] for ch in sec if ch in "Rwvn"]
        first = True
        for ch in late:
            if ch in "wv" and first:
                A("s_waitcnt lgkmcnt(0)"); s.stamp("h", "S2a"); A("s_barrier\ns_setprio 0"); first = False
            H[ch]()
        if first:
            A("s_waitcnt lgkmcnt(0)"); s.stamp("h", "S2a"); A("s_barrier\ns_setprio 0")
        n = len([t for t in s.vmjoin if t == "R" or t[0] == "w"])
        assert [t for t in vm.q if t == "R" or t[0] == "w"] == [t for t in s.vmjoin if t == "R" or t[0] == "w"]
        assert n == 0 or vm.q[-n:] == [t for t in s.vmjoin if t == "R" or t[0] == "w"]
        if n and s.vmjoin[-n:] != vm.q[-n:]: A("s_waitcnt vmcnt(0)")
        A("s_branch L_h_join")

    def hitems(s, vm):
        A = s.A
        o = s.o
        WREG = 120
        QS = {0: 4, 1: 0, 2: 2, 3: 6, 4: 4, 5: 0, 6: 2}
        nreg = o["nreg"]
        def stage(k):
            slot = k % 3
            if k == 0 or not o["rot"]:
                A("s_add_u32 s%d, s%d, %d\ns_add_u32 s%d, s%d, %d" % (sT2, sXB, 128 * k, sT1, sWB, 64 * 3584 * k))
            else:
                A("s_lshl_b32 s%d, s%d, 7\ns_add_u32 s%d, s%d, s%d" % (sT2, sCNT, sT2, sT2, sXB))
                A("s_mul_i32 s%d, s%d, %d\ns_add_u32 s%d, s%d, s%d" % (sT1, sCNT, 64 * 3584, sT1, sT1, sWB))
                if k < 7: A("s_cmp_eq_u32 s%d, 7\ns_cselect_b32 s%d, 0, s%d\ns_add_u32 s%d, s%d, 1" % (sCNT, sCNT, sCNT, sCNT, sCNT))
            A("s_add_u32 m0, s%d, %d" % (sLB, slot * 32768))
            for j in range(8):
                if j == 4: A("s_add_u32 m0, s%d, %d" % (sLB, slot * 32768 + 16384))
                if j < 4:
                    A("s_add_u32 s%d, s%d, %d" % (sT0, sT2, j * (16384 - 1024)))
                    A("buffer_load_dwordx4 v%d, %s, s%d offen offset:%d lds" % (10 + (j & 1), SR(rA), sT0, j * 1024))
                else:
                    A("s_add_u32 s%d, s%d, %d" % (sT0, sT1, (j - 4) * (4 * 3584 - 1024)))
                    A("buffer_load_dwordx4 v%d, %s, s%d offen offset:%d lds" % (12 + ((j - 4) >> 1), SR(rB), sT0, (j - 4) * 1024))
                vm.add("s%d" % k)
        def rout():
            A("ds_read_b128 v[56:59], v18\nds_read_b128 v[60:63], v18 offset:1024")
            A("s_lshl_b32 s%d, s%d, 2\ns_add_u32 s%d, s%d, s%d\ns_lshl_b32 s%d, s%d, 5\ns_sub_u32 s%d, 31, s%d" % (sT0, sC, sT0, sT0, sW4, sFH, sT0, sT1, sIDX))
            A("s_add_u32 s%d, s%d, s%d\ns_lshl_b32 s%d, s%d, 16\ns_lshl_b32 s%d, s%d, 7\ns_add_u32 s%d, s%d, s%d\ns_add_u32 s%d, s%d, 0x8000" % (sFH, sFH, sT1, sT0, sT0, sT1, sT1, sT0, sT0, sT1, sT1, sT0))
            s.flagoff(sFH, WS_FA)
            A("s_waitcnt lgkmcnt(1)\nbuffer_store_dwordx4 v[56:59], v19, %s, s%d offen sc1" % (SR(rWS), sT0))
            A("s_waitcnt lgkmcnt(0)\nbuffer_store_dwordx4 v[60:63], v19, %s, s%d offen sc1" % (SR(rWS), sT1))
            vm.add("r", 2)
            s.nonce_issue(vm)
        def flag_a():
            A("v_mov_b32 v3, %d" % NONL)
            s.nonce_check(vm)
            A("buffer_store_dwordx2 v[28:29], v27, %s, s%d offen sc1" % (SR(rWS), sFH)); vm.add("fa")
            s.stamp("h", "aflag")
            A("ds_write_b64 v3, v[28:29]")
        def zero():
            A("v_lshrrev_b32 v3, 5, v1\nv_mul_u32_u24 v3, 4608, v3\nv_and_b32 v4, 31, v1\nv_lshl_add_u32 v3, v4, 4, v3\nv_add_u32 v3, %d, v3" % (RB + 4096))
            A("ds_write_b128 v3, v[52:55]")
            A("v_lshrrev_b32 v3, 1, v20\nv_mul_u32_u24 v3, 4160, v3\nv_and_b32 v4, 1, v1\nv_lshl_add_u32 v3, v4, 4, v3\nv_add_u32 v3, %d, v3" % HC)
            A("ds_write_b128 v3, v[52:55]")
        def h_rows():
            A("s_lshl_b32 s%d, s%d, 13\ns_lshl_b32 s%d, s%d, 11\ns_add_u32 s%d, s%d, s%d" % (sT2, sSLOT, sT1, sW4, sT2, sT2, sT1))
            A("s_lshr_b32 s%d, s%d, 1\ns_mul_i32 s%d, s%d, %d\ns_add_u32 s%d, s%d, s%d\ns_add_u32 m0, s%d, %d\ns_nop 0" % (sT0, sW4, sT0, sT0, 16640 - 4096, sT0, sT0, sT1, sT0, HC + 32))
            A("buffer_load_dwordx4 v14, %s, s%d offen %s lds" % (SR(rH), sT2, o["ph"]))
            A("buffer_load_dwordx4 v14, %s, s%d offen offset:1024 %s lds" % (SR(rH), sT2, o["ph"])); vm.add("H", 2)
        def copies(ch):
            b = 64
            A("s_lshl_b32 s%d, s%d, 10\ns_add_u32 s%d, s%d, %d\nv_add_u32 v3, s%d, v14" % (sT0, sW4, sT0, sT0, HC + 24 + ch * 16640, sT0))
            A("s_waitcnt lgkmcnt(0)\nds_read_b64 %s, v3\nds_read_b128 %s, v3 offset:8\ns_waitcnt lgkmcnt(0)" % (R(b, 2), R(b + 2, 4)))
            for j in range(4): A("v_alignbyte_b32 v%d, v%d, v%d, 2" % (b + 6 + j, b + 2 + j, b + 1 + j))
            A("ds_write_b128 v3, %s offset:%d" % (R(b + 6, 4), 4160 + 8))
            for j in range(4): A("v_mov_b32 v%d, v%d" % (b + 10 + j, b + 1 + j))
            A("ds_write_b128 v3, %s offset:%d" % (R(b + 10, 4), 2 * 4160 + 8))
            for j in range(4): A("v_alignbyte_b32 v%d, v%d, v%d, 2" % (b + 14 + j, b + 1 + j, b + j))
            A("ds_write_b128 v3, %s offset:%d" % (R(b + 14, 4), 3 * 4160 + 8))
        def r_in():
            A("s_lshr_b32 s%d, s%d, 3\ns_lshl_b32 s%d, s%d, 2\ns_add_u32 s%d, s%d, s%d\ns_lshl_b32 s%d, s%d, 3" % (sT0, sSLOT, sT0, sT0, sT0, sT0, sW4, sFH, sT0))
            s.flagoff(sFH, WS_FA)
            s.poll_issue(8, sFH)
            A("s_lshl_b32 s%d, s%d, 13\ns_lshl_b32 s%d, s%d, 10\ns_add_u32 s%d, s%d, s%d\ns_add_u32 m0, s%d, %d" % (sT0, sSLOT, sT1, sW4, sT0, sT0, sT1, sT1, RB))
            s.poll_check(8, sFH)
            s.stamp("h", "pollA")
            A("buffer_load_dwordx4 v14, %s, s%d offen sc1 lds" % (SR(rWS), sT0))
            A("s_add_u32 m0, s%d, %d\ns_add_u32 s%d, s%d, 4096" % (sT1, RB + 4608, sT0, sT0))
            A("buffer_load_dwordx4 v14, %s, s%d offen sc1 lds" % (SR(rWS), sT0)); vm.add("R", 2)
        def notify():
            A("v_mov_b32 v3, %d\nv_mov_b32 v4, 1" % NONL)
            vm.wait("R")
            A("s_mov_b64 exec, 1\nds_add_u32 v3, v4 offset:8\ns_mov_b64 exec, -1")
            s.stamp("h", "rnote")
        def w2load(j):
            dma = not (3 <= j < 3 + nreg)
            for kh in range(2):
                t = 7 * kh + j
                if dma: A("s_add_u32 m0, s%d, %d" % (sLB, (QS[j] + kh) * 16384))
                for q in range(4):
                    if dma:
                        A("s_add_u32 s%d, s%d, %d" % (sT0, sW2B, q * (8192 - 1024) + t * 131072))
                        A("buffer_load_dwordx4 v24, %s, s%d offen offset:%d lds" % (SR(rC), sT0, q * 1024))
                    else:
                        A("s_add_u32 s%d, s%d, %d" % (sT0, sW2B, q * 8192 + t * 131072))
                        A("buffer_load_dwordx4 %s, v24, %s, s%d offen" % (R(WREG + 32 * (j - 3) + 16 * kh + 4 * q, 4), SR(rC), sT0))
                    vm.add("w%d_%d" % (j, kh))
        def w2put(j):
            if not (3 <= j < 3 + nreg): return w2load(j)
            a = 15 if QS[j] < 4 else 16
            for kh in range(2):
                vm.wait("w%d_%d" % (j, kh))
                for q in range(4):
                    A("ds_write_b128 v%d, %s offset:%d" % (a, R(WREG + 32 * (j - 3) + 16 * kh + 4 * q, 4), ((QS[j] & 3) + kh) * 16384 + q * 1024))
        nx = {"w": 0, "v": 3}
        def nxt(k):
            j = nx[k]; nx[k] += 1
            assert j < (3 if k == "w" else 3 + nreg)
            w2load(j)
        def daddr():
            A("v_add_u32 v15, s%d, v14\nv_add_u32 v16, 0x10000, v15" % sLB)
            s.tail_addr()
            A("s_lshl_b32 s%d, s%d, 14\ns_sub_u32 s%d, s%d, s%d\ns_lshl_b32 s%d, s%d, 15\ns_add_u32 s%d, s%d, s%d" % (sT0, sW8, sY0, sOB, sT0, sT0, sW4, sY0, sY0, sT0))
            A("s_lshl_b32 s%d, s%d, 5\ns_add_u32 s%d, s%d, %d" % (sT0, sW4, sT0, sT0, XT))
            A("v_lshlrev_b32 v3, 7, v20\nv_add_u32 v3, s%d, v3\nv_lshl_add_u32 v21, v9, 3, v3" % sT0)
            A("v_bfe_u32 v4, v1, 2, 2\nv_lshl_add_u32 v4, v9, 2, v4\nv_lshlrev_b32 v4, 7, v4\nv_and_b32 v6, 3, v1\nv_lshl_add_u32 v4, v6, 3, v4")
            A("s_lshl_b32 s%d, s%d, 11\ns_add_u32 s%d, s%d, %d\nv_add_u32 v22, s%d, v4" % (sT1, sW4, sT1, sT1, YT, sT1))
            A("v_lshlrev_b32 v17, 3, v20")
            A("s_lshl_b32 s%d, s%d, 2\ns_add_u32 s%d, s%d, s%d\ns_lshr_b32 s%d, s%d, 4\ns_lshl_b32 s%d, s%d, 5" % (sT0, sN2, sT0, sT0, sW4, sT1, sM2, sT1, sT1))
            A("s_add_u32 s%d, s%d, s%d\ns_lshl_b32 s%d, s%d, 4" % (sT1, sT1, sT0, sFY, sT1))
            s.flagoff(sFY, WS_FY)
            A("s_lshl_b32 s%d, s%d, 11\ns_lshl_b32 s%d, s%d, 16\ns_add_u32 s%d, s%d, s%d\ns_add_u32 s%d, s%d, 0x%x" % (sT0, sT0, sT1, sM2, sT0, sT0, sT1, sY1, sT0, WS_Y))
            A("s_lshl_b32 s%d, s%d, 5" % (sPH, sM2)); s.flagoff(sPH, WS_FH)
            A("s_lshl_b32 s%d, s%d, 3" % (sHB, sM2)); s.flagoff(sHB, WS_FS)
        H = dict(r=rout, f=flag_a, z=zero, h=h_rows, c=lambda: copies(0), d=lambda: copies(1), R=r_in, n=notify, D=daddr,
                 w=lambda: nxt("w"), v=lambda: nxt("v"), put=w2put)
        for k in range(8): H[str(k)] = (lambda k=k: stage(k))
        return H

    def helper_waves(s):
        A = s.A
        o = s.o
        s.stamp("h", "start")
        vm = VM(s)
        H = s.hitems(vm)
        A("v_lshrrev_b32 v3, 5, v1\nv_bfe_u32 v4, v1, 3, 2\nv_lshl_add_u32 v3, v3, 8, v4\nv_lshlrev_b32 v3, 10, v3")
        A("v_and_b32 v5, 7, v1\nv_lshrrev_b32 v9, 4, v1\nv_xor_b32 v6, v5, v9\nv_lshl_add_u32 v10, v6, 4, v3\nv_xor_b32 v11, 64, v10")
        A("s_lshr_b32 s%d, s%d, 2\ns_lshl_b32 s%d, s%d, 7\ns_and_b32 s%d, s%d, 3\ns_add_u32 s%d, s%d, s%d" % (sT0, sMI, sT0, sT0, sT1, sMI, sT0, sT0, sT1))
        A("s_lshl_b32 s%d, s%d, 12\ns_lshl_b32 s%d, s%d, 16\ns_add_u32 s%d, s%d, s%d" % (sT0, sT0, sT1, sW4, sXB, sT0, sT1))
        A("v_and_b32 v20, 15, v1\nv_lshlrev_b32 v6, 1, v9\nv_xor_b32 v6, v6, v20\nv_mul_u32_u24 v7, 3584, v9\nv_lshl_add_u32 v12, v6, 4, v7\nv_xor_b32 v13, 0x80, v12")
        A("s_lshl_b32 s%d, s%d, 8\ns_mul_i32 s%d, s%d, %d\ns_add_u32 s%d, s%d, s%d" % (sT0, sFI, sT1, sW4, 16 * 3584, sWB, sT0, sT1))
        A("s_lshl_b32 s%d, s%d, 12" % (sLB, sW4))
        if o["rot"]:
            A("s_and_b32 s%d, s%d, 3\ns_lshl_b32 s%d, s%d, 1\ns_lshr_b32 s%d, s%d, 2\ns_add_u32 s%d, s%d, s%d" % (sT0, sIDX, sT0, sT0, sCNT, sIDX, sCNT, sCNT, sT0))
            A("s_lshr_b32 s%d, s%d, 1\ns_add_u32 s%d, s%d, s%d" % (sT0, sC, sCNT, sCNT, sT0))
            for _ in range(2): A("s_cmp_ge_u32 s%d, 7\ns_cselect_b32 s%d, 7, 0\ns_sub_u32 s%d, s%d, s%d" % (sCNT, sT0, sCNT, sCNT, sT0))
            A("s_add_u32 s%d, s%d, 1" % (sCNT, sCNT))
        A("s_cmp_eq_u32 s%d, 0\ns_waitcnt lgkmcnt(0)" % sISB)
        s.srd(rA, sQ, 2 << 20); s.srd(rB, sW1, 512 * 3584)
        A("s_cbranch_scc1 L_spare_h0")
        sched = o["ord"].split("|")
        assert len(sched) == 10
        s.sched = sched
        for ch in sched[0]: H[ch]()
        A("L_h_setup:")
        s.srd(rC, sW2, 1792 * 1024); s.srd(rH, sH, 2 << 20); s.srd(rWS, sWS, WS_SIZE); s.srd(rOUT, sOUT, 2 << 20)
        A("v_lshlrev_b32 v14, 4, v1\nv_mov_b32 v52, 0\nv_mov_b32 v53, 0\nv_mov_b32 v54, 0\nv_mov_b32 v55, 0")
        A("v_mov_b32 v3, %d\nv_min_u32 v27, 1, v1\nv_lshlrev_b32 v27, 31, v27" % NONL)
        A("ds_write_b32 v3, v52 offset:8")
        A("v_lshrrev_b32 v3, 3, v1\nv_xor_b32 v4, v3, v5\nv_lshlrev_b32 v18, 7, v3\nv_lshl_add_u32 v18, v4, 4, v18")
        A("s_lshl_b32 s%d, s%d, 11\ns_add_u32 s%d, s%d, %d\nv_add_u32 v18, s%d, v18\nv_lshlrev_b32 v19, 12, v3\nv_lshl_add_u32 v19, v5, 4, v19" % (sT0, sW4, sT0, sT0, ROUT, sT0))
        A("v_lshlrev_b32 v4, 1, v9\nv_xor_b32 v4, v4, v5\nv_lshlrev_b32 v3, 10, v3\nv_lshl_add_u32 v24, v4, 4, v3")
        A("s_lshl_b32 s%d, s%d, 7\ns_lshl_b32 s%d, s%d, 15\ns_add_u32 s%d, s%d, s%d" % (sT0, sN2, sT1, sW4, sW2B, sT0, sT1))
        A("s_cmp_eq_u32 s%d, 0\ns_cbranch_scc1 L_spare_h1" % sISB)
        vm.wait("s0", extra=" lgkmcnt(0)")
        s.stamp("h", "s0")
        A("s_barrier")
        hk = [i for i, x in enumerate(sched) if "c" in x][0] - 1
        for k in range(8):
            s.stamp("h", "B%d" % k)
            for ch in sched[k + 1]: H[ch]()
            tags = ["s%d" % (k + 1)] if k < 7 else []
            if k + 1 == hk: tags.append("H")
            if tags: vm.wait(*tags, extra=" lgkmcnt(0)")
            else: A("s_waitcnt lgkmcnt(0)")
            s.stamp("h", "B%da" % (k + 1))
            A("s_barrier")
        s.vmjoin = list(vm.q)
        A("L_h_join:")
        s.stamp("h", "B8")
        for ch in sched[9]: H[ch]()
        s.stamp("h", "w2_issued")
        l = s.lab("p1")
        A("s_cmp_gt_u32 s%d, 1\ns_cbranch_scc1 %s" % (sW4, l))
        l2 = s.lab("p1s")
        A("s_cmp_eq_u32 s%d, 1\ns_cbranch_scc1 %s" % (sW4, l2))
        s.poll_issue(12, sPH); s.poll_check(12, sPH)
        s.stamp("h", "pollH1")
        A("s_branch %s\n%s:" % (l, l2))
        s.poll_issue(4, sHB); s.poll_check(4, sHB)
        A("%s:" % l)
        A("s_add_u32 s%d, s%d, %d" % (sPH, sPH, 12 * o["fsp"]))
        vm.wait("w0_0", "w0_1")
        s.stamp("h", "BC2a")
        A("s_barrier")
        nreg = o["nreg"]
        isreg = lambda j: 3 <= j < 3 + nreg
        l = s.lab("p2")
        A("s_cmp_lg_u32 s%d, 0\ns_cbranch_scc1 %s" % (sW4, l)); s.poll_issue(16, sPH); A("%s:" % l)
        A("s_lshl_b32 s%d, s%d, 11\ns_add_u32 m0, s%d, %d\ns_add_u32 s%d, s%d, %d" % (sT0, sW4, sT0, XT, sT1, sY0, 16384 - 1024))
        A("buffer_load_dwordx4 v46, %s, s%d offen lds" % (SR(rA), sY0))
        A("buffer_load_dwordx4 v46, %s, s%d offen offset:1024 lds" % (SR(rA), sT1)); vm.add("x", 2)
        H["put"](3)
        l = s.lab("p2")
        A("s_cmp_lg_u32 s%d, 0\ns_cbranch_scc1 %s" % (sW4, l)); s.poll_check(16, sPH); s.stamp("h", "pollH2"); A("%s:" % l)
        vm.wait("w1_0", "w1_1")
        s.stamp("h", "X0a")
        A("s_barrier")
        for i in range(4):
            A("buffer_load_dwordx2 %s, v17, %s, s%d offen offset:%d sc1" % (R(56 + 2 * i, 2), SR(rWS), sST, 128 * i)); vm.add("ms")
        A("buffer_load_dword v47, v47, %s, s%d offen sc1" % (SR(rWS), sST)); vm.add("ms")
        H["put"](4)
        vm.wait("w2_0", "w2_1")
        s.stamp("h", "X1a")
        A("s_barrier")
        if isreg(4) or isreg(3): A("s_waitcnt lgkmcnt(0)")
        H["put"](5)
        tags = ["x"] + ([] if isreg(3) else ["w3_0", "w3_1"]) + ([] if isreg(4) else ["w4_0", "w4_1"])
        vm.wait(*tags)
        s.stamp("h", "X2a")
        A("s_barrier")
        XV, YV = 64, 72
        if nreg < 4:
            H["put"](6)
            s.poll_issue(16, sFY)
            for i in range(4): A("ds_read_b64 %s, v21 offset:%d" % (R(XV + 2 * i, 2), 2048 * i))
        else:
            H["put"](6)
            A("s_waitcnt lgkmcnt(0)")
            s.poll_issue(16, sFY)
            s.stamp("h", "X3a")
            A("s_barrier")
            for i in range(4): A("ds_read_b64 %s, v21 offset:%d" % (R(XV + 2 * i, 2), 2048 * i))
        s.poll_check(16, sFY)
        s.stamp("h", "pollY")
        A("s_lshl_b32 s%d, s%d, 11\ns_add_u32 m0, s%d, %d\ns_nop 0" % (sT0, sW4, sT0, YT))
        A("buffer_load_dwordx4 v14, %s, s%d offen sc1 lds" % (SR(rWS), sY1))
        A("buffer_load_dwordx4 v14, %s, s%d offen offset:1024 sc1 lds" % (SR(rWS), sY1)); vm.add("y", 2)
        if nreg < 4:
            vm.wait("w6_0", "w6_1")
            s.stamp("h", "X4a")
            A("s_barrier")
        else: vm.wait("ms")
        for i in range(4):
            for u in range(2):
                x = XV + 2 * i + u; t = 80 + 4 * i + 2 * u
                A("v_lshlrev_b32 v%d, 16, v%d\nv_and_b32 v%d, 0xffff0000, v%d" % (t, x, t + 1, x))
            for e in range(4): A("v_sub_f32 v%d, v%d, v%d" % (96 + 4 * i + e, 80 + 4 * i + e, 56 + 2 * i))
            for e in range(4): A("v_mul_f32 v%d, v%d, v%d" % (96 + 4 * i + e, 96 + 4 * i + e, 57 + 2 * i))
        A("s_waitcnt vmcnt(0)")
        s.stamp("h", "y_landed")
        for i in range(4): A("ds_read_b64_tr_b16 %s, v22 offset:%d" % (R(YV + 2 * i, 2), 32 * i))
        for i in range(4):
            A("s_waitcnt lgkmcnt(%d)" % 3)
            for u in range(2):
                y = YV + 2 * i + u; t = 80 + 4 * i + 2 * u
                A("v_lshlrev_b32 v112, 16, v%d\nv_and_b32 v113, 0xffff0000, v%d" % (y, y))
                A("v_fmac_f32 v%d, v%d, v112\nv_fmac_f32 v%d, v%d, v113" % (t, t + 16, t + 1, t + 17))
                A("v_cvt_pk_bf16_f32 v%d, v%d, v%d" % (XV + 2 * i + u, t, t + 1))
            A("ds_write_b64 v21, %s offset:%d" % (R(XV + 2 * i, 2), 2048 * i))


HEAD = open("cdna_kernels/%s.s.ref" % NAME).read()


def render(g):
    head = HEAD[:HEAD.index("; @launch")]
    t = head + "; @launch grid=(256,1,1) block=(512,1,1) lds=%d\n" % LDS_SIZE
    t += '.amdgcn_target "amdgcn-amd-amdhsa--gfx950"\n.text\n.globl %s_kernel\n.p2align 8\n.type %s_kernel,@function\n%s_kernel:\n' % (NAME, NAME, NAME)
    for x in g.L:
        t += (x if x.endswith(":") else "    " + x) + "\n"
    t += HEAD[HEAD.index("s_endpgm"):]
    return t


if __name__ == "__main__":
    out = sys.argv[1]
    opts = dict(eval("dict(%s)" % sys.argv[2])) if len(sys.argv) > 2 else {}
    g = Gen(**opts).build()
    open(out, "w").write(render(g))
    print("wrote", out, len(g.L), "lines", g.nst)
```

```python
import sys, re

NAME = "parallel_sum__ssm_conv_h3__dense_activation_relu__prompt"

WS_R = 0
WS_Y = 2 << 20
WS_H = 4 << 20
WS_ST = 12 << 20
WS_FA = 13 << 20
WS_FH = WS_FA + 65536
WS_FY = WS_FA + 2 * 65536
WS_FS = WS_FA + 3 * 65536
WS_NONCE = WS_FA + 4 * 65536
WS_TS = 14 << 20
WS_SIZE = 16 << 20

HC = 98304
RB = 131584
ROUT = RB
NONL = 140800
STL = NONL + 64
KV = 143360
XCH = 143360
RED = 147456
XT = 131072
YT = 139264
LDS_SIZE = 163840

sQ, sK, sV, sSK, sH, sD, sW1, sW2, sOUT, sDBG, sWS = 4, 6, 8, 10, 12, 14, 18, 20, 22, 24, 26
rA, rB, rWS, rC, rH, rOUT, rDBG = 28, 32, 36, 40, 44, 48, 52
sN = 52
sW8, sW4, sC, sIDX, sMI, sFI, sM2, sN2 = 56, 57, 58, 59, 60, 61, 62, 63
sT0, sT1, sT2, sT3 = 64, 65, 66, 67
sXB, sWB, sLB, sSLOT = 68, 69, 70, 71
sHB, sW2B, sCNT, sDV = 72, 73, 74, 75
sFH, sPH, sFY, sST = 76, 77, 78, 79
sOB, sY0, sISB, sY1 = 80, 81, 82, 83
P0, P1 = 4, 84
sHS = 84
sTS = 100
OOB = 0x80000000


def R(a, n): return "v[%d:%d]" % (a, a + n - 1)
def SR(a, n=4): return "s[%d:%d]" % (a, a + n - 1)


class VM:
    def __init__(s, g): s.q = []; s.g = g
    def add(s, t, n=1): s.q += [t] * n
    def n(s, *tags):
        last = max(i for i, t in enumerate(s.q) if t in tags)
        n = len(s.q) - 1 - last
        assert n < 64, n
        return n
    def wait(s, *tags, extra=""):
        s.g.A("s_waitcnt vmcnt(%d)%s" % (s.n(*tags), extra))


class Gen:
    def __init__(s, **o):
        s.L = []
        s.o = dict(stamps=False, hflag_at=64, spin=1 << 16, depth=6, nt_kv="nt", outsc="sc1", prio=3, sfirst=1, rot=1, fsp=8,
                   ord="0(3:SD)1|r2|3(fz)|4h|5|6|7p|Rx|xx|cdnsXxwtvPvm", nreg=2, rchk=8, ysplit=3, barpos=6, early=0, epos=0, inl=1, ypoll=2, b8pos=14, npre=14, r1pos=0, dens0=0, dens1=0, oldw=0, sord="H|U", pH="nt", pV="", ph="")
        s.o.update(o)
        s.nlab = 0
        s.nst = {}

    def A(s, t):
        for x in t.split("\n"):
            x = x.strip()
            if x: s.L.append(x)

    def lab(s, p):
        s.nlab += 1
        return "L_%s_%d" % (p, s.nlab)

    def srd(s, r, p, size):
        s.A("s_mov_b32 s%d, s%d\ns_mov_b32 s%d, s%d\ns_mov_b32 s%d, 0x%x\ns_mov_b32 s%d, 0x20000" % (r, p, r + 1, p + 1, r + 2, size, r + 3))

    def stamp_s(s, role, name):
        if not s.o["stamps"]: return ""
        if isinstance(s.o["stamps"], (list, tuple, set)) and name not in s.o["stamps"] and name not in ("start", "end"): return ""
        k = s.nst.setdefault(role, [])
        if name not in k: k.append(name)
        if s.o.get("cyc"):
            return "s_memrealtime s[%d:%d]\ns_memtime s[54:55]\ns_waitcnt lgkmcnt(0)\nv_writelane_b32 v255, s%d, %d\nv_writelane_b32 v255, s54, %d" % (sTS, sTS + 1, sTS, k.index(name), 30 + k.index(name))
        return "s_memrealtime s[%d:%d]\ns_waitcnt lgkmcnt(0)\nv_writelane_b32 v255, s%d, %d" % (sTS, sTS + 1, sTS, k.index(name))

    def stamp(s, role, name): s.A(s.stamp_s(role, name))

    def stamp_out(s):
        if not s.o["stamps"]: return
        s.A("s_lshl_b32 s%d, s2, 3\ns_add_u32 s%d, s%d, s%d\ns_lshl_b32 s%d, s%d, 8\ns_add_u32 s%d, s%d, 0x%x" % (sT0, sT0, sT0, sW8, sT0, sT0, sT0, sT0, WS_TS))
        s.A("v_lshlrev_b32 v254, 2, v1\ns_nop 1\nbuffer_store_dword v255, v254, %s, s%d offen" % (SR(rWS), sT0))

    def weave(s, ms, fill, pre=None):
        for i, m in enumerate(ms):
            for f in (pre or {}).get(i, []): s.A(f)
            s.A(m)
            for f in fill.get(i, []): s.A(f)

    def freg(s, i): return (P0 if i < 8 else P1 - 16) + 2 * i

    def poll_issue(s, n, soff):
        A = s.A
        fsp = s.o["fsp"]
        if fsp == 8:
            i = 0
            while i < n:
                w = 8 if n - i >= 8 else (4 if n - i >= 4 else (2 if n - i >= 2 else 1))
                if i: A("s_add_u32 s%d, s%d, %d" % (sT2, soff, 8 * i))
                A("s_load_dwordx%d %s, %s, s%d glc" % (2 * w, SR(s.freg(i), 2 * w), SR(sWS, 2), sT2 if i else soff))
                i += w
        else:
            for i in range(n):
                if i: A("s_add_u32 s%d, s%d, %d" % (sT2, soff, fsp * i))
                A("s_load_dwordx2 %s, %s, s%d glc" % (SR(s.freg(i), 2), SR(sWS, 2), sT2 if i else soff))

    def poll_check(s, n, soff):
        A = s.A
        l0, l1, l2 = s.lab("pl"), s.lab("pr"), s.lab("pd")
        A("s_mov_b32 s%d, 0\n%s:\ns_waitcnt lgkmcnt(0)" % (sT3, l0))
        for i in range(n - 1):
            A("s_cmp_lg_u64 %s, %s\ns_cbranch_scc1 %s" % (SR(s.freg(i), 2), SR(sN, 2), l1))
        A("s_cmp_eq_u64 %s, %s\ns_cbranch_scc1 %s" % (SR(s.freg(n - 1), 2), SR(sN, 2), l2))
        A("%s:\ns_add_u32 s%d, s%d, 1\ns_cmp_gt_u32 s%d, 0x%x\ns_cbranch_scc1 %s" % (l1, sT3, sT3, sT3, s.o["spin"], l2))
        s.poll_issue(n, soff)
        A("s_branch %s\n%s:" % (l0, l2))

    def nonce_issue(s, vm):
        s.srd(P1, sDBG, 256)
        s.A("buffer_load_dwordx2 v[28:29], v52, %s, 0 offen sc1" % SR(P1)); vm.add("non")

    def nonce_check(s, vm):
        A = s.A
        l0, l1 = s.lab("nl"), s.lab("nd")
        vm.wait("non")
        A("s_mov_b32 s%d, 0\n%s:\nv_readfirstlane_b32 s%d, v28\nv_readfirstlane_b32 s%d, v29" % (sT3, l0, sN, sN + 1))
        A("s_add_u32 s%d, s%d, 1\ns_cmp_lg_u32 s%d, 0\ns_cbranch_scc1 %s" % (sT3, sT3, sN, l1))
        A("s_cmp_gt_u32 s%d, 0x%x\ns_cbranch_scc1 %s" % (sT3, s.o["spin"], l1))
        A("buffer_load_dwordx2 v[28:29], v52, %s, 0 offen sc1\ns_waitcnt vmcnt(0)\ns_branch %s\n%s:" % (SR(P1), l0, l1))

    def tokbase(s, dst, m2, t):
        return ("s_lshr_b32 s%d, s%d, 3\ns_lshl_b32 s%d, s%d, 9\ns_bfe_u32 s%d, s%d, 0x20001\ns_lshl_b32 s%d, s%d, 2\ns_add_u32 s%d, s%d, s%d\n" % (dst, m2, dst, dst, t, m2, t, t, dst, dst, t) +
                "s_and_b32 s%d, s%d, 1\ns_lshl_b32 s%d, s%d, 7\ns_add_u32 s%d, s%d, s%d" % (t, m2, t, t, dst, dst, t))

    def flagoff(s, dst, base):
        s.A("s_lshl_b32 s%d, s%d, %d\ns_add_u32 s%d, s%d, 0x%x" % (dst, dst, s.o["fsp"].bit_length() - 1, dst, dst, base))

    def build(s):
        A = s.A
        A("s_cmp_ge_u32 s2, 256\ns_cbranch_scc1 L_end")
        A("s_load_dwordx16 s[4:19], s[0:1], 0\ns_load_dwordx8 s[20:27], s[0:1], 64")
        A("v_lshrrev_b32 v2, 6, v0\nv_and_b32 v1, 63, v0\nv_readfirstlane_b32 s%d, v2" % sW8)
        if s.o["stamps"]: A("v_mov_b32 v255, 0\ns_memtime s[%d:%d]\ns_waitcnt lgkmcnt(0)\nv_writelane_b32 v255, s%d, 60" % (sTS, sTS + 1, sTS))
        A("s_and_b32 s%d, s2, 7\ns_lshr_b32 s%d, s2, 3" % (sC, sIDX))
        if s.o["sfirst"]: A("s_add_u32 s%d, s%d, 28\ns_and_b32 s%d, s%d, 31" % (sIDX, sIDX, sIDX, sIDX))
        A("s_and_b32 s%d, s%d, 3\ns_and_b32 s%d, s%d, 6\ns_lshl_b32 s%d, s%d, 1\ns_add_u32 s%d, s%d, s%d" % (sMI, sIDX, sT0, sC, sT0, sT0, sMI, sMI, sT0))
        A("s_and_b32 s%d, s%d, 1\ns_mul_i32 s%d, s%d, 7\ns_lshr_b32 s%d, s%d, 2\ns_add_u32 s%d, s%d, s%d" % (sT0, sC, sT0, sT0, sFI, sIDX, sFI, sFI, sT0))
        A("s_and_b32 s%d, s%d, 7\ns_and_b32 s%d, s%d, 6\ns_lshl_b32 s%d, s%d, 2\ns_add_u32 s%d, s%d, s%d" % (sM2, sIDX, sT0, sC, sT0, sT0, sM2, sM2, sT0))
        A("s_and_b32 s%d, s%d, 1\ns_lshl_b32 s%d, s%d, 2\ns_lshr_b32 s%d, s%d, 3\ns_add_u32 s%d, s%d, s%d" % (sT0, sC, sT0, sT0, sN2, sIDX, sN2, sN2, sT0))
        A("s_cmp_lt_u32 s%d, 28\ns_cselect_b32 s%d, 1, 0" % (sIDX, sISB))
        A("s_and_b32 s%d, s%d, 3" % (sW4, sW8))
        A("s_lshl_b32 s%d, s%d, 5\ns_add_u32 s%d, s%d, s%d" % (sSLOT, sC, sSLOT, sSLOT, sIDX))
        A("s_cmp_ge_u32 s%d, 4\ns_cbranch_scc1 L_helper" % sW8)
        s.mfma_waves()
        A("L_helper:")
        s.helper_waves()
        s.tail()
        s.spare_m()
        s.spare_h()
        A("L_end:")
        return s

    def mfma_waves(s):
        A = s.A
        o = s.o
        nkv = o["nt_kv"]
        s.stamp("m", "start")
        A("v_lshrrev_b32 v184, 3, v1\nv_and_b32 v191, 7, v1\nv_lshlrev_b32 v184, 10, v184\nv_lshl_add_u32 v184, v191, 4, v184")
        A("s_lshl_b32 s%d, s%d, 16\ns_lshl_b32 s%d, s%d, 14\ns_add_u32 s%d, s%d, s%d" % (sT0, sIDX, sT1, sW4, sT0, sT0, sT1))
        A("s_lshl_b32 s%d, s%d, 7\ns_add_u32 s%d, s%d, s%d" % (sT1, sC, sT0, sT0, sT1))
        A("v_add_u32 v184, s%d, v184\nv_subrev_u32 v185, 0x2000, v184" % sT0)
        A("s_mul_i32 s%d, s%d, 5120\ns_add_u32 s%d, s%d, %d" % (sLB, sW4, sLB, sLB, KV))
        A("s_lshl_b32 s%d, s%d, 9\nv_lshl_add_u32 v186, v1, 3, s%d" % (sT1, sC, sT1))
        A("s_lshl_b32 s%d, s%d, 2" % (sT1, sSLOT))
        if o["prio"]: A("s_setprio %d" % o["prio"])
        A("s_mov_b32 m0, s%d\ns_movk_i32 s%d, 0x1c00" % (sLB, sT2))
        A("s_waitcnt lgkmcnt(0)")
        s.srd(rA, sK, 2 << 20)
        A("buffer_load_dwordx4 v185, %s, 0 offen %s lds" % (SR(rA), nkv))
        A("s_add_u32 m0, s%d, 1024" % sLB)
        s.srd(rB, sV, 2 << 20)
        A("buffer_load_dwordx4 v184, %s, 0 offen %s lds" % (SR(rA), nkv))
        A("buffer_load_dwordx4 v184, %s, s%d offen offset:1024 %s lds" % (SR(rA), sT2, nkv))
        s.srd(rC, sSK, 4096)
        A("buffer_load_dwordx2 v[188:189], v186, %s, 0 offen" % SR(rC))
        A("s_add_u32 m0, s%d, 3072" % sLB)
        A("s_load_dword s%d, s[%d:%d], s%d" % (sDV, sD, sD + 1, sT1))
        A("buffer_load_dwordx4 v184, %s, 0 offen %s lds" % (SR(rB), nkv))
        A("buffer_load_dwordx4 v184, %s, s%d offen offset:1024 %s lds" % (SR(rB), sT2, nkv))
        s.srd(rWS, sWS, WS_SIZE)
        A("v_min_u32 v27, 1, v1\nv_lshlrev_b32 v28, 31, v27\nv_lshlrev_b32 v26, 4, v1")
        ln = s.lab("nonce")
        A("s_xor_b32 s%d, s%d, 3\ns_or_b32 s%d, s2, s%d\ns_cmp_lg_u32 s%d, 0\ns_cbranch_scc1 %s" % (sPH, sW4, sPH, sPH, sPH, ln))
        A("s_mov_b32 s%d, 0x%x\ns_load_dwordx2 s[88:89], s[%d:%d], s%d" % (sW2B, WS_NONCE, sWS, sWS + 1, sW2B))
        A("%s:" % ln)
        s.srd(rOUT, sOUT, 2 << 20)
        A("v_bfe_u32 v8, v1, 2, 2\nv_lshrrev_b32 v9, 4, v1\nv_and_b32 v10, 3, v1\nv_and_b32 v20, 15, v1")
        A("v_lshlrev_b32 v187, 7, v8\nv_lshl_add_u32 v187, v9, 5, v187\nv_lshl_add_u32 v187, v10, 3, v187\nv_add_u32 v187, s%d, v187" % sLB)
        A("s_lshl_b32 s%d, s%d, 1\ns_sub_u32 s%d, 6, s%d\nv_xor_b32 v191, s%d, v191\nv_lshlrev_b32 v190, 7, v1" % (sT0, sW4, sT0, sT0, sT0))
        A("v_lshl_add_u32 v190, v191, 4, v190\nv_add_u32 v190, %d, v190\nv_xor_b32 v191, 16, v190" % ROUT)
        A("s_lshr_b32 s%d, s%d, 1\ns_and_b32 s%d, s%d, 1" % (sT0, sW4, sT1, sW4))
        A("v_lshrrev_b32 v21, 1, v20\nv_xor_b32 v21, v21, v9\nv_lshlrev_b32 v22, 7, v20\nv_lshl_add_u32 v12, v21, 4, v22")
        A("s_lshl_b32 s%d, s%d, 12\nv_add_u32 v12, s%d, v12" % (sT2, sW4, sT2))
        A("v_xor_b32 v13, 0x1000, v12\nv_xor_b32 v14, 64, v12\nv_xor_b32 v15, 64, v13")
        A("v_and_b32 v21, 1, v9\nv_lshl_or_b32 v21, v21, 2, v8")
        A("s_lshl_b32 s%d, s%d, 1\ns_add_u32 s%d, s%d, s%d\ns_lshl_b32 s%d, s%d, 1\nv_xor_b32 v21, s%d, v21" % (sT2, sT1, sT2, sT2, sT0, sT2, sT2, sT2))
        A("v_lshl_add_u32 v22, v9, 3, v8\nv_lshlrev_b32 v22, 8, v22\nv_lshl_add_u32 v22, v10, 3, v22\nv_add_u32 v22, 0x4000, v22")
        for ft in range(4):
            A("v_xor_b32 v23, %d, v21\nv_lshl_add_u32 v%d, v23, 5, v22" % (ft, 16 + ft))
        A("s_lshl_b32 s%d, s%d, 1\ns_add_u32 s%d, s%d, s%d\ns_mul_i32 s%d, s%d, 14\ns_add_u32 s%d, s%d, s%d" % (sT2, sMI, sT2, sT2, sT0, sT3, sT2, sT3, sT3, sFI))
        A("s_lshl_b32 s%d, s%d, 3\ns_mul_i32 s%d, s%d, 6\ns_add_u32 s%d, s%d, s%d\ns_add_u32 s%d, s%d, s%d" % (sT3, sT3, sHS, sT1, sT3, sT3, sHS, sT3, sT3, sT0))
        A("s_lshl_b32 s%d, s%d, 11\ns_add_u32 s%d, s%d, 0x%x" % (sT3, sT3, sHS, sT3, WS_H))
        A("s_xor_b32 s%d, s%d, 0x800\ns_xor_b32 s%d, s%d, 0x2000\ns_xor_b32 s%d, s%d, 0x2800" % (sHS + 1, sHS, sHS + 2, sHS, sHS + 3, sHS))
        A("s_lshl_b32 s%d, s%d, 5\ns_and_b32 s%d, s%d, 28\ns_add_u32 s%d, s%d, s%d" % (sFH, sT2, sT3, sIDX, sFH, sFH, sT3))
        A("s_and_b32 s%d, s%d, 1\ns_lshl_b32 s%d, s%d, 1\ns_add_u32 s%d, s%d, s%d\ns_add_u32 s%d, s%d, s%d" % (sT3, sC, sT3, sT3, sFH, sFH, sT3, sFH, sFH, sT1))
        s.flagoff(sFH, WS_FH)
        ONE, SX, SW, CB, CA_, TM = 192, 196, 200, 204, 212, 220
        A("s_lshl_b32 s%d, s%d, 10\ns_add_u32 s%d, s%d, %d\nv_lshl_add_u32 v21, v1, 2, s%d\nv_xor_b32 v22, 0x400, v21\nv_xor_b32 v23, 0x800, v21" % (sT2, sW4, sT2, sT2, XCH, sT2))
        A("v_mov_b32 v24, 0xbb000000\nv_cmp_gt_u32 vcc, 16, v1\nv_lshrrev_b32 v27, 5, v1\nv_bfe_u32 v30, v1, 1, 1\nv_cndmask_b32 v24, 0, v24, vcc")
        A("v_cmp_eq_u32 vcc, v27, v30\nv_mov_b32 v27, 0x3f803f80\nv_and_b32 v30, 1, v1")
        for i in range(4): A("v_cndmask_b32 v%d, 0, v27, vcc" % (ONE + i))
        A("v_mul_u32_u24 v25, 0xaaaa, v30\nv_add_u32 v25, 0x4444, v25\nv_mov_b32 v29, %d" % NONL)
        for i in range(SX, TM): A("v_mov_b32 v%d, 0" % i)
        ACC = 64
        for i in range(64): A("v_mov_b32 v%d, 0" % (ACC + i))
        s.conv_addr(); s.d_addr(); s.tail_addr()
        A("s_mov_b32 s%d, 0\ns_mov_b32 s%d, 0" % (sCNT, sXB))
        ln = s.lab("nonce")
        A("s_cmp_lg_u32 s%d, 0\ns_cbranch_scc1 %s" % (sPH, ln))
        s.srd(rDBG, sDBG, 256)
        A("s_waitcnt lgkmcnt(0)\ns_add_u32 s88, s88, 0x7f4a7c16\ns_addc_u32 s89, s89, 0x9e3779b9\ns_or_b32 s88, s88, 1")
        A("v_mov_b32 v30, s88\nv_mov_b32 v31, s89")
        A("buffer_store_dwordx2 v[30:31], v28, %s, 0 offen sc1" % SR(rDBG))
        A("buffer_store_dwordx2 v[30:31], v28, %s, s%d offen sc1" % (SR(rWS), sW2B))
        A("%s:" % ln)
        s.stamp("m", "pa_in")
        A("s_waitcnt vmcnt(2)")
        s.stamp("m", "k_landed")
        K, V, T, O, U, P = 128, 138, 146, 152, 168, 128
        for G in range(5): A("ds_read_b64_tr_b16 %s, v187 offset:%d" % (R(K + 2 * G, 2), 512 * (G + 1)))
        A("v_alignbyte_b32 v%d, v189, v189, 2" % (T + 0))
        A("v_alignbyte_b32 v%d, v188, v188, 2" % (T + 1))
        A("v_and_b32 v%d, 0xffff0000, v189" % (T + 2))
        A("s_mov_b32 s%d, 0xffff\nv_bfi_b32 v%d, s%d, v189, v188" % (sT0, T + 3, sT0))
        A("v_and_b32 v%d, 0xffff, v188" % (T + 4))
        A("s_waitcnt lgkmcnt(0)")
        for m in range(8):
            A("v_dot2_f32_bf16 v%d, v%d, v%d, 0" % (O + 2 * m, K + m, T + 2))
            A("v_dot2_f32_bf16 v%d, v%d, v%d, 0" % (O + 2 * m + 1, K + m + 1, T + 0))
        for m in range(8):
            A("v_dot2_f32_bf16 v%d, v%d, v%d, v%d" % (O + 2 * m, K + m + 1, T + 3, O + 2 * m))
            A("v_dot2_f32_bf16 v%d, v%d, v%d, v%d" % (O + 2 * m + 1, K + m + 2, T + 1, O + 2 * m + 1))
        A("s_waitcnt vmcnt(0)")
        for G in range(4): A("ds_read_b64_tr_b16 %s, v187 offset:%d" % (R(V + 2 * G, 2), 3072 + 512 * G))
        for m in range(8):
            A("v_dot2_f32_bf16 v%d, v%d, v%d, v%d" % (O + 2 * m, K + m + 2, T + 4, O + 2 * m))
        A("s_waitcnt lgkmcnt(0)")
        for hf in range(2):
            ms_ = range(4, 8) if hf == 0 else range(0, 4)
            for m in ms_:
                A("v_lshlrev_b32 v%d, 16, v%d\nv_and_b32 v%d, 0xffff0000, v%d" % (U + 2 * m, V + m, U + 2 * m + 1, V + m))
            for m in ms_:
                A("v_pk_mul_f32 %s, %s, %s" % (R(O + 2 * m, 2), R(O + 2 * m, 2), R(U + 2 * m, 2)))
            for d in range(4 * hf, 4 * hf + 4):
                A("v_cvt_pk_bf16_f32 v%d, v%d, v%d" % (P + d, O + 15 - 2 * d, O + 14 - 2 * d))
            A("ds_write_b128 v%d, %s" % (190 + hf, R(P + 4 * hf, 4)))
        A("s_cmp_eq_u32 s%d, 0\ns_waitcnt lgkmcnt(0)" % sISB)
        s.stamp("m", "kv_done")
        A("s_barrier")
        A("s_cbranch_scc1 L_spare_m")
        s.stamp("m", "B0")
        FA = [128, 160]; FB = [144, 176]
        def rd(ks, st):
            r = []
            for t in range(4):
                r.append("ds_read_b64_tr_b16 %s, v%d offset:%d" % (R(FA[st] + 4 * t, 2), 16 + t, ks * 8192))
                r.append("ds_read_b64_tr_b16 %s, v%d offset:%d" % (R(FA[st] + 4 * t + 2, 2), 16 + t, ks * 8192 + 1024))
                r.append("ds_read_b128 %s, v%d offset:%d" % (R(FB[st] + 4 * t, 4), 12 + 2 * ks + (t >> 1), (t & 1) * 2048))
            return r
        def mm(st, i, j):
            a = ACC + 4 * (4 * i + j)
            return "v_mfma_f32_16x16x32_bf16 %s, %s, %s, %s" % (R(a, 4), R(FA[st] + 4 * i, 4), R(FB[st] + 4 * j, 4), R(a, 4))
        def sm(st):
            return ["v_smfmac_f32_16x16x64_bf16 %s, %s, %s, v25" % (R(SX, 4), R(ONE, 4), R(FB[st], 8)),
                    "v_smfmac_f32_16x16x64_bf16 %s, %s, %s, v25" % (R(SW, 4), R(ONE, 4), R(FA[st], 8))]
        def mf(st):
            q = sm(st)
            ms = [mm(st, 0, 0), mm(st, 1, 0), mm(st, 0, 1), mm(st, 1, 1), q[0], q[1]]
            ms += [mm(st, i, j) for i, j in ((2, 0), (2, 1), (0, 2), (1, 2), (2, 2), (3, 0), (3, 1), (3, 2), (0, 3), (1, 3), (2, 3), (3, 3))]
            return ms
        need = {0: 3, 1: 6, 6: 9, 11: 12}
        def place(r, g0, dens):
            fill = {}; g = g0; k = 0
            for i, x in enumerate(r):
                fill.setdefault(g, []).append(x); k += 1
                if k >= (2 if i < dens else 1): g += 1; k = 0
            assert max(fill) < 18
            return fill
        def waits(fill, upto=18):
            pre = {}
            for i, n in need.items():
                if i >= upto: continue
                newer = sum(1 for g, v in fill.items() if g < i for x in v if x.startswith("ds_"))
                assert 12 - n + newer < 16
                pre[i] = ["s_waitcnt lgkmcnt(%d)" % (12 - n + newer)]
            return pre
        for x in rd(0, 0): A(x)
        A("L_g1:")
        fill = place(rd(1, 1), o["r1pos"], o["dens1"])
        pre = waits(fill)
        if o["oldw"]: pre = {0: ["s_waitcnt lgkmcnt(0)"]}
        for g, x in enumerate(["s_cmp_eq_u32 s%d, 2" % sXB, "s_cselect_b32 s%d, -2, 1" % sT1, "s_add_u32 s%d, s%d, s%d" % (sXB, sXB, sT1), "s_lshl_b32 s%d, s%d, 15" % (sT1, sT1),
                               "s_add_u32 s%d, s%d, 1" % (sCNT, sCNT), "s_cmp_eq_u32 s%d, 8" % sCNT]): fill.setdefault(g, []).append(x)
        last = max(g for g, v in fill.items() if any(x.startswith("ds_") for x in v))
        upd = ["v_add_u32 v%d, s%d, v%d" % (12 + q, sT1, 12 + q) for q in range(8)]
        g = max(last + 1, 6)
        per = -(-8 // (18 - g))
        for q in range(8): fill.setdefault(g + q // per, []).append(upd[q])
        s.weave(mf(0), fill, pre)
        A("s_cbranch_scc1 L_g1_last")
        bp = o["barpos"]
        fill = place(rd(0, 0), bp, o["dens0"])
        pre = waits({}, bp)
        if o["oldw"]: pre = {0: ["s_waitcnt lgkmcnt(0)"]}
        pre[bp] = ["s_waitcnt lgkmcnt(0)", "s_barrier"]
        if o["stamps"] and o.get("mloop"):
            k = s.nst.setdefault("m", []); b = len(k); k += ["M%da" % q for q in range(1, 8)]
            pre[bp].insert(1, "s_memrealtime s[%d:%d]\ns_add_u32 m0, s%d, %d\ns_waitcnt lgkmcnt(0)\nv_writelane_b32 v255, s%d, m0" % (sTS, sTS + 1, sCNT, b - 1, sTS))
        s.weave(mf(1), fill, pre)
        A("s_branch L_g1")
        A("L_g1_last:")
        order = [(2 * pp + ii, j) for pp in range(2) for j in range(4) for ii in range(2)]
        ms = sm(1) + [mm(1, i, j) for i, j in order]
        cr = s.conv_reads(0, 0)
        cra = [x for x in cr if "v4 " in x]; crb = [x for x in cr if "v5 " in x]
        alate = "c" in o["ord"].split("|")[9] or "d" in o["ord"].split("|")[9] or "c" in o["ord"].split("|")[8]
        s.alate = alate
        if alate: cra = [""] * 16; crb = cr[:o["npre"]]
        s.crb = crb
        a0, a1, b0, b1, t_, u0, u1 = range(TM, TM + 7)
        fill = {0: ["ds_read_b64 v[2:3], v29", cra[0]], 1: cra[1:3], 2: cra[3:5], 3: cra[5:7],
                4: ["v_add_f32 v%d, v%d, v%d" % (a0, SX, SX + 1), "v_add_f32 v%d, v%d, v%d" % (a1, SX + 2, SX + 3)],
                5: ["v_mul_f32 v%d, v24, v%d" % (a0, a0), "v_mul_f32 v%d, v24, v%d" % (a1, a1)],
                6: ["v_add_f32 v%d, v%d, v%d" % (b0, SW, SW + 1), "v_add_f32 v%d, v%d, v%d" % (b1, SW + 2, SW + 3)],
                7: ["v_cvt_pk_bf16_f32 v%d, v%d, v%d" % (CB, a0, a0), "v_cvt_pk_bf16_f32 v%d, v%d, v%d" % (CB + 2, a1, a1)],
                8: ["v_cvt_pk_bf16_f32 v%d, v%d, v%d" % (t_, b0, b1), "ds_write2st64_b32 v21, v%d, v%d offset0:0 offset1:1" % (CB, CB + 2)],
                9: ["v_lshlrev_b32 v%d, 16, v%d" % (u0, t_), "v_and_b32 v%d, 0xffff0000, v%d" % (u1, t_)],
                10: ["v_sub_f32 v%d, v%d, v%d" % (u0, b0, u0), "v_sub_f32 v%d, v%d, v%d" % (u1, b1, u1)],
                11: ["v_cvt_pk_bf16_f32 v%d, v%d, v%d" % (CA_, b0, u0), "v_cvt_pk_bf16_f32 v%d, v%d, v%d" % (CA_ + 2, b1, u1)],
                12: ["ds_write2st64_b32 v21, v%d, v%d offset0:2 offset1:3" % (CA_, CA_ + 2), cra[7]],
                13: cra[8:10], 14: cra[10:12],
                16: ["s_waitcnt lgkmcnt(0)", s.stamp_s("m", "B8a"), "s_barrier", s.stamp_s("m", "B8")],
                17: ["ds_read_b32 v%d, v22" % (CB + 4), "ds_read_b32 v%d, v22 offset:256" % (CB + 6)]}
        pre = {0: ["s_waitcnt lgkmcnt(0)"]}
        if alate:
            pre = {0: ["s_waitcnt lgkmcnt(6)"], 6: ["s_waitcnt lgkmcnt(3)"], 8: ["s_waitcnt lgkmcnt(0)"]}
            fill[13] = [fill[0][0]]
            fill[0] = ["s_nop 1"]; fill[1] = ["s_nop 1"]; fill[2] = ["s_nop 1"]; fill[3] = ["s_nop 1"]
            bb = o["b8pos"]
            if bb != 16:
                fill[bb] = fill.get(bb, []) + fill.pop(16); fill[bb + 1] = fill.get(bb + 1, []) + fill.pop(17)
        s.weave(ms, fill, pre)
        s.stamp("m", "g1_done")
        HP = 48
        def cm(n, ii):
            pp, j = n >> 2, n & 3
            i = 2 * pp + ii
            a = ACC + 4 * (4 * i + j)
            return "v_mfma_f32_16x16x16bf16_1k %s, %s, %s, %s" % (R(a, 4), R(CA_ + 2 * i, 2), R(CB + 2 * j, 2), R(a, 4))
        A(cm(0, 0)); A("ds_read_b32 v%d, v23 offset:512\nds_read_b32 v%d, v23 offset:768" % (CA_ + 4, CA_ + 6))
        A(cm(0, 1)); A(cra[12]); A(cra[13])
        if alate: A("s_nop 1")
        A(cm(1, 0)); A(cra[14]); A(cra[15])
        A(cm(1, 1)); A("s_waitcnt lgkmcnt(%d)" % (0 if alate else 4))
        rest = []
        rchk = o["rchk"]
        def rcheck():
            l0, l1 = s.lab("rl"), s.lab("rd")
            A("s_mov_b32 s%d, 0\n%s:\ns_waitcnt lgkmcnt(0)\nv_readfirstlane_b32 s%d, v27" % (sT3, l0, sT0))
            A("s_add_u32 s%d, s%d, 1\ns_cmp_ge_u32 s%d, 4\ns_cbranch_scc1 %s" % (sT3, sT3, sT0, l1))
            A("s_cmp_gt_u32 s%d, 0x%x\ns_cbranch_scc1 %s\nds_read_b32 v27, v29 offset:8\ns_branch %s\n%s:" % (sT3, 16 * o["spin"], l1, l0, l1))
            s.stamp("m", "rchk")
        s.rcheck = rcheck
        for n in range(8):
            pp, j = n >> 2, n & 3
            hp = HP + 4 * (n & 3)
            if n == rchk: rcheck(); rest = list(crb)
            if n == rchk - 1: A("ds_read_b32 v27, v29 offset:8")
            v = []
            for ii in range(2):
                a = ACC + 4 * (4 * (2 * pp + ii) + j)
                for u in range(2): v.append("v_cvt_pk_bf16_f32 v%d, v%d, v%d" % (hp + 2 * ii + u, a + 2 * u, a + 2 * u + 1))
            for d in range(4): v.append("v_pk_max_i16 v%d, v%d, 0" % (hp + d, hp + d))
            if n + 2 < 8:
                v.insert(0, cm(n + 2, 0)); v.insert(5, cm(n + 2, 1))
            for x in v: A(x)
            A("buffer_store_dwordx4 %s, v26, %s, s%d offen offset:%d sc1" % (R(hp, 4), SR(rWS), sHS + 2 * (j >> 1) + pp, (j & 1) * 1024))
            k = -(-len(rest) // (8 - n))
            for x in rest[:k]: A(x)
            rest = rest[k:]
        s.stamp("m", "h_stored")
        if rchk == 8:
            A("L_m_rchk:")
            rcheck()
            for x in crb: A(x)
        A("L_m_conv:")
        s.stamp("m", "conv0")
        DA, WF, HR = 64, 96, 152
        dp = o["depth"]; NB = dp + 1
        ysp = o["ysplit"]
        sE, sRDY = 90, 93
        def hfirst(va):
            return ["buffer_load_dwordx4 %s, v%d, %s, s%d offen offset:%d sc1" % (R(HR + 8 * stp + 4 * t, 4), va, SR(rWS), sE + (stp >> 1), (stp & 1) * 2048 + t * 1024) for stp in range(ysp) for t in range(2)]
        CA = 64
        cnt = 0
        for jj in range(4):
            st = jj & 1
            ms = []
            for J in range(8):
                for ct in range(J, 8):
                    a = CA + 4 * ct
                    c = "0" if (jj == 0 and J == 0) else R(a, 4)
                    ms.append("v_mfma_f32_16x16x32_bf16 %s, %s, %s, %s" % (R(a, 4), R(s.cA(st, J), 4), R(s.cB(st, ct - J), 4), c))
            pre = {}
            if jj == 0 and not alate:
                for m in range(8): pre[m] = ["s_waitcnt lgkmcnt(%d)" % (7 - m)]
            elif jj: A("s_waitcnt lgkmcnt(0)")
            fill = {}
            if jj == 0 and alate:
                r = cr[o["npre"]:] + s.conv_reads(1, 1)
                g = 0; pos = []
                for i, x in enumerate(r):
                    fill.setdefault(g, []).append(x); pos.append(g)
                    if len(fill[g]) >= (2 if len(r) - i > 30 - g else 1): g += 1
                done = 0; i = 0
                for J in range(8):
                    for ct in range(J, 8):
                        nd = max(2 + (ct - J) + 1, 10 + 2 * J if J else 0)
                        issued = o["npre"] + sum(1 for q in pos if q < i)
                        assert nd <= issued
                        if nd > done:
                            w = min(14, issued - nd); done = issued - w
                            pre[i] = ["s_waitcnt lgkmcnt(%d)" % w]
                        i += 1
            elif jj < 3:
                r = s.conv_reads(jj + 1, 1 - st)
                for i, x in enumerate(r): fill[i + (8 if jj == 0 else 0)] = [x]
            else:
                for e in range(4): fill[e] = ["ds_read_b64 %s, v6 offset:%d" % (R(128 + 2 * e, 2), 512 * (3 - e))]
                fill[12] = ["s_waitcnt lgkmcnt(0)"]
                for e in range(4):
                    k = 128 + 2 * e; u = 136 + 4 * e
                    fill[13 + 2 * e] = ["v_and_b32 v%d, 0xffff0000, v%d\nv_lshlrev_b32 v%d, 16, v%d" % (u, k + 1, u + 1, k + 1)]
                    fill[14 + 2 * e] = ["v_and_b32 v%d, 0xffff0000, v%d\nv_lshlrev_b32 v%d, 16, v%d" % (u + 2, k, u + 3, k)]
                fill[22] = ["s_bitcmp1_b32 s%d, 1\ns_cselect_b32 s%d, 0, 16" % (sW4, sT0)]
                fill[23] = ["s_lshl_b32 s%d, s%d, s%d\ns_and_b32 s%d, s%d, 0xffff0000" % (sT0, sDV, sT0, sDV, sT0)]
                fill[35] = ["s_bitcmp1_b32 s%d, 0" % sW4]
                fill[4] = ["s_mov_b32 s%d, s%d\ns_add_u32 s%d, s%d, 4096" % (sE, sHB, sE + 1, sHB)]
                fill[5] = ["s_add_u32 s%d, s%d, 16384\ns_add_u32 s%d, s%d, %d" % (sE + 2, sHB, sHB, sHB, [0, 4096, 16384][ysp >> 1])]
                e0 = o["early"]
                if e0:
                    assert ysp <= 5 and (e0 >= 13 or e0 == 4)
                    e1 = 12 if e0 == 4 else e0 + 5
                    fill.setdefault(e0, []).append("ds_read_b32 v27, v29 offset:12")
                    fill.setdefault(e1, []).append("s_waitcnt lgkmcnt(0)\nv_readfirstlane_b32 s%d, v27\nv_or_b32 v27, v27, v26" % sRDY)
                    e2 = max(e1 + 1, o["epos"])
                    for q, x in enumerate(hfirst(27)): fill.setdefault(min(35, e2 + q), []).append(x)
            for i in range(36):
                if cnt + i == o["hflag_at"]:
                    assert jj < 3 or i < 22
                    l = s.lab("hf")
                    fill.setdefault(i, []).append("s_cmp_eq_u32 s%d, 0\ns_cbranch_scc1 %s\ns_waitcnt vmcnt(0)\n" % (sISB, l) +
                                                  "buffer_store_dwordx2 v[2:3], v28, %s, s%d offen sc1\n" % (SR(rWS), sFH) + s.stamp_s("m", "hflag") + "\n%s:" % l)
            cnt += 36
            s.weave(ms, fill, pre)
        s.stamp("m", "conv_done")
        A("s_cbranch_scc1 L_cx1")
        for i in range(9): A("v_fmac_f32 v%d, s%d, v%d" % (CA + i, sDV, 136 + i))
        for q in range(4): A("ds_write_b128 v7, %s offset:%d" % (R(CA + 16 + 4 * q, 4), 1024 * q))
        for i in range(9, 16): A("v_fmac_f32 v%d, s%d, v%d" % (CA + i, sDV, 136 + i))
        A("s_branch L_cx2")
        A("L_cx1:")
        for q in range(4): A("ds_write_b128 v7, %s offset:%d" % (R(CA + 4 * q, 4), 1024 * q))
        A("s_nop 1")
        for i in range(16): A("v_fma_f32 v%d, s%d, v%d, v%d" % (CA + i, sDV, 136 + i, CA + 16 + i))
        A("L_cx2:")
        A("s_waitcnt lgkmcnt(0)")
        s.stamp("m", "BC2a")
        A("s_barrier")
        s.stamp("m", "BC2")
        vm = VM(s)
        assert HR + 8 * NB <= 255 and dp + 2 <= 11
        def wrd(stp):
            j, ks = stp >> 2, stp & 3
            hi = j in (0, 3, 4)
            off = (32768 if j in (2, 3, 6) else 0) + ks * 4096
            r = []
            for i in range(4):
                for hh in range(2):
                    r.append("ds_read_b64_tr_b16 %s, v%d offset:%d" % (R(WF + 16 * (stp & 1) + 4 * i + 2 * hh, 2), (36 if hi else 32) + i, off + hh * 2048))
            return r
        def hld(stp):
            b = HR + 8 * (stp % NB)
            r = ["buffer_load_dwordx4 %s, v26, %s, s%d offen offset:%d sc1" % (R(b + 4 * t, 4), SR(rWS), sHB, (stp & 1) * 2048 + t * 1024) for t in range(2)]
            if stp & 1 and stp < 27: r.append("s_add_u32 s%d, s%d, %d" % (sHB, sHB, 12288 if stp & 2 else 4096))
            return r
        A("ds_read_b32 v47, v47")
        for e in range(4): A("ds_read_b128 %s, v8 offset:%d" % (R(CA + 16 + 4 * e, 4), 1024 * e))
        if o["early"]: A("s_cmp_eq_u32 s%d, 0\ns_cbranch_scc1 L_h_early" % sRDY)
        for x in hfirst(26): A(x)
        A("L_h_early:")
        for stp in range(ysp): vm.add("h%d" % stp, 2)
        for pp in range(2):
            A("s_waitcnt lgkmcnt(%d)" % (2 - 2 * pp))
            for i in range(4):
                a = CA + 8 * pp + 2 * i
                A("v_pk_add_f32 %s, %s, %s" % (R(a, 2), R(a, 2), R(a + 16, 2)))
            for i in range(4):
                a = CA + 8 * pp + 2 * i
                A("v_cvt_pk_bf16_f32 v%d, v%d, v%d" % (HP + 4 * pp + i, a, a + 1))
            A("buffer_store_dwordx4 %s, v10, %s, s%d offen sc1" % (R(HP + 4 * pp, 4), SR(rWS), sY1 if pp else sY0)); vm.add("y")
        s.stamp("m", "y_stored")
        for x in wrd(0): A(x)
        for stp in range(ysp, dp):
            for x in hld(stp): A(x)
            vm.add("h%d" % stp, 2)
        lx = 3 if o["nreg"] == 4 else 4
        bars = (0, 1, 2, lx)
        prevbar = False
        for stp in range(28):
            j, ks = stp >> 2, stp & 3
            bar = ks == 3 and j in bars
            ms = []
            for i in range(4):
                for tj in range(2):
                    a = DA + 4 * (2 * i + tj)
                    c = "0" if stp == 0 else R(a, 4)
                    ms.append("v_mfma_f32_16x16x32_bf16 %s, %s, %s, %s" % (R(a, 4), R(WF + 16 * (stp & 1) + 4 * i, 4), R(HR + 8 * (stp % NB) + 4 * tj, 4), c))
            pre, fill = {}, {}
            nxt = wrd(stp + 1) if stp < 27 else []
            pre[0] = ["s_waitcnt vmcnt(%d) lgkmcnt(4)" % vm.n("h%d" % stp)]
            if stp == 0: pre[0].append(s.stamp_s("m", "h0"))
            if bar:
                pre[2] = ["s_waitcnt lgkmcnt(0)\n" + s.stamp_s("m", "X%da" % j) + "\ns_barrier\n" + s.stamp_s("m", "X%d" % j)]
                for q, g_ in enumerate((2, 2, 3, 3, 4, 5, 6, 7)): fill.setdefault(g_, []).append(nxt[q])
                lp = (0, 5, 7)
            elif nxt:
                for q in range(8): fill[q] = [nxt[q]]
                pre[4] = ["s_waitcnt lgkmcnt(4)"]
                lp = (1, 5, 6)
            else:
                pre[4] = ["s_waitcnt lgkmcnt(0)"]
            if stp == ysp:
                fill.setdefault(2 if not bar else 1, []).append("buffer_store_dwordx2 v[2:3], v28, %s, s%d offen sc1" % (SR(rWS), sFY))
                yf = True
            else: yf = False
            if stp + dp < 28:
                l = hld(stp + dp)
                for q, x in enumerate(l): fill.setdefault(lp[q], []).append(x)
                vm.add("h%d" % (stp + dp))
                if yf: vm.add("fy")
                vm.add("h%d" % (stp + dp))
            s.weave(ms, fill, pre)
        s.stamp("m", "g2_done")
        for i in range(4):
            for tj in range(2):
                a = DA + 4 * (2 * i + tj)
                p = WF + 2 * (2 * i + tj)
                for u in range(2):
                    A("v_cvt_pk_bf16_f32 v%d, v%d, v%d" % (p + u, a + 2 * u, a + 2 * u + 1))
                A("ds_write_b64 v%d, %s offset:%d" % (40 + i, R(p, 2), tj * 2048))
        if o["inl"]: s.tail(False)
        else: A("s_branch L_tail")

    def cA(s, st, J): return (128 + 4 * J) if st == 0 else (192 + 4 * J)
    def cB(s, st, m): return (160 + 4 * m) if st == 0 else (96 + 4 * m)

    def conv_addr(s):
        A = s.A
        A("v_and_b32 v27, 3, v20\nv_sub_u32 v27, 3, v27\nv_mul_u32_u24 v27, 4160, v27")
        A("v_lshrrev_b32 v4, 2, v20\nv_lshl_add_u32 v4, v4, 3, v27\nv_lshl_add_u32 v4, v9, 4, v4")
        A("s_lshr_b32 s%d, s%d, 1\ns_and_b32 s%d, s%d, 1\n" % (sT0, sW4, sT1, sW4) +
          "s_mul_i32 s%d, s%d, 16640\ns_lshl_b32 s%d, s%d, 8\ns_add_u32 s%d, s%d, s%d\ns_add_u32 s%d, s%d, %d\n" % (sT2, sT0, sT3, sT1, sT2, sT2, sT3, sT2, sT2, HC + 8) +
          "v_add_u32 v4, s%d, v4" % sT2)
        A("s_mul_i32 s%d, s%d, 4608\ns_add_u32 s%d, s%d, s%d\ns_add_u32 s%d, s%d, %d\n" % (sT2, sT0, sT3, sT3, sT2, sT3, sT3, RB + 4064 - 3584) +
          "v_lshlrev_b32 v27, 5, v20\nv_lshlrev_b32 v5, 4, v9")
        A("v_sub_u32 v5, v5, v27\nv_add_u32 v5, s%d, v5" % sT3)
        A("s_lshl_b32 s%d, s%d, 11\ns_sub_u32 s%d, s%d, s%d\ns_add_u32 s%d, s%d, %d\n" % (sT3, sT1, sT2, sT2, sT3, sT2, sT2, RB + 4088 - 1536) +
          "v_lshl_add_u32 v6, v9, 3, v27\nv_sub_u32 v6, s%d, v6" % sT2)
        A("s_lshl_b32 s%d, s%d, 12\ns_add_u32 s%d, s%d, %d\nv_lshl_add_u32 v7, v1, 4, s%d\nv_xor_b32 v8, 0x1000, v7" % (sT2, sW4, sT2, sT2, RED, sT2))
        A("v_lshrrev_b32 v10, 3, v20\nv_lshl_add_u32 v10, v9, 1, v10")
        A("v_lshlrev_b32 v10, 16, v10\nv_and_b32 v27, 7, v20")
        A("v_lshl_add_u32 v10, v27, 4, v10")

    def conv_reads(s, jj, st):
        def a(J, h): return "ds_read_b64 %s, v4 offset:%d" % (R(s.cA(st, J) + 2 * h, 2), 512 * J + 64 * jj + 8 * h)
        def b(m): return "ds_read_b128 %s, v5 offset:%d" % (R(s.cB(st, m), 4), 512 * (7 - m) + 64 * jj)
        o = [a(0, 0), a(0, 1)] + [b(m) for m in range(8)]
        for J in range(1, 8): o += [a(J, 0), a(J, 1)]
        return o

    def d_addr(s):
        A = s.A
        A("s_and_b32 s%d, s%d, 1\ns_lshr_b32 s%d, s%d, 1" % (sT1, sW4, sT0, sW4))
        A("v_bfe_u32 v27, v1, 2, 2\nv_lshl_add_u32 v30, v9, 2, v27")
        A("v_bfe_u32 v27, v30, 1, 2\nv_lshlrev_b32 v30, 7, v30")
        A("v_lshl_add_u32 v27, v27, 5, v30\nv_and_b32 v30, 3, v1")
        A("s_lshl_b32 s%d, s%d, 14\nv_lshl_add_u32 v27, v30, 3, v27\nv_add_u32 v32, s%d, v27" % (sT2, sT0, sT2))
        A("v_xor_b32 v33, 32, v32\nv_xor_b32 v34, 64, v32\nv_xor_b32 v35, 0x60, v32")
        for i in range(4): A("v_add_u32 v%d, 0x10000, v%d" % (36 + i, 32 + i))
        A("v_lshrrev_b32 v40, 1, v9\nv_and_b32 v41, 7, v20\nv_xor_b32 v40, v40, v41")
        A("v_and_b32 v41, 1, v9\nv_lshlrev_b32 v41, 3, v41")
        A("v_lshl_add_u32 v40, v40, 4, v41\nv_lshl_add_u32 v40, v20, 7, v40")
        A("s_lshl_b32 s%d, s%d, 12\ns_add_u32 s%d, s%d, %d\nv_add_u32 v40, s%d, v40\nv_xor_b32 v41, 32, v40" % (sT2, sW4, sT2, sT2, RED, sT2))
        A("v_xor_b32 v42, 64, v40\nv_xor_b32 v43, 0x60, v40")
        A("s_lshl_b32 s%d, s%d, 1\ns_add_u32 s%d, s%d, s%d\ns_mul_i32 s%d, s%d, 14\ns_add_u32 s%d, s%d, s%d" % (sT2, sM2, sT2, sT2, sT0, sT2, sT2, sT2, sT2, sT1))
        A("s_lshl_b32 s%d, s%d, 13\ns_add_u32 s%d, s%d, 0x%x" % (sHB, sT2, sHB, sHB, WS_H))
        A("s_lshl_b32 s%d, s%d, 1\ns_add_u32 s%d, s%d, s%d\ns_lshl_b32 s%d, s%d, 9\ns_add_u32 s%d, s%d, s%d" % (sT2, sSLOT, sT2, sT2, sT0, sFY, sT1, sFY, sFY, sT2))
        s.flagoff(sFY, WS_FY)
        A("s_lshl_b32 s%d, s%d, 7\ns_lshl_b32 s%d, s%d, 20\ns_add_u32 s%d, s%d, s%d\ns_add_u32 s%d, s%d, 0x%x\ns_add_u32 s%d, s%d, 0x80000" % (sT2, sT2, sT3, sT1, sT2, sT2, sT3, sY0, sT2, WS_Y, sY1, sY0))

    def tail_addr(s):
        A = s.A
        A("s_lshl_b32 s%d, s%d, 10\ns_add_u32 s%d, s%d, %d\nv_lshl_add_u32 v44, v1, 4, s%d" % (sT0, sW8, sT1, sT0, XT, sT1))
        A("v_lshrrev_b32 v45, 3, v1\nv_and_b32 v46, 7, v1")
        A("v_xor_b32 v47, v45, v46\nv_lshlrev_b32 v45, 7, v45")
        A("s_add_u32 s%d, s%d, %d\nv_lshl_add_u32 v45, v47, 4, v45\nv_add_u32 v45, s%d, v45" % (sT1, sT0, RED, sT1))
        A("v_lshrrev_b32 v47, 5, v1\nv_lshlrev_b32 v47, 18, v47")
        A("v_lshl_add_u32 v46, v46, 4, v47\nv_bfe_u32 v47, v1, 3, 2")
        A("v_lshl_add_u32 v46, v47, 10, v46\n" + s.tokbase(sOB, sM2, sT1))
        A("s_lshl_b32 s%d, s%d, 4\ns_add_u32 s%d, s%d, s%d\ns_lshl_b32 s%d, s%d, 10\ns_lshl_b32 s%d, s%d, 7\ns_add_u32 s%d, s%d, s%d" % (sT1, sW8, sOB, sOB, sT1, sOB, sOB, sT1, sN2, sOB, sOB, sT1))
        A("s_lshl_b32 s%d, s%d, 6\ns_add_u32 s%d, s%d, %d\nv_and_b32 v47, 0x38, v1\nv_add_u32 v47, s%d, v47" % (sT1, sW8, sT1, sT1, STL + 4, sT1))
        A("s_lshl_b32 s%d, s%d, 9\ns_add_u32 s%d, s%d, 0x%x" % (sST, sM2, sST, sST, WS_ST))

    def tail(s, lab=True):
        A = s.A
        if lab: A("L_tail:")
        A("s_waitcnt vmcnt(0) lgkmcnt(0)")
        if s.o["stamps"]:
            if lab: s.nst["m"].append("DEa"); s.nst["h"].append("DEa")
            A("s_memrealtime s[%d:%d]\ns_waitcnt lgkmcnt(0)\nv_writelane_b32 v255, s%d, 62" % (sTS, sTS + 1, sTS))
        A("s_barrier")
        A("ds_read_b128 v[68:71], v45\nds_read_b128 v[72:75], v45 offset:8192\nds_read_b128 v[64:67], v44")
        for t in (1, 2, 0):
            A("s_waitcnt lgkmcnt(%d)" % ((3 - t) % 3))
            for d in range(4):
                A("v_lshlrev_b32 v%d, 16, v%d\nv_and_b32 v%d, 0xffff0000, v%d" % (80 + 8 * t + 2 * d, 64 + 4 * t + d, 81 + 8 * t + 2 * d, 64 + 4 * t + d))
            if t == 2:
                for d in range(4): A("v_pk_add_f32 %s, %s, %s" % (R(88 + 2 * d, 2), R(88 + 2 * d, 2), R(96 + 2 * d, 2)))
        for d in range(4): A("v_pk_fma_f32 %s, %s, v[46:47], %s op_sel:[0,1,0] op_sel_hi:[1,1,1]" % (R(80 + 2 * d, 2), R(88 + 2 * d, 2), R(80 + 2 * d, 2)))
        for d in range(4): A("v_cvt_pk_bf16_f32 v%d, v%d, v%d" % (64 + d, 80 + 2 * d, 81 + 2 * d))
        A("buffer_store_dwordx4 v[64:67], v46, %s, s%d offen %s" % (SR(rOUT), sOB, s.o["outsc"]))
        if s.o["stamps"]:
            if lab: s.nst["m"].append("end"); s.nst["h"].append("end")
            A("s_memrealtime s[%d:%d]\ns_waitcnt lgkmcnt(0)\nv_writelane_b32 v255, s%d, 63" % (sTS, sTS + 1, sTS))
            A("s_memtime s[%d:%d]\ns_waitcnt lgkmcnt(0)\nv_writelane_b32 v255, s%d, 61" % (sTS, sTS + 1, sTS))
        s.stamp_out()
        A("s_endpgm")

    def spare_m(s):
        A = s.A
        o = s.o
        A("L_spare_m:")
        A("s_setprio 0")
        s.srd(rA, sH, 2 << 20); s.srd(rB, sW2, 1792 * 1024)
        A("v_lshlrev_b32 v128, 7, v1\nv_lshrrev_b32 v129, 2, v1\nv_and_b32 v130, 3, v1\nv_lshlrev_b32 v129, 10, v129\nv_lshl_add_u32 v129, v130, 7, v129")
        def item(ch):
            if ch == "H":
                A("s_and_b32 s%d, s%d, 3\ns_lshl_b32 s%d, s%d, 2\ns_add_u32 s%d, s%d, s%d\ns_lshl_b32 s%d, s%d, 2\ns_add_u32 s%d, s%d, s%d" % (sT0, sIDX, sT1, sC, sT0, sT0, sT1, sT0, sT0, sT0, sT0, sW4))
                A("s_lshl_b32 s%d, s%d, 14\ns_add_u32 s%d, s%d, 8192" % (sT0, sT0, sT1, sT0))
                A("buffer_load_dword v132, v128, %s, s%d offen %s\nbuffer_load_dword v133, v128, %s, s%d offen %s" % (SR(rA), sT0, o["pH"], SR(rA), sT1, o["pH"]))
            elif ch == "U":
                A("s_and_b32 s%d, s%d, 3\ns_and_b32 s%d, s%d, 6\ns_lshl_b32 s%d, s%d, 1\ns_add_u32 s%d, s%d, s%d\ns_lshl_b32 s%d, s%d, 2\ns_add_u32 s%d, s%d, s%d" % (sT0, sIDX, sT1, sC, sT1, sT1, sT0, sT0, sT1, sT0, sT0, sT0, sT0, sW4))
                A("s_mul_i32 s%d, s%d, 56\ns_and_b32 s%d, s%d, 1\ns_add_u32 s%d, s%d, s%d\ns_lshl_b32 s%d, s%d, 9\ns_add_u32 s%d, s%d, 12288" % (sT0, sT0, sT1, sC, sT0, sT0, sT1, sT0, sT0, sT1, sT0))
                A("buffer_load_dword v134, v129, %s, s%d offen\nbuffer_load_dword v135, v129, %s, s%d offen" % (SR(rB), sT0, SR(rB), sT1))
            elif ch == "V" or ch.isdigit():
                A("s_and_b32 s%d, s%d, 1\ns_lshl_b32 s%d, s%d, 2\ns_add_u32 s%d, s%d, s%d\ns_lshl_b32 s%d, s%d, 14" % (sT0, sIDX, sT0, sT0, sT0, sT0, sW4, sT0, sT0))
                A("s_bfe_u32 s%d, s%d, 0x10001\ns_mul_i32 s%d, s%d, %d\ns_add_u32 s%d, s%d, s%d" % (sT1, sIDX, sT1, sT1, 896 * 1024, sT0, sT0, sT1))
                A("s_and_b32 s%d, s%d, 1\ns_lshl_b32 s%d, s%d, 9\ns_add_u32 s%d, s%d, s%d" % (sT1, sC, sT1, sT1, sT0, sT0, sT1))
                for j in (range(7) if ch == "V" else [int(ch)]):
                    A("s_add_u32 s%d, s%d, %d\nbuffer_load_dword v%d, v129, %s, s%d offen %s" % (sT1, sT0, j * 131072, 136 + j, SR(rB), sT1, o["pV"]))
            elif ch == "w": A("s_waitcnt vmcnt(0)")
        a, b = o["sord"].split("|")
        for ch in a: item(ch)
        s.stamp("m", "S1a")
        A("s_barrier")
        for ch in b: item(ch)
        s.stamp("m", "S2a")
        A("s_barrier")
        if o["prio"]: A("s_setprio %d" % o["prio"])
        A("s_waitcnt vmcnt(0)")
        cr = s.conv_reads(0, 0)
        A("ds_read_b64 v[2:3], v29")
        for x in cr:
            if "v4 " in x and not s.alate: A(x)
        A("ds_read_b32 v27, v29 offset:8")
        if o["rchk"] == 8: A("s_branch L_m_rchk")
        else:
            s.rcheck()
            for x in s.crb: A(x)
            A("s_branch L_m_conv")

    def spare_h(s):
        A = s.A
        o = s.o
        XR, SUM = 128, 100
        vm = VM(s)
        A("L_spare_h0:")
        A("v_lshrrev_b32 v112, 5, v1\nv_bfe_u32 v113, v1, 3, 2\nv_lshl_add_u32 v112, v112, 8, v113\nv_and_b32 v114, 7, v1")
        A("v_lshlrev_b32 v112, 10, v112\nv_lshl_add_u32 v112, v114, 4, v112")
        A("s_and_b32 s%d, s%d, 3\ns_lshl_b32 s%d, s%d, 2\ns_add_u32 s%d, s%d, s%d" % (sT0, sIDX, sMI, sC, sMI, sMI, sT0))
        A(s.tokbase(sT0, sMI, sT1))
        A("s_lshl_b32 s%d, s%d, 5\ns_add_u32 s%d, s%d, s%d\ns_lshl_b32 s%d, s%d, 10\ns_add_u32 s%d, s%d, 16384" % (sT1, sW4, sT0, sT0, sT1, sT0, sT0, sT1, sT0))
        for b in range(2):
            for j in range(8): A("buffer_load_dwordx4 %s, v112, %s, s%d offen offset:%d" % (R(XR + 32 * b + 4 * j, 4), SR(rA), sT1 if b else sT0, 128 * j)); vm.add("x%d" % (8 * b + j))
        A("s_setprio 1")
        H = s.hitems(vm)
        H["S"](); H["D"]()
        A("s_waitcnt lgkmcnt(0)\ns_barrier")
        s.stamp("h", "B0")
        H["r"](); H["h"]()
        for i in range(8): A("v_mov_b32 v%d, 0" % (SUM + i))
        A("s_mov_b32 s%d, 0x3f803f80" % sT0)
        for b in range(2):
            for j in range(8):
                vm.wait("x%d" % (8 * b + j))
                for d in range(4):
                    x = XR + 32 * b + 4 * j + d
                    A("v_dot2c_f32_bf16 v%d, s%d, v%d" % (SUM + 4 * b + (d & 1), sT0, x))
                    A("v_dot2c_f32_bf16 v%d, v%d, v%d" % (SUM + 4 * b + 2 + (d & 1), x, x))
        H["f"]()
        for b in range(2):
            A("v_add_f32 v%d, v%d, v%d\nv_add_f32 v%d, v%d, v%d" % (SUM + 2 * b, SUM + 4 * b, SUM + 4 * b + 1, SUM + 2 * b + 1, SUM + 4 * b + 2, SUM + 4 * b + 3))
        A("s_nop 0")
        for ctl in ("quad_perm:[1,0,3,2]", "quad_perm:[2,3,0,1]", "row_half_mirror"):
            for i in range(4): A("v_add_f32_dpp v%d, v%d, v%d %s row_mask:0xf bank_mask:0xf" % (SUM + i, SUM + i, SUM + i, ctl))
        A("v_cmp_eq_u32 vcc, 1, v114\nv_lshrrev_b32 v113, 3, v1\nv_lshl_add_u32 v113, v114, 3, v113")
        SQ = SUM + 1
        A("v_cndmask_b32 v%d, v%d, v%d, vcc\nv_cndmask_b32 v%d, v%d, v%d, vcc" % (SUM, SUM, SUM + 2, SQ, SQ, SUM + 3))
        A("v_mul_f32 v%d, 0x3b000000, v%d\nv_mul_f32 v%d, 0x3b000000, v%d" % (SUM, SUM, SQ, SQ))
        A("v_fma_f32 v%d, -v%d, v%d, v%d\nv_max_f32 v%d, 0, v%d" % (SQ, SUM, SUM, SQ, SQ, SQ))
        A("v_cvt_pk_bf16_f32 v%d, v%d, v%d" % (SUM + 2, SUM, SQ))
        A("v_lshlrev_b32 v%d, 16, v%d\nv_and_b32 v%d, 0xffff0000, v%d" % (SUM, SUM + 2, SQ, SUM + 2))
        A("v_add_f32 v%d, 0x3727c5ac, v%d" % (SQ, SQ))
        A("v_cvt_pk_bf16_f32 v%d, v%d, v%d\nv_lshlrev_b32 v%d, 16, v%d\nv_sqrt_f32 v%d, v%d" % (SQ, SQ, SQ, SQ, SQ, SQ, SQ))
        A("v_cmp_gt_u32 vcc, 2, v114\nv_lshlrev_b32 v113, 3, v113\nv_mov_b32 v115, 0x%x" % OOB)
        A("v_cvt_pk_bf16_f32 v%d, v%d, v%d\nv_lshlrev_b32 v%d, 16, v%d\nv_rcp_f32 v%d, v%d" % (SQ, SQ, SQ, SQ, SQ, SQ, SQ))
        A("v_cndmask_b32 v113, v115, v113, vcc")
        A("s_lshl_b32 s%d, s%d, 2\ns_add_u32 s%d, s%d, s%d\ns_lshl_b32 s%d, s%d, 7\ns_add_u32 s%d, s%d, 0x%x" % (sT0, sMI, sT0, sT0, sW4, sT0, sT0, sT0, sT0, WS_ST))
        A("buffer_store_dwordx2 %s, v113, %s, s%d offen sc1" % (R(SUM, 2), SR(rWS), sT0)); vm.add("st")
        A("s_lshl_b32 s%d, s%d, 3\ns_add_u32 s%d, s%d, s%d" % (sMI, sMI, sMI, sMI, sW4))
        s.flagoff(sMI, WS_FS)
        vm.wait("H", extra=" lgkmcnt(0)")
        s.stamp("h", "S1a")
        A("s_barrier")
        H["z"](); H["c"](); H["d"]()
        vm.wait("st")
        A("buffer_store_dwordx2 v[28:29], v27, %s, s%d offen sc1" % (SR(rWS), sMI)); vm.add("fs")
        s.stamp("h", "sflag")
        H["R"]()
        A("s_waitcnt lgkmcnt(0)"); s.stamp("h", "S2a"); A("s_barrier\ns_setprio 0")
        H["n"]()
        for ch in s.prejoin:
            if ch in "wvxu": H[ch]()
        a = [t for t in s.vmjoin if t[0] == "w"]
        assert [t for t in vm.q if t[0] == "w"] == a and (not a or vm.q[-len(a):] == a)
        for t in set(a):
            i = max(k for k, x in enumerate(s.vmjoin) if x == t); j = max(k for k, x in enumerate(vm.q) if x == t)
            if len(s.vmjoin) - i > len(vm.q) - j: A("s_waitcnt vmcnt(0)"); break
        A("s_branch L_h_join")

    def hitems(s, vm):
        A = s.A
        o = s.o
        WREG = 120
        QS = {0: 4, 1: 0, 2: 2, 3: 6, 4: 4, 5: 0, 6: 2}
        nreg = o["nreg"]
        st_ = {"p": False, "S": False, "h": False}
        def stage(k, stream=(), g0=0):
            slot = k % 3
            a, b, c = 0, 1, 3
            if k == 0 or not o["rot"]:
                A("s_add_u32 s%d, s%d, %d\ns_add_u32 s%d, s%d, %d" % (a, sXB, 128 * k, b, sWB, 64 * 3584 * k))
            else:
                A("s_lshl_b32 s%d, s%d, 7\ns_add_u32 s%d, s%d, s%d" % (a, sCNT, a, a, sXB))
                A("s_mul_i32 s%d, s%d, %d\ns_add_u32 s%d, s%d, s%d" % (b, sCNT, 64 * 3584, b, b, sWB))
            stream = list(stream)
            need = True
            for j in range(8):
                if need or j == 4: A("s_add_u32 m0, s%d, %d" % (sLB, slot * 32768 + (j >> 2) * 16384)); need = False
                if j < 4:
                    A("s_add_u32 s%d, s%d, %d" % (c, a, j * (16384 - 1024)))
                    A("buffer_load_dwordx4 v%d, %s, s%d offen offset:%d lds" % (10 + (j & 1), SR(rA), c, j * 1024))
                else:
                    A("s_add_u32 s%d, s%d, %d" % (c, b, (j - 4) * (4 * 3584 - 1024)))
                    A("buffer_load_dwordx4 v%d, %s, s%d offen offset:%d lds" % (12 + ((j - 4) >> 1), SR(rB), c, (j - 4) * 1024))
                vm.add("s%d" % k)
                if j == 0 and 0 < k < 7 and o["rot"]: A("s_cmp_eq_u32 s%d, 7\ns_cselect_b32 s%d, 0, s%d\ns_add_u32 s%d, s%d, 1" % (sCNT, sCNT, sCNT, sCNT, sCNT))
                if g0 <= j < 7:
                    n = -(-len(stream) // (7 - j))
                    for x in stream[:n]:
                        if callable(x): x(); need = True
                        else: A(x)
                    stream = stream[n:]
            assert not stream
        def rout():
            A("ds_read_b128 v[56:59], v18\nds_read_b128 v[60:63], v18 offset:1024")
            A("s_lshl_b32 s%d, s%d, 2\ns_add_u32 s%d, s%d, s%d\ns_lshl_b32 s%d, s%d, 5\ns_sub_u32 s%d, 31, s%d" % (sT0, sC, sT0, sT0, sW4, sFH, sT0, sT1, sIDX))
            A("s_add_u32 s%d, s%d, s%d\ns_lshl_b32 s%d, s%d, 16\ns_lshl_b32 s%d, s%d, 7\ns_add_u32 s%d, s%d, s%d\ns_add_u32 s%d, s%d, 0x8000" % (sFH, sFH, sT1, sT0, sT0, sT1, sT1, sT0, sT0, sT1, sT1, sT0))
            s.flagoff(sFH, WS_FA)
            A("s_waitcnt lgkmcnt(1)\nbuffer_store_dwordx4 v[56:59], v19, %s, s%d offen sc1" % (SR(rWS), sT0))
            A("s_waitcnt lgkmcnt(0)\nbuffer_store_dwordx4 v[60:63], v19, %s, s%d offen sc1" % (SR(rWS), sT1))
            vm.add("r", 2)
            s.nonce_issue(vm)
        def flag_a():
            A("v_mov_b32 v3, %d" % NONL)
            s.nonce_check(vm)
            A("buffer_store_dwordx2 v[28:29], v27, %s, s%d offen sc1" % (SR(rWS), sFH)); vm.add("fa")
            s.stamp("h", "aflag")
            A("ds_write_b64 v3, v[28:29]")
        def zero():
            A("v_lshrrev_b32 v3, 5, v1\nv_mul_u32_u24 v3, 4608, v3\nv_and_b32 v4, 31, v1\nv_lshl_add_u32 v3, v4, 4, v3\nv_add_u32 v3, %d, v3" % (RB + 4096))
            A("ds_write_b128 v3, v[52:55]")
        def h_rows():
            if not st_["S"]:
                s.srd(rH, sH, 2 << 20); A("v_lshlrev_b32 v14, 4, v1"); st_["h"] = True
            A("s_lshl_b32 s%d, s%d, 13\ns_lshl_b32 s%d, s%d, 11\ns_add_u32 s%d, s%d, s%d" % (sT2, sSLOT, sT1, sW4, sT2, sT2, sT1))
            A("s_lshr_b32 s%d, s%d, 1\ns_mul_i32 s%d, s%d, %d\ns_add_u32 s%d, s%d, s%d\ns_add_u32 m0, s%d, %d\ns_nop 0" % (sT0, sW4, sT0, sT0, 16640 - 4096, sT0, sT0, sT1, sT0, HC + 32))
            A("buffer_load_dwordx4 v14, %s, s%d offen %s lds" % (SR(rH), sT2, o["ph"]))
            A("buffer_load_dwordx4 v14, %s, s%d offen offset:1024 %s lds" % (SR(rH), sT2, o["ph"])); vm.add("H", 2)
        def copies(ch):
            b = 64
            A("s_lshl_b32 s%d, s%d, 10\ns_add_u32 s%d, s%d, %d\nv_add_u32 v3, s%d, v14" % (sT0, sW4, sT0, sT0, HC + 24 + ch * 16640, sT0))
            A("s_waitcnt lgkmcnt(0)\nds_read_b64 %s, v3\nds_read_b128 %s, v3 offset:8\ns_waitcnt lgkmcnt(0)" % (R(b, 2), R(b + 2, 4)))
            for j in range(4): A("v_alignbyte_b32 v%d, v%d, v%d, 2" % (b + 6 + j, b + 2 + j, b + 1 + j))
            A("ds_write_b128 v3, %s offset:%d" % (R(b + 6, 4), 4160 + 8))
            for j in range(4): A("v_mov_b32 v%d, v%d" % (b + 10 + j, b + 1 + j))
            A("ds_write_b128 v3, %s offset:%d" % (R(b + 10, 4), 2 * 4160 + 8))
            for j in range(4): A("v_alignbyte_b32 v%d, v%d, v%d, 2" % (b + 14 + j, b + 1 + j, b + j))
            A("ds_write_b128 v3, %s offset:%d" % (R(b + 14, 4), 3 * 4160 + 8))
        def p_a():
            A("s_lshr_b32 s%d, s%d, 3\ns_lshl_b32 s%d, s%d, 2\ns_add_u32 s%d, s%d, s%d\ns_lshl_b32 s%d, s%d, 3" % (sT0, sSLOT, sT0, sT0, sT0, sT0, sW4, sFH, sT0))
            s.flagoff(sFH, WS_FA)
            s.poll_issue(8, sFH)
            st_["p"] = True
        def r_in():
            if not st_["p"]: p_a()
            A("s_lshl_b32 s%d, s%d, 13\ns_lshl_b32 s%d, s%d, 10\ns_add_u32 s%d, s%d, s%d\ns_add_u32 m0, s%d, %d" % (sT0, sSLOT, sT1, sW4, sT0, sT0, sT1, sT1, RB))
            s.poll_check(8, sFH)
            s.stamp("h", "pollA")
            A("buffer_load_dwordx4 v14, %s, s%d offen sc1 lds" % (SR(rWS), sT0))
            A("s_add_u32 m0, s%d, %d\ns_add_u32 s%d, s%d, 4096" % (sT1, RB + 4608, sT0, sT0))
            A("buffer_load_dwordx4 v14, %s, s%d offen sc1 lds" % (SR(rWS), sT0)); vm.add("R", 2)
        def setup():
            st_["S"] = True
            s.srd(rC, sW2, 1792 * 1024); s.srd(rWS, sWS, WS_SIZE); s.srd(rOUT, sOUT, 2 << 20)
            if not st_["h"]:
                s.srd(rH, sH, 2 << 20); A("v_lshlrev_b32 v14, 4, v1")
            A("v_mov_b32 v52, 0\nv_mov_b32 v53, 0\nv_mov_b32 v54, 0\nv_mov_b32 v55, 0")
            A("v_lshrrev_b32 v3, 1, v20\nv_mul_u32_u24 v3, 4160, v3\nv_and_b32 v4, 1, v1\nv_lshl_add_u32 v3, v4, 4, v3\nv_add_u32 v3, %d, v3" % HC)
            A("ds_write_b128 v3, v[52:55]")
            A("v_mov_b32 v3, %d\nv_min_u32 v27, 1, v1\nv_lshlrev_b32 v27, 31, v27" % NONL)
            A("v_bfrev_b32 v4, 1\nds_write2_b32 v3, v52, v4 offset0:2 offset1:3")
            A("v_lshrrev_b32 v3, 3, v1\nv_xor_b32 v4, v3, v5\nv_lshlrev_b32 v18, 7, v3\nv_lshl_add_u32 v18, v4, 4, v18")
            A("s_lshl_b32 s%d, s%d, 11\ns_add_u32 s%d, s%d, %d\nv_add_u32 v18, s%d, v18\nv_lshlrev_b32 v19, 12, v3\nv_lshl_add_u32 v19, v5, 4, v19" % (sT0, sW4, sT0, sT0, ROUT, sT0))
            A("v_lshlrev_b32 v4, 1, v9\nv_xor_b32 v4, v4, v5\nv_lshlrev_b32 v3, 10, v3\nv_lshl_add_u32 v24, v4, 4, v3")
            A("s_lshl_b32 s%d, s%d, 7\ns_lshl_b32 s%d, s%d, 15\ns_add_u32 s%d, s%d, s%d" % (sT0, sN2, sT1, sW4, sW2B, sT0, sT1))
        def notify():
            A("v_mov_b32 v3, %d\nv_mov_b32 v4, 1" % NONL)
            vm.wait("R", extra=" lgkmcnt(0)")
            A("s_mov_b64 exec, 1\nds_add_u32 v3, v4 offset:8\ns_mov_b64 exec, -1")
            s.stamp("h", "rnote")
        def w2half(j, kh):
            dma = not (3 <= j < 3 + nreg)
            t = 7 * kh + j
            if dma: A("s_add_u32 m0, s%d, %d" % (sLB, (QS[j] + kh) * 16384))
            for q in range(4):
                if dma:
                    A("s_add_u32 s%d, s%d, %d" % (sT0, sW2B, q * (8192 - 1024) + t * 131072))
                    A("buffer_load_dwordx4 v24, %s, s%d offen offset:%d lds" % (SR(rC), sT0, q * 1024))
                else:
                    A("s_add_u32 s%d, s%d, %d" % (sT0, sW2B, q * 8192 + t * 131072))
                    A("buffer_load_dwordx4 %s, v24, %s, s%d offen" % (R(WREG + 32 * (j - 3) + 16 * kh + 4 * q, 4), SR(rC), sT0))
                vm.add("w%d_%d" % (j, kh))
        def w2load(j):
            for kh in range(2): w2half(j, kh)
        def w2put(j):
            if not (3 <= j < 3 + nreg): return w2load(j)
            a = 15 if QS[j] < 4 else 16
            for kh in range(2):
                vm.wait("w%d_%d" % (j, kh))
                for q in range(4):
                    A("ds_write_b128 v%d, %s offset:%d" % (a, R(WREG + 32 * (j - 3) + 16 * kh + 4 * q, 4), ((QS[j] & 3) + kh) * 16384 + q * 1024))
        nx = {"w": 0, "v": 6}
        def nxt(k, n=2):
            for _ in range(n):
                j = nx[k]; nx[k] += 1
                assert j < (6 if k == "w" else 6 + 2 * nreg)
                w2half(j >> 1, j & 1)
        def daddr():
            A("v_add_u32 v15, s%d, v14\nv_add_u32 v16, 0x10000, v15" % sLB)
            s.tail_addr()
            A("s_lshl_b32 s%d, s%d, 14\ns_sub_u32 s%d, s%d, s%d\ns_lshl_b32 s%d, s%d, 15\ns_add_u32 s%d, s%d, s%d" % (sT0, sW8, sY0, sOB, sT0, sT0, sW4, sY0, sY0, sT0))
            A("s_lshl_b32 s%d, s%d, 5\ns_add_u32 s%d, s%d, %d" % (sT0, sW4, sT0, sT0, XT))
            A("v_lshlrev_b32 v3, 7, v20\nv_add_u32 v3, s%d, v3\nv_lshl_add_u32 v21, v9, 3, v3" % sT0)
            A("v_bfe_u32 v4, v1, 2, 2\nv_lshl_add_u32 v4, v9, 2, v4\nv_lshlrev_b32 v4, 7, v4\nv_and_b32 v6, 3, v1\nv_lshl_add_u32 v4, v6, 3, v4")
            A("s_lshl_b32 s%d, s%d, 11\ns_add_u32 s%d, s%d, %d\nv_add_u32 v22, s%d, v4" % (sT1, sW4, sT1, sT1, YT, sT1))
            A("v_lshlrev_b32 v17, 3, v20\nv_add_u32 v17, %d, v17" % STL)
            A("s_xor_b32 s%d, s%d, 1\ns_min_u32 s%d, s%d, 1\ns_lshl_b32 s%d, s%d, 31\ns_add_u32 s%d, s%d, %d" % (sT0, sW4, sT0, sT0, sT0, sT0, sT0, sT0, STL))
            A("v_lshl_add_u32 v30, v1, 3, s%d\ns_sub_u32 s%d, s%d, %d" % (sT0, sST, sST, STL))
            A("s_lshl_b32 s%d, s%d, 2\ns_add_u32 s%d, s%d, s%d\ns_lshr_b32 s%d, s%d, 4\ns_lshl_b32 s%d, s%d, 5" % (sT0, sN2, sT0, sT0, sW4, sT1, sM2, sT1, sT1))
            A("s_add_u32 s%d, s%d, s%d\ns_lshl_b32 s%d, s%d, 4" % (sT1, sT1, sT0, sFY, sT1))
            s.flagoff(sFY, WS_FY)
            A("s_lshl_b32 s%d, s%d, 11\ns_lshl_b32 s%d, s%d, 16\ns_add_u32 s%d, s%d, s%d\ns_add_u32 s%d, s%d, 0x%x" % (sT0, sT0, sT1, sM2, sT0, sT0, sT1, sY1, sT0, WS_Y))
            A("s_lshl_b32 s%d, s%d, 5\ns_mul_i32 s%d, s%d, 6\ns_add_u32 s%d, s%d, s%d" % (sPH, sM2, sT0, sW4, sPH, sPH, sT0)); s.flagoff(sPH, WS_FH)
            A("s_lshl_b32 s%d, s%d, 11\ns_add_u32 s%d, s%d, %d\nv_add_u32 v23, s%d, v14" % (sT0, sW4, sT0, sT0, XT, sT0))
            A("s_lshl_b32 s%d, s%d, 3" % (sHB, sM2)); s.flagoff(sHB, WS_FS)
        def v_touch():
            A("v_lshrrev_b32 v3, 2, v1\nv_and_b32 v4, 3, v1\nv_lshlrev_b32 v3, 10, v3\nv_lshl_add_u32 v3, v4, 7, v3")
            A("s_and_b32 s%d, s%d, 1\ns_lshl_b32 s%d, s%d, 2\ns_add_u32 s%d, s%d, s%d\ns_lshr_b32 s%d, s%d, 2\ns_lshl_b32 s%d, s%d, 3\ns_add_u32 s%d, s%d, s%d\ns_lshl_b32 s%d, s%d, 14" % (sT0, sIDX, sT0, sT0, sT0, sT0, sW4, sT1, sIDX, sT1, sT1, sT0, sT0, sT1, sT0, sT0))
            A("s_bfe_u32 s%d, s%d, 0x10001\ns_mul_i32 s%d, s%d, %d\ns_add_u32 s%d, s%d, s%d" % (sT1, sIDX, sT1, sT1, 896 * 1024, sT0, sT0, sT1))
            A("s_and_b32 s%d, s%d, 1\ns_lshl_b32 s%d, s%d, 9\ns_add_u32 s%d, s%d, s%d" % (sT1, sC, sT1, sT1, sT0, sT0, sT1))
            A("buffer_load_dword v31, v3, %s, s%d offen %s" % (SR(rC), sT0, o["pV"])); vm.add("V")
        def only(w, f):
            l = s.lab("w")
            A("s_cmp_lg_u32 s%d, %d\ns_cbranch_scc1 %s" % (sW4, w, l)); f(); A("%s:" % l)
        def s_issue(): only(1, lambda: s.poll_issue(4, sHB)); st_["s"] = True
        def s_check():
            if not st_.get("s"): s_issue()
            only(1, lambda: s.poll_check(4, sHB))
            A("buffer_load_dwordx2 v[56:57], v30, %s, s%d offen sc1" % (SR(rWS), sST)); vm.add("ms")
        def m_put():
            vm.wait("ms")
            only(1, lambda: A("ds_write_b64 v30, v[56:57] offset:%d\ns_waitcnt lgkmcnt(0)" % 0))
        def x_load():
            A("s_add_u32 s%d, s%d, 16384" % (sT1, sY0))
            A("buffer_load_dwordx4 v[32:35], v46, %s, s%d offen" % (SR(rA), sY0))
            A("buffer_load_dwordx4 v[36:39], v46, %s, s%d offen" % (SR(rA), sT1)); vm.add("x", 2)
        def h_issue():
            only(0, lambda: s.poll_issue(12, sPH)); only(2, lambda: s.poll_issue(16, sPH)); st_["P"] = True
        def h_check():
            if not st_.get("P"): h_issue()
            only(0, lambda: (s.poll_check(12, sPH), A("v_mov_b32 v3, %d\nds_write_b32 v3, v52 offset:12" % NONL), s.stamp("h", "pollH1")))
        H = dict(V=v_touch, s=s_issue, t=s_check, m=m_put, X=x_load, P=h_issue, Q=h_check, only=only, r=rout, f=flag_a, z=zero, h=h_rows, c=lambda: copies(0), d=lambda: copies(1), R=r_in, n=notify, D=daddr,
                 w=lambda: nxt("w"), v=lambda: nxt("v"), x=lambda: nxt("w", 1), u=lambda: nxt("v", 1), put=w2put, p=p_a, S=setup)
        for ch in o.get("skip", ""): H[ch] = lambda: None
        def dot():
            st_["dot"] = st_.get("dot", 0) + 1
            s.stamp("h", "t%d" % st_["dot"])
        H["."] = dot
        def cap(f):
            old = s.L; s.L = []
            f()
            r = s.L; s.L = old
            return r
        def section(sec):
            for m in re.finditer(r"(\d)(?:\((?:(\d):)?([^)]*)\))?|(.)", sec):
                if m.group(4): H[m.group(4)](); continue
                stream = []
                for ch in m.group(3) or "":
                    if ch in "SDzcd": stream += cap(H[ch])
                    else: stream.append(H[ch])
                stage(int(m.group(1)), stream, int(m.group(2) or 0))
        H["section"] = section
        return H

    def helper_waves(s):
        A = s.A
        o = s.o
        s.stamp("h", "start")
        vm = VM(s)
        H = s.hitems(vm)
        A("v_lshrrev_b32 v3, 5, v1\nv_bfe_u32 v4, v1, 3, 2\nv_lshl_add_u32 v3, v3, 8, v4\nv_lshlrev_b32 v3, 10, v3")
        A("v_and_b32 v5, 7, v1\nv_lshrrev_b32 v9, 4, v1\nv_xor_b32 v6, v5, v9\nv_lshl_add_u32 v10, v6, 4, v3\nv_xor_b32 v11, 64, v10")
        A("s_lshr_b32 s%d, s%d, 2\ns_lshl_b32 s%d, s%d, 7\ns_and_b32 s%d, s%d, 3\ns_add_u32 s%d, s%d, s%d" % (sT0, sMI, sT0, sT0, sT1, sMI, sT0, sT0, sT1))
        A("s_lshl_b32 s%d, s%d, 12\ns_lshl_b32 s%d, s%d, 16\ns_add_u32 s%d, s%d, s%d" % (sT0, sT0, sT1, sW4, sXB, sT0, sT1))
        A("v_and_b32 v20, 15, v1\nv_lshlrev_b32 v6, 1, v9\nv_xor_b32 v6, v6, v20\nv_mul_u32_u24 v7, 3584, v9\nv_lshl_add_u32 v12, v6, 4, v7\nv_xor_b32 v13, 0x80, v12")
        A("s_lshl_b32 s%d, s%d, 8\ns_mul_i32 s%d, s%d, %d\ns_add_u32 s%d, s%d, s%d" % (sT0, sFI, sT1, sW4, 16 * 3584, sWB, sT0, sT1))
        A("s_lshl_b32 s%d, s%d, 12" % (sLB, sW4))
        if o["rot"]:
            A("s_and_b32 s%d, s%d, 3\ns_lshl_b32 s%d, s%d, 1\ns_lshr_b32 s%d, s%d, 2\ns_add_u32 s%d, s%d, s%d" % (sT0, sIDX, sT0, sT0, sCNT, sIDX, sCNT, sCNT, sT0))
            A("s_lshr_b32 s%d, s%d, 1\ns_add_u32 s%d, s%d, s%d" % (sT0, sC, sCNT, sCNT, sT0))
            for _ in range(2): A("s_cmp_ge_u32 s%d, 7\ns_cselect_b32 s%d, 7, 0\ns_sub_u32 s%d, s%d, s%d" % (sCNT, sT0, sCNT, sCNT, sT0))
            A("s_add_u32 s%d, s%d, 1" % (sCNT, sCNT))
        A("s_cmp_eq_u32 s%d, 0\ns_waitcnt lgkmcnt(0)" % sISB)
        s.srd(rA, sQ, 2 << 20); s.srd(rB, sW1, 512 * 3584)
        A("s_cbranch_scc1 L_spare_h0")
        sched = o["ord"].split("|")
        assert len(sched) == 10
        s.sched = sched
        assert re.match(r"[^tsmX]*n.*t.*m", sched[9]) and "X" in sched[9]
        H["section"](sched[0])
        hk = [i for i, x in enumerate(sched) if "c" in x][0] - 1
        vm.wait(*(["s0", "H"] if hk == 0 else ["s0"]), extra=" lgkmcnt(0)")
        s.stamp("h", "s0")
        A("s_barrier")
        for k in range(8):
            s.stamp("h", "B%d" % k)
            H["section"](sched[k + 1])
            s.stamp("h", "I%d" % k)
            tags = ["s%d" % (k + 1)] if k < 7 else []
            if k + 1 == hk: tags.append("H")
            pend = re.sub(r"^.*R", "", "".join(sched[:8]))
            lg = " lgkmcnt(0)" if k == 6 and set(pend) & set("fzcd") else ""
            if tags: vm.wait(*tags, extra=lg)
            s.stamp("h", "B%da" % (k + 1))
            A("s_barrier")
        s.stamp("h", "B8")
        k = max([i + 1 for i, ch in enumerate(sched[9]) if ch in "cdnR"] + [0])
        H["section"](sched[9][:k])
        s.vmjoin = list(vm.q); s.prejoin = "".join(sched[:9]) + sched[9][:k]
        A("L_h_join:")
        s.stamp("h", "join")
        H["section"](sched[9][k:])
        s.stamp("h", "w2_issued")
        if "Q" not in sched[9]: H["Q"]()
        vm.wait("w0_0", "w0_1")
        s.stamp("h", "BC2a")
        A("s_barrier")
        nreg = o["nreg"]
        isreg = lambda j: 3 <= j < 3 + nreg
        XV, YV = 64, 72
        vm.wait("x")
        A("ds_write_b128 v23, v[32:35]\nds_write_b128 v23, v[36:39] offset:1024")
        H["put"](3)
        H["only"](2, lambda: (s.poll_check(16, sPH), s.stamp("h", "pollH2")))
        vm.wait("w1_0", "w1_1", extra=" lgkmcnt(0)")
        s.stamp("h", "X0a")
        A("s_barrier")
        for i in range(4): A("ds_read_b64 %s, v21 offset:%d\nds_read_b64 %s, v17 offset:%d" % (R(XV + 2 * i, 2), 2048 * i, R(56 + 2 * i, 2), 128 * i))
        A("ds_read_b32 v47, v47")
        H["put"](4)
        vm.wait("w2_0", "w2_1")
        s.stamp("h", "X1a")
        A("s_barrier")
        H["put"](5)
        A("s_waitcnt lgkmcnt(%d)" % (8 if isreg(5) else 0))
        for i in range(4):
            for u in range(2):
                x = XV + 2 * i + u; t = 80 + 4 * i + 2 * u
                A("v_lshlrev_b32 v%d, 16, v%d\nv_and_b32 v%d, 0xffff0000, v%d" % (t, x, t + 1, x))
            for e in range(4): A("v_sub_f32 v%d, v%d, v%d" % (96 + 4 * i + e, 80 + 4 * i + e, 56 + 2 * i))
            for e in range(4): A("v_mul_f32 v%d, v%d, v%d" % (96 + 4 * i + e, 96 + 4 * i + e, 57 + 2 * i))
        tags = ([] if isreg(3) else ["w3_0", "w3_1"]) + ([] if isreg(4) else ["w4_0", "w4_1"])
        if tags: vm.wait(*tags)
        if o["ypoll"] == 1: s.poll_issue(16, sFY)
        s.stamp("h", "X2a")
        A("s_barrier")
        def y_in():
            s.poll_check(16, sFY)
            s.stamp("h", "pollY")
            A("s_lshl_b32 s%d, s%d, 11\ns_add_u32 m0, s%d, %d\ns_nop 0" % (sT0, sW4, sT0, YT))
            A("buffer_load_dwordx4 v14, %s, s%d offen sc1 lds" % (SR(rWS), sY1))
            A("buffer_load_dwordx4 v14, %s, s%d offen offset:1024 sc1 lds" % (SR(rWS), sY1)); vm.add("y", 2)
        if nreg < 4:
            if o["ypoll"] != 1: s.poll_issue(16, sFY)
            H["put"](6)
            if o["ypoll"] < 3: y_in()
            vm.wait("w5_0", "w5_1", "w6_0", "w6_1")
            s.stamp("h", "X4a")
            A("s_barrier")
            if o["ypoll"] == 3: y_in()
        else:
            H["put"](6)
            A("s_waitcnt lgkmcnt(0)")
            if o["ypoll"] != 1: s.poll_issue(16, sFY)
            s.stamp("h", "X3a")
            A("s_barrier")
            y_in()
        A("s_waitcnt vmcnt(0)")
        s.stamp("h", "y_landed")
        for i in range(4): A("ds_read_b64_tr_b16 %s, v22 offset:%d" % (R(YV + 2 * i, 2), 32 * i))
        for i in range(4):
            A("s_waitcnt lgkmcnt(%d)" % 3)
            for u in range(2):
                y = YV + 2 * i + u; t = 80 + 4 * i + 2 * u
                A("v_lshlrev_b32 v112, 16, v%d\nv_and_b32 v113, 0xffff0000, v%d" % (y, y))
                A("v_fmac_f32 v%d, v%d, v112\nv_fmac_f32 v%d, v%d, v113" % (t, t + 16, t + 1, t + 17))
                A("v_cvt_pk_bf16_f32 v%d, v%d, v%d" % (XV + 2 * i + u, t, t + 1))
            A("ds_write_b64 v21, %s offset:%d" % (R(XV + 2 * i, 2), 2048 * i))


HEAD = open("cdna_kernels/%s.s.ref" % NAME).read()


def render(g):
    head = HEAD[:HEAD.index("; @launch")]
    t = head + "; @launch grid=(256,1,1) block=(512,1,1) lds=%d\n" % LDS_SIZE
    t += '.amdgcn_target "amdgcn-amd-amdhsa--gfx950"\n.text\n.globl %s_kernel\n.p2align 8\n.type %s_kernel,@function\n%s_kernel:\n' % (NAME, NAME, NAME)
    for x in g.L:
        t += (x if x.endswith(":") else "    " + x) + "\n"
    t += HEAD[HEAD.index("s_endpgm"):]
    return t


if __name__ == "__main__":
    out = sys.argv[1]
    opts = dict(eval("dict(%s)" % sys.argv[2])) if len(sys.argv) > 2 else {}
    g = Gen(**opts).build()
    open(out, "w").write(render(g))
    print("wrote", out, len(g.L), "lines", g.nst)
```

```python
import sys, re

NAME = "parallel_sum__ssm_conv_h3__dense_activation_relu__prompt"

WS_R = 0
WS_Y = 2 << 20
WS_H = 4 << 20
WS_ST = 12 << 20
WS_FA = 13 << 20
WS_FH = WS_FA + 65536
WS_FY = WS_FA + 2 * 65536
WS_FS = WS_FA + 3 * 65536
WS_NONCE = WS_FA + 4 * 65536
WS_TS = 14 << 20
WS_SIZE = 16 << 20

HC = 98304
RB = 131584
ROUT = RB
NONL = 140800
STL = NONL + 64
KV = 143360
XCH = 143360
RED = 147456
XT = 131072
YT = 139264
LDS_SIZE = 163840

sQ, sK, sV, sSK, sH, sD, sW1, sW2, sOUT, sDBG, sWS = 4, 6, 8, 10, 12, 14, 18, 20, 22, 24, 26
rA, rB, rWS, rC, rH, rOUT, rDBG = 28, 32, 36, 40, 44, 48, 52
sN = 52
sW8, sW4, sC, sIDX, sMI, sFI, sM2, sN2 = 56, 57, 58, 59, 60, 61, 62, 63
sT0, sT1, sT2, sT3 = 64, 65, 66, 67
sXB, sWB, sLB, sSLOT = 68, 69, 70, 71
sHB, sW2B, sCNT, sDV = 72, 73, 74, 75
sFH, sPH, sFY, sST = 76, 77, 78, 79
sOB, sY0, sISB, sY1 = 80, 81, 82, 83
P0, P1 = 4, 84
sHS = 84
sROT = 94
hROT = 20
sTS = 100
OOB = 0x80000000


def R(a, n): return "v[%d:%d]" % (a, a + n - 1)
def SR(a, n=4): return "s[%d:%d]" % (a, a + n - 1)


class VM:
    def __init__(s, g): s.q = []; s.g = g
    def add(s, t, n=1): s.q += [t] * n
    def n(s, *tags):
        last = max(i for i, t in enumerate(s.q) if t in tags)
        n = len(s.q) - 1 - last
        if n > 63: n = 63
        return n
    def wait(s, *tags, extra=""):
        s.g.A("s_waitcnt vmcnt(%d)%s" % (s.n(*tags), extra))


class Gen:
    def __init__(s, **o):
        s.L = []
        s.o = dict(stamps=False, hflag_at=64, spin=1 << 16, depth=5, nt_kv="nt", outsc="sc1", prio=3, sfirst=1, rot=1, fsp=8,
                   ord="01(SD)A|2(z)|3|4h|5(N)|6p|7R|xx|x|cdnsXxwtvvPvm", nreg=3, rchk=8, ysplit=3, barpos=6, flate=1, sba=7, drot=(1, 0), dbg="", early=0, epos=0, inl=1, ypoll=2, b8pos=14, npre=14, r1pos=0, dens0=0, dens1=0, oldw=0, sord="H|U", pH="nt", pV="", ph="")
        s.o.update(o)
        s.nlab = 0
        s.nst = {}

    def A(s, t):
        for x in t.split("\n"):
            x = x.strip()
            if x: s.L.append(x)

    def lab(s, p):
        s.nlab += 1
        return "L_%s_%d" % (p, s.nlab)

    def srd(s, r, p, size):
        s.A("s_mov_b32 s%d, s%d\ns_mov_b32 s%d, s%d\ns_mov_b32 s%d, 0x%x\ns_mov_b32 s%d, 0x20000" % (r, p, r + 1, p + 1, r + 2, size, r + 3))

    def stamp_s(s, role, name):
        if not s.o["stamps"]: return ""
        if isinstance(s.o["stamps"], (list, tuple, set)) and name not in s.o["stamps"] and name not in ("start", "end"): return ""
        k = s.nst.setdefault(role, [])
        if name not in k: k.append(name)
        if s.o.get("cyc") and role == "m":
            return "s_memrealtime s[%d:%d]\ns_memtime s[96:97]\ns_waitcnt lgkmcnt(0)\nv_writelane_b32 v255, s%d, %d\nv_writelane_b32 v255, s96, %d" % (sTS, sTS + 1, sTS, k.index(name), 30 + k.index(name))
        return "s_memrealtime s[%d:%d]\ns_waitcnt lgkmcnt(0)\nv_writelane_b32 v255, s%d, %d" % (sTS, sTS + 1, sTS, k.index(name))

    def stamp(s, role, name): s.A(s.stamp_s(role, name))

    def stamp_out(s):
        if not s.o["stamps"]: return
        s.A("s_lshl_b32 s%d, s2, 3\ns_add_u32 s%d, s%d, s%d\ns_lshl_b32 s%d, s%d, 8\ns_add_u32 s%d, s%d, 0x%x" % (sT0, sT0, sT0, sW8, sT0, sT0, sT0, sT0, WS_TS))
        s.A("v_lshlrev_b32 v254, 2, v1\ns_nop 1\nbuffer_store_dword v255, v254, %s, s%d offen" % (SR(rWS), sT0))

    def weave(s, ms, fill, pre=None):
        for i, m in enumerate(ms):
            for f in (pre or {}).get(i, []): s.A(f)
            s.A(m)
            for f in fill.get(i, []): s.A(f)

    def freg(s, i): return (P0 if i < 8 else P1 - 16) + 2 * i

    def poll_issue(s, n, soff):
        A = s.A
        fsp = s.o["fsp"]
        if fsp == 8:
            i = 0
            while i < n:
                w = 8 if n - i >= 8 else (4 if n - i >= 4 else (2 if n - i >= 2 else 1))
                if i: A("s_add_u32 s%d, s%d, %d" % (sT2, soff, 8 * i))
                A("s_load_dwordx%d %s, %s, s%d glc" % (2 * w, SR(s.freg(i), 2 * w), SR(sWS, 2), sT2 if i else soff))
                i += w
        else:
            for i in range(n):
                if i: A("s_add_u32 s%d, s%d, %d" % (sT2, soff, fsp * i))
                A("s_load_dwordx2 %s, %s, s%d glc" % (SR(s.freg(i), 2), SR(sWS, 2), sT2 if i else soff))

    def poll_check(s, n, soff):
        A = s.A
        l0, l1, l2 = s.lab("pl"), s.lab("pr"), s.lab("pd")
        A("s_mov_b32 s%d, 0\n%s:\ns_waitcnt lgkmcnt(0)" % (sT3, l0))
        for i in range(n - 1):
            A("s_cmp_lg_u64 %s, %s\ns_cbranch_scc1 %s" % (SR(s.freg(i), 2), SR(sN, 2), l1))
        A("s_cmp_eq_u64 %s, %s\ns_cbranch_scc1 %s" % (SR(s.freg(n - 1), 2), SR(sN, 2), l2))
        A("%s:\ns_add_u32 s%d, s%d, 1\ns_cmp_gt_u32 s%d, 0x%x\ns_cbranch_scc1 %s" % (l1, sT3, sT3, sT3, s.o["spin"], l2))
        s.poll_issue(n, soff)
        A("s_branch %s\n%s:" % (l0, l2))

    def tokbase(s, dst, m2, t):
        return ("s_lshr_b32 s%d, s%d, 3\ns_lshl_b32 s%d, s%d, 9\ns_bfe_u32 s%d, s%d, 0x20001\ns_lshl_b32 s%d, s%d, 2\ns_add_u32 s%d, s%d, s%d\n" % (dst, m2, dst, dst, t, m2, t, t, dst, dst, t) +
                "s_and_b32 s%d, s%d, 1\ns_lshl_b32 s%d, s%d, 7\ns_add_u32 s%d, s%d, s%d" % (t, m2, t, t, dst, dst, t))

    def rot(s, dst, t):
        a, b = s.o["drot"]
        s.A("s_and_b32 s%d, s%d, 7\ns_mul_i32 s%d, s%d, %d\ns_lshr_b32 s%d, s%d, 3\ns_mul_i32 s%d, s%d, %d\ns_add_u32 s%d, s%d, s%d" % (dst, sIDX, dst, dst, a, t, sIDX, t, t, b, dst, dst, t))
        for _ in range((7 * a + 3 * b) // 7): s.A("s_add_u32 s%d, s%d, -7\ns_min_u32 s%d, s%d, s%d" % (t, dst, dst, dst, t))

    def flagoff(s, dst, base):
        s.A("s_lshl_b32 s%d, s%d, %d\ns_add_u32 s%d, s%d, 0x%x" % (dst, dst, s.o["fsp"].bit_length() - 1, dst, dst, base))

    def build(s):
        A = s.A
        A("s_cmp_ge_u32 s2, 256\ns_cbranch_scc1 L_end")
        A("s_load_dwordx16 s[4:19], s[0:1], 0\ns_load_dwordx8 s[20:27], s[0:1], 64")
        A("v_lshrrev_b32 v2, 6, v0\nv_and_b32 v1, 63, v0\nv_readfirstlane_b32 s%d, v2" % sW8)
        if s.o["stamps"]: A("v_mov_b32 v255, 0\ns_memtime s[%d:%d]\ns_waitcnt lgkmcnt(0)\nv_writelane_b32 v255, s%d, 60" % (sTS, sTS + 1, sTS))
        A("s_and_b32 s%d, s2, 7\ns_lshr_b32 s%d, s2, 3" % (sC, sIDX))
        if s.o["sfirst"]: A("s_add_u32 s%d, s%d, 28\ns_and_b32 s%d, s%d, 31" % (sIDX, sIDX, sIDX, sIDX))
        A("s_and_b32 s%d, s%d, 3\ns_and_b32 s%d, s%d, 6\ns_lshl_b32 s%d, s%d, 1\ns_add_u32 s%d, s%d, s%d" % (sMI, sIDX, sT0, sC, sT0, sT0, sMI, sMI, sT0))
        A("s_and_b32 s%d, s%d, 1\ns_mul_i32 s%d, s%d, 7\ns_lshr_b32 s%d, s%d, 2\ns_add_u32 s%d, s%d, s%d" % (sT0, sC, sT0, sT0, sFI, sIDX, sFI, sFI, sT0))
        A("s_and_b32 s%d, s%d, 7\ns_and_b32 s%d, s%d, 6\ns_lshl_b32 s%d, s%d, 2\ns_add_u32 s%d, s%d, s%d" % (sM2, sIDX, sT0, sC, sT0, sT0, sM2, sM2, sT0))
        A("s_and_b32 s%d, s%d, 1\ns_lshl_b32 s%d, s%d, 2\ns_lshr_b32 s%d, s%d, 3\ns_add_u32 s%d, s%d, s%d" % (sT0, sC, sT0, sT0, sN2, sIDX, sN2, sN2, sT0))
        A("s_cmp_lt_u32 s%d, 28\ns_cselect_b32 s%d, 1, 0" % (sIDX, sISB))
        A("s_and_b32 s%d, s%d, 3" % (sW4, sW8))
        A("s_lshl_b32 s%d, s%d, 5\ns_add_u32 s%d, s%d, s%d" % (sSLOT, sC, sSLOT, sSLOT, sIDX))
        A("s_cmp_ge_u32 s%d, 4\ns_cbranch_scc1 L_helper" % sW8)
        s.mfma_waves()
        A("L_helper:")
        s.helper_waves()
        s.tail()
        s.spare_m()
        s.spare_h()
        A("L_end:")
        return s

    def mfma_waves(s):
        A = s.A
        o = s.o
        nkv = o["nt_kv"]
        s.stamp("m", "start")
        A("v_lshrrev_b32 v184, 3, v1\nv_and_b32 v191, 7, v1\nv_lshlrev_b32 v184, 10, v184\nv_lshl_add_u32 v184, v191, 4, v184")
        A("s_lshl_b32 s%d, s%d, 16\ns_lshl_b32 s%d, s%d, 14\ns_add_u32 s%d, s%d, s%d" % (sT0, sIDX, sT1, sW4, sT0, sT0, sT1))
        A("s_lshl_b32 s%d, s%d, 7\ns_add_u32 s%d, s%d, s%d" % (sT1, sC, sT0, sT0, sT1))
        A("v_add_u32 v184, s%d, v184\nv_subrev_u32 v185, 0x2000, v184" % sT0)
        A("s_mul_i32 s%d, s%d, 5120\ns_add_u32 s%d, s%d, %d" % (sLB, sW4, sLB, sLB, KV))
        A("s_lshl_b32 s%d, s%d, 9\nv_lshl_add_u32 v186, v1, 3, s%d" % (sT1, sC, sT1))
        A("s_lshl_b32 s%d, s%d, 2" % (sT1, sSLOT))
        if o["prio"]: A("s_setprio %d" % o["prio"])
        A("s_mov_b32 m0, s%d\ns_movk_i32 s%d, 0x1c00" % (sLB, sT2))
        A("s_waitcnt lgkmcnt(0)")
        s.srd(rA, sK, 2 << 20)
        A("buffer_load_dwordx4 v185, %s, 0 offen %s lds" % (SR(rA), nkv))
        A("s_add_u32 m0, s%d, 1024" % sLB)
        s.srd(rB, sV, 2 << 20)
        A("buffer_load_dwordx4 v184, %s, 0 offen %s lds" % (SR(rA), nkv))
        A("buffer_load_dwordx4 v184, %s, s%d offen offset:1024 %s lds" % (SR(rA), sT2, nkv))
        s.srd(rC, sSK, 4096)
        A("buffer_load_dwordx2 v[188:189], v186, %s, 0 offen" % SR(rC))
        A("s_add_u32 m0, s%d, 3072" % sLB)
        A("s_load_dword s%d, s[%d:%d], s%d" % (sDV, sD, sD + 1, sT1))
        A("buffer_load_dwordx4 v184, %s, 0 offen %s lds" % (SR(rB), nkv))
        A("buffer_load_dwordx4 v184, %s, s%d offen offset:1024 %s lds" % (SR(rB), sT2, nkv))
        s.srd(rWS, sWS, WS_SIZE)
        A("v_min_u32 v27, 1, v1\nv_lshlrev_b32 v28, 31, v27\nv_lshlrev_b32 v26, 4, v1")
        A("s_xor_b32 s%d, s%d, 3\ns_or_b32 s%d, s2, s%d" % (sPH, sW4, sPH, sPH))
        A("s_mov_b32 s%d, 0x%x\ns_load_dwordx2 s[88:89], s[%d:%d], s%d" % (sW2B, WS_NONCE, sWS, sWS + 1, sW2B))
        s.srd(rDBG, sDBG, 256)
        s.srd(rOUT, sOUT, 2 << 20)
        A("v_bfe_u32 v8, v1, 2, 2\nv_lshrrev_b32 v9, 4, v1\nv_and_b32 v10, 3, v1\nv_and_b32 v20, 15, v1")
        A("v_lshlrev_b32 v187, 7, v8\nv_lshl_add_u32 v187, v9, 5, v187\nv_lshl_add_u32 v187, v10, 3, v187\nv_add_u32 v187, s%d, v187" % sLB)
        A("s_lshl_b32 s%d, s%d, 1\ns_sub_u32 s%d, 6, s%d\nv_xor_b32 v191, s%d, v191\nv_lshlrev_b32 v190, 7, v1" % (sT0, sW4, sT0, sT0, sT0))
        A("v_lshl_add_u32 v190, v191, 4, v190\nv_add_u32 v190, %d, v190\nv_xor_b32 v191, 16, v190" % ROUT)
        A("s_lshr_b32 s%d, s%d, 1\ns_and_b32 s%d, s%d, 1" % (sT0, sW4, sT1, sW4))
        A("v_lshrrev_b32 v21, 1, v20\nv_xor_b32 v21, v21, v9\nv_lshlrev_b32 v22, 7, v20\nv_lshl_add_u32 v12, v21, 4, v22")
        A("s_lshl_b32 s%d, s%d, 12\nv_add_u32 v12, s%d, v12" % (sT2, sW4, sT2))
        A("v_xor_b32 v13, 0x1000, v12\nv_xor_b32 v14, 64, v12\nv_xor_b32 v15, 64, v13")
        A("v_and_b32 v21, 1, v9\nv_lshl_or_b32 v21, v21, 2, v8")
        A("s_lshl_b32 s%d, s%d, 1\ns_add_u32 s%d, s%d, s%d\ns_lshl_b32 s%d, s%d, 1\nv_xor_b32 v21, s%d, v21" % (sT2, sT1, sT2, sT2, sT0, sT2, sT2, sT2))
        A("v_lshl_add_u32 v22, v9, 3, v8\nv_lshlrev_b32 v22, 8, v22\nv_lshl_add_u32 v22, v10, 3, v22\nv_add_u32 v22, 0x4000, v22")
        for ft in range(4):
            A("v_xor_b32 v23, %d, v21\nv_lshl_add_u32 v%d, v23, 5, v22" % (ft, 16 + ft))
        A("s_lshl_b32 s%d, s%d, 1\ns_add_u32 s%d, s%d, s%d\ns_mul_i32 s%d, s%d, 14\ns_add_u32 s%d, s%d, s%d" % (sT2, sMI, sT2, sT2, sT0, sT3, sT2, sT3, sT3, sFI))
        A("s_lshl_b32 s%d, s%d, 3\ns_mul_i32 s%d, s%d, 6\ns_add_u32 s%d, s%d, s%d\ns_add_u32 s%d, s%d, s%d" % (sT3, sT3, sHS, sT1, sT3, sT3, sHS, sT3, sT3, sT0))
        A("s_lshl_b32 s%d, s%d, 11\ns_add_u32 s%d, s%d, 0x%x" % (sT3, sT3, sHS, sT3, WS_H))
        A("s_xor_b32 s%d, s%d, 0x800\ns_xor_b32 s%d, s%d, 0x2000\ns_xor_b32 s%d, s%d, 0x2800" % (sHS + 1, sHS, sHS + 2, sHS, sHS + 3, sHS))
        A("s_lshl_b32 s%d, s%d, 6\ns_and_b32 s%d, s%d, 28\ns_add_u32 s%d, s%d, s%d" % (sFH, sT2, sT3, sIDX, sFH, sFH, sT3))
        A("v_lshrrev_b32 v11, 1, v1\nv_min_u32 v11, 1, v11\nv_lshlrev_b32 v11, 31, v11\nv_mad_u32_u24 v11, v1, %d, v11" % (28 * o["fsp"]) if 0 else
          "v_lshrrev_b32 v11, 1, v1\nv_min_u32 v11, 1, v11\nv_lshlrev_b32 v11, 31, v11\nv_mul_u32_u24 v27, %d, v1\nv_or_b32 v11, v11, v27" % (28 * o["fsp"]))
        A("s_and_b32 s%d, s%d, 1\ns_lshl_b32 s%d, s%d, 1\ns_add_u32 s%d, s%d, s%d\ns_add_u32 s%d, s%d, s%d" % (sT3, sC, sT3, sT3, sFH, sFH, sT3, sFH, sFH, sT1))
        s.flagoff(sFH, WS_FH)
        ONE, SX, SW, CB, CA_, TM = 192, 196, 200, 204, 212, 220
        A("s_lshl_b32 s%d, s%d, 10\ns_add_u32 s%d, s%d, %d\nv_lshl_add_u32 v21, v1, 2, s%d\nv_xor_b32 v22, 0x400, v21\nv_xor_b32 v23, 0x800, v21" % (sT2, sW4, sT2, sT2, XCH, sT2))
        A("v_mov_b32 v24, 0xbb000000\nv_cmp_gt_u32 vcc, 16, v1\nv_lshrrev_b32 v27, 5, v1\nv_bfe_u32 v30, v1, 1, 1\nv_cndmask_b32 v24, 0, v24, vcc")
        A("v_cmp_eq_u32 vcc, v27, v30\nv_mov_b32 v27, 0x3f803f80\nv_and_b32 v30, 1, v1")
        for i in range(4): A("v_cndmask_b32 v%d, 0, v27, vcc" % (ONE + i))
        A("v_mul_u32_u24 v25, 0xaaaa, v30\nv_add_u32 v25, 0x4444, v25\nv_mov_b32 v29, %d" % NONL)
        for i in range(SX, TM): A("v_mov_b32 v%d, 0" % i)
        ACC = 64
        for i in range(64): A("v_mov_b32 v%d, 0" % (ACC + i))
        s.conv_addr(); s.d_addr(); s.tail_addr()
        A("s_mov_b32 s%d, 0\ns_mov_b32 s%d, 0" % (sCNT, sXB))
        mr = "r" not in o["ord"]
        old = s.L; s.L = s.L if mr else []
        A("v_lshrrev_b32 v2, 3, v1\nv_and_b32 v3, 7, v1\nv_xor_b32 v27, v2, v3\nv_lshlrev_b32 v30, 7, v2\nv_lshl_add_u32 v30, v27, 4, v30")
        A("s_lshl_b32 s%d, s%d, 11\ns_add_u32 s%d, s%d, %d\nv_add_u32 v30, s%d, v30\nv_lshlrev_b32 v31, 12, v2\nv_lshl_add_u32 v31, v3, 4, v31" % (sT0, sW4, sT0, sT0, ROUT, sT0))
        A("s_lshl_b32 s%d, s%d, 2\ns_add_u32 s%d, s%d, s%d\ns_lshl_b32 s92, s%d, 5\ns_sub_u32 s%d, 31, s%d" % (sT0, sC, sT0, sT0, sW4, sT0, sT1, sIDX))
        A("s_add_u32 s92, s92, s%d\ns_lshl_b32 s%d, s%d, 16\ns_lshl_b32 s%d, s%d, 7\ns_add_u32 s90, s%d, s%d\ns_add_u32 s91, s90, 0x8000" % (sT1, sT0, sT0, sT1, sT1, sT0, sT1))
        s.flagoff(92, WS_FA)
        s.L = old
        s.stamp("m", "pa_in")
        A("s_waitcnt vmcnt(2)")
        s.stamp("m", "k_landed")
        K, V, T, O, U, P = 128, 138, 146, 152, 168, 128
        for G in range(5): A("ds_read_b64_tr_b16 %s, v187 offset:%d" % (R(K + 2 * G, 2), 512 * (G + 1)))
        A("v_alignbyte_b32 v%d, v189, v189, 2" % (T + 0))
        A("v_alignbyte_b32 v%d, v188, v188, 2" % (T + 1))
        A("v_and_b32 v%d, 0xffff0000, v189" % (T + 2))
        A("s_mov_b32 s%d, 0xffff\nv_bfi_b32 v%d, s%d, v189, v188" % (sT0, T + 3, sT0))
        A("v_and_b32 v%d, 0xffff, v188" % (T + 4))
        A("s_waitcnt lgkmcnt(0)")
        for m in range(8):
            A("v_dot2_f32_bf16 v%d, v%d, v%d, 0" % (O + 2 * m, K + m, T + 2))
            A("v_dot2_f32_bf16 v%d, v%d, v%d, 0" % (O + 2 * m + 1, K + m + 1, T + 0))
        for m in range(8):
            A("v_dot2_f32_bf16 v%d, v%d, v%d, v%d" % (O + 2 * m, K + m + 1, T + 3, O + 2 * m))
            A("v_dot2_f32_bf16 v%d, v%d, v%d, v%d" % (O + 2 * m + 1, K + m + 2, T + 1, O + 2 * m + 1))
        A("s_waitcnt vmcnt(0)")
        for G in range(4): A("ds_read_b64_tr_b16 %s, v187 offset:%d" % (R(V + 2 * G, 2), 3072 + 512 * G))
        A("s_add_u32 s88, s88, 0x7f4a7c16\ns_addc_u32 s89, s89, 0x9e3779b9\ns_or_b32 s88, s88, 1")
        A("v_mov_b32 v56, s88\nv_mov_b32 v57, s89\nv_mov_b32 v27, 0")
        ln = s.lab("nonce")
        A("s_cmp_lg_u32 s%d, 0\ns_cbranch_scc1 %s" % (sPH, ln))
        A("buffer_store_dwordx2 v[56:57], v28, %s, 0 offen sc1" % SR(rDBG))
        A("%s:" % ln)
        A("buffer_load_dwordx2 v[2:3], v27, %s, 0 offen sc1" % SR(rDBG))
        for m in range(8):
            A("v_dot2_f32_bf16 v%d, v%d, v%d, v%d" % (O + 2 * m, K + m + 2, T + 4, O + 2 * m))
        A("s_waitcnt lgkmcnt(0)")
        for hf in range(2):
            ms_ = range(4, 8) if hf == 0 else range(0, 4)
            for m in ms_:
                A("v_lshlrev_b32 v%d, 16, v%d\nv_and_b32 v%d, 0xffff0000, v%d" % (U + 2 * m, V + m, U + 2 * m + 1, V + m))
            for m in ms_:
                A("v_pk_mul_f32 %s, %s, %s" % (R(O + 2 * m, 2), R(O + 2 * m, 2), R(U + 2 * m, 2)))
            for d in range(4 * hf, 4 * hf + 4):
                A("v_cvt_pk_bf16_f32 v%d, v%d, v%d" % (P + d, O + 15 - 2 * d, O + 14 - 2 * d))
            A("ds_write_b128 v%d, %s" % (190 + hf, R(P + 4 * hf, 4)))
        A("s_waitcnt lgkmcnt(0)")
        s.stamp("m", "kv_done")
        old = s.L; s.L = s.L if mr else []
        A("s_barrier")
        A("ds_read_b128 v[48:51], v30\nds_read_b128 v[52:55], v30 offset:1024")
        A("s_waitcnt lgkmcnt(1)\nbuffer_store_dwordx4 v[48:51], v31, %s, s90 offen sc1" % SR(rWS))
        A("s_waitcnt lgkmcnt(0)\nbuffer_store_dwordx4 v[52:55], v31, %s, s91 offen sc1" % SR(rWS))
        s.stamp("m", "r_st")
        s.L = old
        A("s_cmp_eq_u32 s%d, 0" % sISB)
        A("s_barrier")
        A("s_cbranch_scc1 L_spare_m")
        s.stamp("m", "B0")
        FA = [128, 160]; FB = [144, 176]
        def rd(ks, st):
            r = []
            for t in range(4):
                r.append("ds_read_b64_tr_b16 %s, v%d offset:%d" % (R(FA[st] + 4 * t, 2), 16 + t, ks * 8192))
                r.append("ds_read_b64_tr_b16 %s, v%d offset:%d" % (R(FA[st] + 4 * t + 2, 2), 16 + t, ks * 8192 + 1024))
                r.append("ds_read_b128 %s, v%d offset:%d" % (R(FB[st] + 4 * t, 4), 12 + 2 * ks + (t >> 1), (t & 1) * 2048))
            return r
        def mm(st, i, j):
            a = ACC + 4 * (4 * i + j)
            return "v_mfma_f32_16x16x32_bf16 %s, %s, %s, %s" % (R(a, 4), R(FA[st] + 4 * i, 4), R(FB[st] + 4 * j, 4), R(a, 4))
        def sm(st):
            return ["v_smfmac_f32_16x16x64_bf16 %s, %s, %s, v25" % (R(SX, 4), R(ONE, 4), R(FB[st], 8)),
                    "v_smfmac_f32_16x16x64_bf16 %s, %s, %s, v25" % (R(SW, 4), R(ONE, 4), R(FA[st], 8))]
        def mf(st):
            q = sm(st)
            ms = [mm(st, 0, 0), mm(st, 1, 0), mm(st, 0, 1), mm(st, 1, 1), q[0], q[1]]
            ms += [mm(st, i, j) for i, j in ((2, 0), (2, 1), (0, 2), (1, 2), (2, 2), (3, 0), (3, 1), (3, 2), (0, 3), (1, 3), (2, 3), (3, 3))]
            return ms
        need = {0: 3, 1: 6, 6: 9, 11: 12}
        def place(r, g0, dens):
            fill = {}; g = g0; k = 0
            for i, x in enumerate(r):
                fill.setdefault(g, []).append(x); k += 1
                if k >= (2 if i < dens else 1): g += 1; k = 0
            assert max(fill) < 18
            return fill
        def waits(fill, upto=18):
            pre = {}
            for i, n in need.items():
                if i >= upto: continue
                newer = sum(1 for g, v in fill.items() if g < i for x in v if x.startswith("ds_"))
                assert 12 - n + newer < 16
                pre[i] = ["s_waitcnt lgkmcnt(%d)" % (12 - n + newer)]
            return pre
        for x in rd(0, 0): A(x)
        A("L_g1:")
        fill = place(rd(1, 1), o["r1pos"], o["dens1"])
        pre = waits(fill)
        if o["oldw"]: pre = {0: ["s_waitcnt lgkmcnt(0)"]}
        for g, x in enumerate(["s_cmp_eq_u32 s%d, 2" % sXB, "s_cselect_b32 s%d, -2, 1" % sT1, "s_add_u32 s%d, s%d, s%d" % (sXB, sXB, sT1), "s_lshl_b32 s%d, s%d, 15" % (sT1, sT1),
                               "s_add_u32 s%d, s%d, 1" % (sCNT, sCNT), "s_cmp_eq_u32 s%d, 8" % sCNT]): fill.setdefault(g, []).append(x)
        last = max(g for g, v in fill.items() if any(x.startswith("ds_") for x in v))
        upd = ["v_add_u32 v%d, s%d, v%d" % (12 + q, sT1, 12 + q) for q in range(8)]
        g = max(last + 1, 6)
        per = -(-8 // (18 - g))
        for q in range(8): fill.setdefault(g + q // per, []).append(upd[q])
        s.weave(mf(0), fill, pre)
        A("s_cbranch_scc1 L_g1_last")
        bp = o["barpos"]
        fill = place(rd(0, 0), bp, o["dens0"])
        pre = waits({}, bp)
        if o["oldw"]: pre = {0: ["s_waitcnt lgkmcnt(0)"]}
        pre[bp] = ["s_waitcnt lgkmcnt(0)", "s_barrier"]
        def aflag():
            ln = s.lab("nonce")
            return ("s_waitcnt vmcnt(%d)\nv_cmp_eq_u32 vcc, 0, v2\ns_cmp_lg_u32 s%d, 0\ns_nop 0\nv_cndmask_b32 v2, v2, v56, vcc\nv_cndmask_b32 v3, v3, v57, vcc\n" % (2 * mr, sPH) +
                    "ds_write_b64 v29, v[2:3]\n" + ("s_waitcnt vmcnt(0)\nbuffer_store_dwordx2 v[2:3], v28, %s, s92 offen sc1\n" % SR(rWS) if mr else "") + "s_cbranch_scc1 %s\n" % ln +
                    "buffer_store_dwordx2 v[2:3], v28, %s, s%d offen sc1\n%s:\n" % (SR(rWS), sW2B, ln) + s.stamp_s("m", "aflag"))
        s.aflag = aflag
        pre[bp].insert(0, "s_cmp_lg_u32 s%d, %d\ns_cbranch_scc1 L_noflag\n" % (sCNT, o["flate"]) + aflag() + "\nL_noflag:")
        if o["stamps"] and o.get("mloop"):
            k = s.nst.setdefault("m", []); b = len(k); k += ["M%da" % q for q in range(1, 8)]
            pre[bp].insert(1, "s_memrealtime s[%d:%d]\ns_add_u32 m0, s%d, %d\ns_waitcnt lgkmcnt(0)\nv_writelane_b32 v255, s%d, m0" % (sTS, sTS + 1, sCNT, b - 1, sTS))
        s.weave(mf(1), fill, pre)
        A("s_branch L_g1")
        A("L_g1_last:")
        order = [(2 * pp + ii, j) for pp in range(2) for j in range(4) for ii in range(2)]
        ms = sm(1) + [mm(1, i, j) for i, j in order]
        cr = s.conv_reads(0, 0)
        cra = [x for x in cr if "v4 " in x]; crb = [x for x in cr if "v5 " in x]
        alate = "c" in o["ord"].split("|")[9] or "d" in o["ord"].split("|")[9] or "c" in o["ord"].split("|")[8]
        s.alate = alate
        if alate: cra = [""] * 16; crb = cr[:o["npre"]]
        s.crb = crb
        a0, a1, b0, b1, t_, u0, u1 = range(TM, TM + 7)
        fill = {0: [cra[0]], 1: cra[1:3], 2: cra[3:5], 3: cra[5:7],
                4: ["v_add_f32 v%d, v%d, v%d" % (a0, SX, SX + 1), "v_add_f32 v%d, v%d, v%d" % (a1, SX + 2, SX + 3)],
                5: ["v_mul_f32 v%d, v24, v%d" % (a0, a0), "v_mul_f32 v%d, v24, v%d" % (a1, a1)],
                6: ["v_add_f32 v%d, v%d, v%d" % (b0, SW, SW + 1), "v_add_f32 v%d, v%d, v%d" % (b1, SW + 2, SW + 3)],
                7: ["v_cvt_pk_bf16_f32 v%d, v%d, v%d" % (CB, a0, a0), "v_cvt_pk_bf16_f32 v%d, v%d, v%d" % (CB + 2, a1, a1)],
                8: ["v_cvt_pk_bf16_f32 v%d, v%d, v%d" % (t_, b0, b1), "ds_write2st64_b32 v21, v%d, v%d offset0:0 offset1:1" % (CB, CB + 2)],
                9: ["v_lshlrev_b32 v%d, 16, v%d" % (u0, t_), "v_and_b32 v%d, 0xffff0000, v%d" % (u1, t_)],
                10: ["v_sub_f32 v%d, v%d, v%d" % (u0, b0, u0), "v_sub_f32 v%d, v%d, v%d" % (u1, b1, u1)],
                11: ["v_cvt_pk_bf16_f32 v%d, v%d, v%d" % (CA_, b0, u0), "v_cvt_pk_bf16_f32 v%d, v%d, v%d" % (CA_ + 2, b1, u1)],
                12: ["ds_write2st64_b32 v21, v%d, v%d offset0:2 offset1:3" % (CA_, CA_ + 2), cra[7]],
                13: cra[8:10], 14: cra[10:12],
                16: ["s_waitcnt lgkmcnt(0)", s.stamp_s("m", "B8a"), "s_barrier", s.stamp_s("m", "B8")],
                17: ["ds_read_b32 v%d, v22" % (CB + 4), "ds_read_b32 v%d, v22 offset:256" % (CB + 6)]}
        pre = {0: ["s_waitcnt lgkmcnt(0)"]}
        if alate:
            pre = {0: ["s_waitcnt lgkmcnt(6)"], 6: ["s_waitcnt lgkmcnt(3)"], 8: ["s_waitcnt lgkmcnt(0)"]}
            fill[0] = ["s_nop 1"]; fill[1] = ["s_nop 1"]; fill[2] = ["s_nop 1"]; fill[3] = ["s_nop 1"]
            bb = o["b8pos"]
            if bb != 16:
                fill[bb] = fill.get(bb, []) + fill.pop(16); fill[bb + 1] = fill.get(bb + 1, []) + fill.pop(17)
        s.weave(ms, fill, pre)
        s.stamp("m", "g1_done")
        HP = 48
        def cm(n, ii):
            pp, j = n >> 2, n & 3
            i = 2 * pp + ii
            a = ACC + 4 * (4 * i + j)
            return "v_mfma_f32_16x16x16bf16_1k %s, %s, %s, %s" % (R(a, 4), R(CA_ + 2 * i, 2), R(CB + 2 * j, 2), R(a, 4))
        A(cm(0, 0)); A("ds_read_b32 v%d, v23 offset:512\nds_read_b32 v%d, v23 offset:768" % (CA_ + 4, CA_ + 6))
        A(cm(0, 1)); A(cra[12]); A(cra[13])
        if alate: A("s_nop 1")
        A(cm(1, 0)); A(cra[14]); A(cra[15])
        A(cm(1, 1)); A("s_waitcnt lgkmcnt(%d)" % (0 if alate else 4))
        rest = []
        rchk = o["rchk"]
        def rcheck():
            l0, l1 = s.lab("rl"), s.lab("rd")
            A("s_mov_b32 s%d, 0\n%s:\ns_waitcnt lgkmcnt(0)\nv_readfirstlane_b32 s%d, v27" % (sT3, l0, sT0))
            A("s_add_u32 s%d, s%d, 1\ns_cmp_ge_u32 s%d, 4\ns_cbranch_scc1 %s" % (sT3, sT3, sT0, l1))
            A("s_cmp_gt_u32 s%d, 0x%x\ns_cbranch_scc1 %s\nds_read_b32 v27, v29 offset:8\ns_branch %s\n%s:" % (sT3, 16 * o["spin"], l1, l0, l1))
            s.stamp("m", "rchk")
        s.rcheck = rcheck
        for n in range(8):
            pp, j = n >> 2, n & 3
            hp = HP + 4 * (n & 3)
            if n == rchk: rcheck(); rest = list(crb)
            if n == rchk - 1: A("ds_read_b32 v27, v29 offset:8")
            v = []
            for ii in range(2):
                a = ACC + 4 * (4 * (2 * pp + ii) + j)
                for u in range(2): v.append("v_cvt_pk_bf16_f32 v%d, v%d, v%d" % (hp + 2 * ii + u, a + 2 * u, a + 2 * u + 1))
            for d in range(4): v.append("v_pk_max_i16 v%d, v%d, 0" % (hp + d, hp + d))
            if n + 2 < 8:
                v.insert(0, cm(n + 2, 0)); v.insert(5, cm(n + 2, 1))
            for x in v: A(x)
            A("buffer_store_dwordx4 %s, v26, %s, s%d offen offset:%d sc1" % (R(hp, 4), SR(rWS), sHS + 2 * (j >> 1) + pp, (j & 1) * 1024))
            k = -(-len(rest) // (8 - n))
            for x in rest[:k]: A(x)
            rest = rest[k:]
        s.stamp("m", "h_stored")
        if rchk == 8:
            A("L_m_rchk:")
            rcheck()
            for x in crb: A(x)
        A("L_m_conv:")
        s.stamp("m", "conv0")
        DA, WF, HR = 64, 96, 152
        dp = o["depth"]; NB = dp + 1
        ysp = o["ysplit"]
        sE, sRDY = 90, 93
        def hfirst(va):
            return ["buffer_load_dwordx4 %s, v%d, %s, s%d offen offset:%d sc1" % (R(HR + 8 * stp + 4 * t, 4), va, SR(rWS), sE + (stp >> 1), (stp & 1) * 2048 + t * 1024) for stp in range(ysp) for t in range(2)]
        CA = 64
        cnt = 0
        for jj in range(4):
            st = jj & 1
            ms = []
            for J in range(8):
                for ct in range(J, 8):
                    a = CA + 4 * ct
                    c = "0" if (jj == 0 and J == 0) else R(a, 4)
                    ms.append("v_mfma_f32_16x16x32_bf16 %s, %s, %s, %s" % (R(a, 4), R(s.cA(st, J), 4), R(s.cB(st, ct - J), 4), c))
            pre = {}
            if jj == 0 and not alate:
                for m in range(8): pre[m] = ["s_waitcnt lgkmcnt(%d)" % (7 - m)]
            elif jj: A("s_waitcnt lgkmcnt(0)")
            fill = {}
            if jj == 0 and alate:
                r = cr[o["npre"]:] + s.conv_reads(1, 1)
                g = 0; pos = []
                for i, x in enumerate(r):
                    fill.setdefault(g, []).append(x); pos.append(g)
                    if len(fill[g]) >= (2 if len(r) - i > 30 - g else 1): g += 1
                done = 0; i = 0
                for J in range(8):
                    for ct in range(J, 8):
                        nd = max(2 + (ct - J) + 1, 10 + 2 * J if J else 0)
                        issued = o["npre"] + sum(1 for q in pos if q < i)
                        assert nd <= issued
                        if nd > done:
                            w = min(14, issued - nd); done = issued - w
                            pre[i] = ["s_waitcnt lgkmcnt(%d)" % w]
                        i += 1
            elif jj < 3:
                r = s.conv_reads(jj + 1, 1 - st)
                for i, x in enumerate(r): fill[i + (8 if jj == 0 else 0)] = [x]
            else:
                for e in range(4): fill[e] = ["ds_read_b64 %s, v6 offset:%d" % (R(128 + 2 * e, 2), 512 * (3 - e))]
                fill[12] = ["s_waitcnt lgkmcnt(0)"]
                for e in range(4):
                    k = 128 + 2 * e; u = 136 + 4 * e
                    fill[13 + 2 * e] = ["v_and_b32 v%d, 0xffff0000, v%d\nv_lshlrev_b32 v%d, 16, v%d" % (u, k + 1, u + 1, k + 1)]
                    fill[14 + 2 * e] = ["v_and_b32 v%d, 0xffff0000, v%d\nv_lshlrev_b32 v%d, 16, v%d" % (u + 2, k, u + 3, k)]
                fill[22] = ["s_bitcmp1_b32 s%d, 1\ns_cselect_b32 s%d, 0, 16" % (sW4, sT0)]
                fill[23] = ["s_lshl_b32 s%d, s%d, s%d\ns_and_b32 s%d, s%d, 0xffff0000" % (sT0, sDV, sT0, sDV, sT0)]
                fill[35] = ["s_bitcmp1_b32 s%d, 0" % sW4]
                fill[4] = ["s_mov_b32 s%d, s%d\ns_add_u32 s%d, s%d, 4096" % (sE, sHB, sE + 1, sHB)]
                fill[5] = ["s_cmp_eq_u32 s%d, 6\ns_cselect_b32 s%d, %d, s%d" % (sROT, sT0, 12288 - 7 * 16384, sROT + 1)]
                fill[6] = ["s_add_u32 s%d, s%d, s%d\ns_mov_b32 s%d, s%d" % (sE + 2, sE + 1, sT0, sHB, sE + (ysp >> 1))]
                e0 = o["early"]
                if e0:
                    assert ysp <= 5 and (e0 >= 13 or e0 == 4)
                    e1 = 12 if e0 == 4 else e0 + 5
                    fill.setdefault(e0, []).append("ds_read_b32 v27, v29 offset:12")
                    fill.setdefault(e1, []).append("s_waitcnt lgkmcnt(0)\nv_readfirstlane_b32 s%d, v27\nv_or_b32 v27, v27, v26" % sRDY)
                    e2 = max(e1 + 1, o["epos"])
                    for q, x in enumerate(hfirst(27)): fill.setdefault(min(35, e2 + q), []).append(x)
            for i in range(36):
                if cnt + i == o["hflag_at"]:
                    assert jj < 3 or i < 22
                    l = s.lab("hf")
                    fill.setdefault(i, []).append("s_cmp_eq_u32 s%d, 0\ns_cbranch_scc1 %s\ns_waitcnt vmcnt(0)\n" % (sISB, l) +
                                                  "buffer_store_dwordx2 v[2:3], v11, %s, s%d offen sc1\n" % (SR(rWS), sFH) + s.stamp_s("m", "hflag") + "\n%s:" % l)
            cnt += 36
            s.weave(ms, fill, pre)
        s.stamp("m", "conv_done")
        A("s_cbranch_scc1 L_cx1")
        for i in range(9): A("v_fmac_f32 v%d, s%d, v%d" % (CA + i, sDV, 136 + i))
        for q in range(4): A("ds_write_b128 v7, %s offset:%d" % (R(CA + 16 + 4 * q, 4), 1024 * q))
        for i in range(9, 16): A("v_fmac_f32 v%d, s%d, v%d" % (CA + i, sDV, 136 + i))
        A("s_branch L_cx2")
        A("L_cx1:")
        for q in range(4): A("ds_write_b128 v7, %s offset:%d" % (R(CA + 4 * q, 4), 1024 * q))
        A("s_nop 1")
        for i in range(16): A("v_fma_f32 v%d, s%d, v%d, v%d" % (CA + i, sDV, 136 + i, CA + 16 + i))
        A("L_cx2:")
        A("s_waitcnt lgkmcnt(0)")
        s.stamp("m", "BC2a")
        A("s_barrier")
        s.stamp("m", "BC2")
        vm = VM(s)
        assert HR + 8 * NB <= 255 and dp + 2 <= 11
        def wrd(stp):
            j, ks = stp >> 2, stp & 3
            hi = j in (0, 3, 4)
            off = (32768 if j in (2, 3, 6) else 0) + ks * 4096
            r = []
            for i in range(4):
                for hh in range(2):
                    r.append("ds_read_b64_tr_b16 %s, v%d offset:%d" % (R(WF + 16 * (stp & 1) + 4 * i + 2 * hh, 2), (36 if hi else 32) + i, off + hh * 2048))
            return r
        def hld(stp):
            b = HR + 8 * (stp % NB)
            r = ["buffer_load_dwordx4 %s, v26, %s, s%d offen offset:%d sc1" % (R(b + 4 * t, 4), SR(rWS), sHB, (stp & 1) * 2048 + t * 1024) for t in range(2)]
            if "a" in o["dbg"]: return r
            if "c" in o["dbg"]: return ["s_nop 0", "s_nop 0"]
            if stp & 3 == 1: r.append("s_add_u32 s%d, s%d, 4096" % (sHB, sHB))
            elif stp & 3 == 3 and stp < 27:
                r.append("s_cmp_eq_u32 s%d, %d\ns_cselect_b32 s%d, %d, s%d\ns_add_u32 s%d, s%d, s%d" % (sROT, 6 - (stp >> 2), sT0, 12288 - 7 * 16384, sROT + 1, sHB, sHB, sT0))
            return r
        A("ds_read_b32 v47, v47")
        for e in range(4): A("ds_read_b128 %s, v8 offset:%d" % (R(CA + 16 + 4 * e, 4), 1024 * e))
        if o["early"]: A("s_cmp_eq_u32 s%d, 0\ns_cbranch_scc1 L_h_early" % sRDY)
        for x in hfirst(26): A(x)
        A("L_h_early:")
        for stp in range(ysp): vm.add("h%d" % stp, 2)
        for pp in range(2):
            A("s_waitcnt lgkmcnt(%d)" % (2 - 2 * pp))
            for i in range(4):
                a = CA + 8 * pp + 2 * i
                A("v_pk_add_f32 %s, %s, %s" % (R(a, 2), R(a, 2), R(a + 16, 2)))
            for i in range(4):
                a = CA + 8 * pp + 2 * i
                A("v_cvt_pk_bf16_f32 v%d, v%d, v%d" % (HP + 4 * pp + i, a, a + 1))
            A("buffer_store_dwordx4 %s, v10, %s, s%d offen sc1" % (R(HP + 4 * pp, 4), SR(rWS), sY1 if pp else sY0)); vm.add("y")
        s.stamp("m", "y_stored")
        for x in wrd(0): A(x)
        for stp in range(ysp, dp):
            for x in hld(stp): A(x)
            vm.add("h%d" % stp, 2)
        lx = 3 if o["nreg"] == 4 else 4
        bars = (0, 1, 2, lx)
        prevbar = False
        for stp in range(28):
            j, ks = stp >> 2, stp & 3
            bar = ks == 3 and j in bars
            ms = []
            for i in range(4):
                for tj in range(2):
                    a = DA + 4 * (2 * i + tj)
                    c = "0" if stp == 0 else R(a, 4)
                    ms.append("v_mfma_f32_16x16x32_bf16 %s, %s, %s, %s" % (R(a, 4), R(WF + 16 * (stp & 1) + 4 * i, 4), R(HR + 8 * (stp % NB) + 4 * tj, 4), c))
            pre, fill = {}, {}
            nxt = wrd(stp + 1) if stp < 27 else []
            pre[0] = ["s_waitcnt vmcnt(%d) lgkmcnt(4)" % vm.n("h%d" % stp)]
            if stp == 0: pre[0].append(s.stamp_s("m", "h0"))
            if bar:
                pre[2] = ["s_waitcnt lgkmcnt(0)\n" + s.stamp_s("m", "X%da" % j) + "\ns_barrier\n" + s.stamp_s("m", "X%d" % j)]
                for q, g_ in enumerate((2, 2, 3, 3, 4, 5, 6, 7)): fill.setdefault(g_, []).append(nxt[q])
                lp = (0, 5, 7)
            elif nxt:
                for q in range(8): fill[q] = [nxt[q]]
                pre[4] = ["s_waitcnt lgkmcnt(4)"]
                lp = (1, 5, 6)
            else:
                pre[4] = ["s_waitcnt lgkmcnt(0)"]
            if stp == ysp:
                fill.setdefault(2 if not bar else 1, []).append("buffer_store_dwordx2 v[2:3], v28, %s, s%d offen sc1" % (SR(rWS), sFY))
                yf = True
            else: yf = False
            if stp + dp < 28:
                l = hld(stp + dp)
                for q, x in enumerate(l): fill.setdefault(lp[q], []).append(x)
                vm.add("h%d" % (stp + dp))
                if yf: vm.add("fy")
                vm.add("h%d" % (stp + dp))
            s.weave(ms, fill, pre)
        s.stamp("m", "g2_done")
        for i in range(4):
            for tj in range(2):
                a = DA + 4 * (2 * i + tj)
                p = WF + 2 * (2 * i + tj)
                for u in range(2):
                    A("v_cvt_pk_bf16_f32 v%d, v%d, v%d" % (p + u, a + 2 * u, a + 2 * u + 1))
                A("ds_write_b64 v%d, %s offset:%d" % (40 + i, R(p, 2), tj * 2048))
        if o["inl"]: s.tail(False)
        else: A("s_branch L_tail")

    def cA(s, st, J): return (128 + 4 * J) if st == 0 else (192 + 4 * J)
    def cB(s, st, m): return (160 + 4 * m) if st == 0 else (96 + 4 * m)

    def conv_addr(s):
        A = s.A
        A("v_and_b32 v27, 3, v20\nv_sub_u32 v27, 3, v27\nv_mul_u32_u24 v27, 4160, v27")
        A("v_lshrrev_b32 v4, 2, v20\nv_lshl_add_u32 v4, v4, 3, v27\nv_lshl_add_u32 v4, v9, 4, v4")
        A("s_lshr_b32 s%d, s%d, 1\ns_and_b32 s%d, s%d, 1\n" % (sT0, sW4, sT1, sW4) +
          "s_mul_i32 s%d, s%d, 16640\ns_lshl_b32 s%d, s%d, 8\ns_add_u32 s%d, s%d, s%d\ns_add_u32 s%d, s%d, %d\n" % (sT2, sT0, sT3, sT1, sT2, sT2, sT3, sT2, sT2, HC + 8) +
          "v_add_u32 v4, s%d, v4" % sT2)
        A("s_mul_i32 s%d, s%d, 4608\ns_add_u32 s%d, s%d, s%d\ns_add_u32 s%d, s%d, %d\n" % (sT2, sT0, sT3, sT3, sT2, sT3, sT3, RB + 4064 - 3584) +
          "v_lshlrev_b32 v27, 5, v20\nv_lshlrev_b32 v5, 4, v9")
        A("v_sub_u32 v5, v5, v27\nv_add_u32 v5, s%d, v5" % sT3)
        A("s_lshl_b32 s%d, s%d, 11\ns_sub_u32 s%d, s%d, s%d\ns_add_u32 s%d, s%d, %d\n" % (sT3, sT1, sT2, sT2, sT3, sT2, sT2, RB + 4088 - 1536) +
          "v_lshl_add_u32 v6, v9, 3, v27\nv_sub_u32 v6, s%d, v6" % sT2)
        A("s_lshl_b32 s%d, s%d, 12\ns_add_u32 s%d, s%d, %d\nv_lshl_add_u32 v7, v1, 4, s%d\nv_xor_b32 v8, 0x1000, v7" % (sT2, sW4, sT2, sT2, RED, sT2))
        A("v_lshrrev_b32 v10, 3, v20\nv_lshl_add_u32 v10, v9, 1, v10")
        A("v_lshlrev_b32 v10, 16, v10\nv_and_b32 v27, 7, v20")
        A("v_lshl_add_u32 v10, v27, 4, v10")

    def conv_reads(s, jj, st):
        def a(J, h): return "ds_read_b64 %s, v4 offset:%d" % (R(s.cA(st, J) + 2 * h, 2), 512 * J + 64 * jj + 8 * h)
        def b(m): return "ds_read_b128 %s, v5 offset:%d" % (R(s.cB(st, m), 4), 512 * (7 - m) + 64 * jj)
        o = [a(0, 0), a(0, 1)] + [b(m) for m in range(8)]
        for J in range(1, 8): o += [a(J, 0), a(J, 1)]
        return o

    def d_addr(s):
        A = s.A
        A("s_and_b32 s%d, s%d, 1\ns_lshr_b32 s%d, s%d, 1" % (sT1, sW4, sT0, sW4))
        A("v_bfe_u32 v27, v1, 2, 2\nv_lshl_add_u32 v30, v9, 2, v27")
        A("v_bfe_u32 v27, v30, 1, 2\nv_lshlrev_b32 v30, 7, v30")
        A("v_lshl_add_u32 v27, v27, 5, v30\nv_and_b32 v30, 3, v1")
        A("s_lshl_b32 s%d, s%d, 14\nv_lshl_add_u32 v27, v30, 3, v27\nv_add_u32 v32, s%d, v27" % (sT2, sT0, sT2))
        A("v_xor_b32 v33, 32, v32\nv_xor_b32 v34, 64, v32\nv_xor_b32 v35, 0x60, v32")
        for i in range(4): A("v_add_u32 v%d, 0x10000, v%d" % (36 + i, 32 + i))
        A("v_lshrrev_b32 v40, 1, v9\nv_and_b32 v41, 7, v20\nv_xor_b32 v40, v40, v41")
        A("v_and_b32 v41, 1, v9\nv_lshlrev_b32 v41, 3, v41")
        A("v_lshl_add_u32 v40, v40, 4, v41\nv_lshl_add_u32 v40, v20, 7, v40")
        A("s_lshl_b32 s%d, s%d, 12\ns_add_u32 s%d, s%d, %d\nv_add_u32 v40, s%d, v40\nv_xor_b32 v41, 32, v40" % (sT2, sW4, sT2, sT2, RED, sT2))
        A("v_xor_b32 v42, 64, v40\nv_xor_b32 v43, 0x60, v40")
        A("s_lshl_b32 s%d, s%d, 1\ns_add_u32 s%d, s%d, s%d\ns_mul_i32 s%d, s%d, 14\ns_add_u32 s%d, s%d, s%d" % (sT2, sM2, sT2, sT2, sT0, sT2, sT2, sT2, sT2, sT1))
        s.rot(sROT, sT3)
        A("s_movk_i32 s%d, 0x3000" % (sROT + 1))
        A("s_lshl_b32 s%d, s%d, 1\ns_add_u32 s%d, s%d, s%d" % (sT3, sROT, sT2, sT2, sT3))
        A("s_lshl_b32 s%d, s%d, 13\ns_add_u32 s%d, s%d, 0x%x" % (sHB, sT2, sHB, sHB, WS_H))
        A("s_lshl_b32 s%d, s%d, 1\ns_add_u32 s%d, s%d, s%d\ns_lshl_b32 s%d, s%d, 9\ns_add_u32 s%d, s%d, s%d" % (sT2, sSLOT, sT2, sT2, sT0, sFY, sT1, sFY, sFY, sT2))
        s.flagoff(sFY, WS_FY)
        A("s_lshl_b32 s%d, s%d, 7\ns_lshl_b32 s%d, s%d, 20\ns_add_u32 s%d, s%d, s%d\ns_add_u32 s%d, s%d, 0x%x\ns_add_u32 s%d, s%d, 0x80000" % (sT2, sT2, sT3, sT1, sT2, sT2, sT3, sY0, sT2, WS_Y, sY1, sY0))

    def tail_addr(s):
        A = s.A
        A("s_lshl_b32 s%d, s%d, 10\ns_add_u32 s%d, s%d, %d\nv_lshl_add_u32 v44, v1, 4, s%d" % (sT0, sW8, sT1, sT0, XT, sT1))
        A("v_lshrrev_b32 v45, 3, v1\nv_and_b32 v46, 7, v1")
        A("v_xor_b32 v47, v45, v46\nv_lshlrev_b32 v45, 7, v45")
        A("s_add_u32 s%d, s%d, %d\nv_lshl_add_u32 v45, v47, 4, v45\nv_add_u32 v45, s%d, v45" % (sT1, sT0, RED, sT1))
        A("v_lshrrev_b32 v47, 5, v1\nv_lshlrev_b32 v47, 18, v47")
        A("v_lshl_add_u32 v46, v46, 4, v47\nv_bfe_u32 v47, v1, 3, 2")
        A("v_lshl_add_u32 v46, v47, 10, v46\n" + s.tokbase(sOB, sM2, sT1))
        A("s_lshl_b32 s%d, s%d, 4\ns_add_u32 s%d, s%d, s%d\ns_lshl_b32 s%d, s%d, 10\ns_lshl_b32 s%d, s%d, 7\ns_add_u32 s%d, s%d, s%d" % (sT1, sW8, sOB, sOB, sT1, sOB, sOB, sT1, sN2, sOB, sOB, sT1))
        A("s_lshl_b32 s%d, s%d, 6\ns_add_u32 s%d, s%d, %d\nv_and_b32 v47, 0x38, v1\nv_add_u32 v47, s%d, v47" % (sT1, sW8, sT1, sT1, STL + 4, sT1))
        A("s_lshl_b32 s%d, s%d, 9\ns_add_u32 s%d, s%d, 0x%x" % (sST, sM2, sST, sST, WS_ST))

    def tail(s, lab=True):
        A = s.A
        if lab: A("L_tail:")
        A("s_waitcnt vmcnt(0) lgkmcnt(0)")
        if s.o["stamps"]:
            if lab: s.nst["m"].append("DEa"); s.nst["h"].append("DEa")
            A("s_memrealtime s[%d:%d]\ns_waitcnt lgkmcnt(0)\nv_writelane_b32 v255, s%d, 62" % (sTS, sTS + 1, sTS))
        A("s_barrier")
        A("ds_read_b128 v[68:71], v45\nds_read_b128 v[72:75], v45 offset:8192\nds_read_b128 v[64:67], v44")
        for t in (1, 2, 0):
            A("s_waitcnt lgkmcnt(%d)" % ((3 - t) % 3))
            for d in range(4):
                A("v_lshlrev_b32 v%d, 16, v%d\nv_and_b32 v%d, 0xffff0000, v%d" % (80 + 8 * t + 2 * d, 64 + 4 * t + d, 81 + 8 * t + 2 * d, 64 + 4 * t + d))
            if t == 2:
                for d in range(4): A("v_pk_add_f32 %s, %s, %s" % (R(88 + 2 * d, 2), R(88 + 2 * d, 2), R(96 + 2 * d, 2)))
        for d in range(4): A("v_pk_fma_f32 %s, %s, v[46:47], %s op_sel:[0,1,0] op_sel_hi:[1,1,1]" % (R(80 + 2 * d, 2), R(88 + 2 * d, 2), R(80 + 2 * d, 2)))
        for d in range(4): A("v_cvt_pk_bf16_f32 v%d, v%d, v%d" % (64 + d, 80 + 2 * d, 81 + 2 * d))
        A("buffer_store_dwordx4 v[64:67], v46, %s, s%d offen %s" % (SR(rOUT), sOB, s.o["outsc"]))
        if s.o["stamps"]:
            if lab: s.nst["m"].append("end"); s.nst["h"].append("end")
            A("s_memrealtime s[%d:%d]\ns_waitcnt lgkmcnt(0)\nv_writelane_b32 v255, s%d, 63" % (sTS, sTS + 1, sTS))
            A("s_memtime s[%d:%d]\ns_waitcnt lgkmcnt(0)\nv_writelane_b32 v255, s%d, 61" % (sTS, sTS + 1, sTS))
        s.stamp_out()
        A("s_endpgm")

    def spare_m(s):
        A = s.A
        o = s.o
        A("L_spare_m:")
        A(s.aflag())
        A("s_setprio 0")
        s.srd(rA, sH, 2 << 20); s.srd(rB, sW2, 1792 * 1024)
        A("v_lshlrev_b32 v128, 7, v1\nv_lshrrev_b32 v129, 2, v1\nv_and_b32 v130, 3, v1\nv_lshlrev_b32 v129, 10, v129\nv_lshl_add_u32 v129, v130, 7, v129")
        def item(ch):
            if ch == "H":
                A("s_and_b32 s%d, s%d, 3\ns_lshl_b32 s%d, s%d, 2\ns_add_u32 s%d, s%d, s%d\ns_lshl_b32 s%d, s%d, 2\ns_add_u32 s%d, s%d, s%d" % (sT0, sIDX, sT1, sC, sT0, sT0, sT1, sT0, sT0, sT0, sT0, sW4))
                A("s_lshl_b32 s%d, s%d, 14\ns_add_u32 s%d, s%d, 8192" % (sT0, sT0, sT1, sT0))
                A("buffer_load_dword v132, v128, %s, s%d offen %s\nbuffer_load_dword v133, v128, %s, s%d offen %s" % (SR(rA), sT0, o["pH"], SR(rA), sT1, o["pH"]))
            elif ch == "U":
                A("s_and_b32 s%d, s%d, 3\ns_and_b32 s%d, s%d, 6\ns_lshl_b32 s%d, s%d, 1\ns_add_u32 s%d, s%d, s%d\ns_lshl_b32 s%d, s%d, 2\ns_add_u32 s%d, s%d, s%d" % (sT0, sIDX, sT1, sC, sT1, sT1, sT0, sT0, sT1, sT0, sT0, sT0, sT0, sW4))
                A("s_mul_i32 s%d, s%d, 56\ns_and_b32 s%d, s%d, 1\ns_add_u32 s%d, s%d, s%d\ns_lshl_b32 s%d, s%d, 9\ns_add_u32 s%d, s%d, 12288" % (sT0, sT0, sT1, sC, sT0, sT0, sT1, sT0, sT0, sT1, sT0))
                A("buffer_load_dword v134, v129, %s, s%d offen\nbuffer_load_dword v135, v129, %s, s%d offen" % (SR(rB), sT0, SR(rB), sT1))
            elif ch == "V" or ch.isdigit():
                A("s_and_b32 s%d, s%d, 1\ns_lshl_b32 s%d, s%d, 2\ns_add_u32 s%d, s%d, s%d\ns_lshl_b32 s%d, s%d, 14" % (sT0, sIDX, sT0, sT0, sT0, sT0, sW4, sT0, sT0))
                A("s_bfe_u32 s%d, s%d, 0x10001\ns_mul_i32 s%d, s%d, %d\ns_add_u32 s%d, s%d, s%d" % (sT1, sIDX, sT1, sT1, 896 * 1024, sT0, sT0, sT1))
                A("s_and_b32 s%d, s%d, 1\ns_lshl_b32 s%d, s%d, 9\ns_add_u32 s%d, s%d, s%d" % (sT1, sC, sT1, sT1, sT0, sT0, sT1))
                for j in (range(7) if ch == "V" else [int(ch)]):
                    A("s_add_u32 s%d, s%d, %d\nbuffer_load_dword v%d, v129, %s, s%d offen %s" % (sT1, sT0, j * 131072, 136 + j, SR(rB), sT1, o["pV"]))
            elif ch == "w": A("s_waitcnt vmcnt(0)")
        a, b = o["sord"].split("|")
        for ch in a: item(ch)
        s.stamp("m", "S1a")
        A("s_waitcnt lgkmcnt(0)\ns_barrier")
        for ch in b: item(ch)
        s.stamp("m", "S2a")
        A("s_barrier")
        if o["prio"]: A("s_setprio %d" % o["prio"])
        A("s_waitcnt vmcnt(0)")
        cr = s.conv_reads(0, 0)
        for x in cr:
            if "v4 " in x and not s.alate: A(x)
        A("ds_read_b32 v27, v29 offset:8")
        if o["rchk"] == 8: A("s_branch L_m_rchk")
        else:
            s.rcheck()
            for x in s.crb: A(x)
            A("s_branch L_m_conv")

    def spare_h(s):
        A = s.A
        o = s.o
        XR, SUM = 128, 100
        vm = VM(s)
        A("L_spare_h0:")
        A("v_lshrrev_b32 v112, 5, v1\nv_bfe_u32 v113, v1, 3, 2\nv_lshl_add_u32 v112, v112, 8, v113\nv_and_b32 v114, 7, v1")
        A("v_lshlrev_b32 v112, 10, v112\nv_lshl_add_u32 v112, v114, 4, v112")
        A("s_and_b32 s%d, s%d, 3\ns_lshl_b32 s%d, s%d, 2\ns_add_u32 s%d, s%d, s%d" % (sT0, sIDX, sMI, sC, sMI, sMI, sT0))
        A(s.tokbase(sT0, sMI, sT1))
        A("s_lshl_b32 s%d, s%d, 5\ns_add_u32 s%d, s%d, s%d\ns_lshl_b32 s%d, s%d, 10\ns_add_u32 s%d, s%d, 16384" % (sT1, sW4, sT0, sT0, sT1, sT0, sT0, sT1, sT0))
        H = s.hitems(vm)
        A("s_mov_b32 s0, s%d\ns_mov_b32 s1, s%d" % (sT0, sT1))
        for b in range(2):
            for j in range(8):
                A("buffer_load_dwordx4 %s, v112, %s, s%d offen offset:%d" % (R(XR + 32 * b + 4 * j, 4), SR(rA), b, 128 * j)); vm.add("x%d" % (8 * b + j))
                if 8 * b + j == 3: H["S"](); H["D"]()
                if 8 * b + j == o["sba"] and "r" not in o["ord"]: H["A"]()
        A("s_setprio 1")
        A("s_waitcnt lgkmcnt(0)\ns_barrier")
        s.stamp("h", "B0")
        if "r" in o["ord"]: H["r"]()
        H["h"]()
        for i in range(8): A("v_mov_b32 v%d, 0" % (SUM + i))
        A("s_mov_b32 s%d, 0x3f803f80" % sT0)
        for b in range(2):
            for j in range(8):
                vm.wait("x%d" % (8 * b + j))
                for d in range(4):
                    x = XR + 32 * b + 4 * j + d
                    A("v_dot2c_f32_bf16 v%d, s%d, v%d" % (SUM + 4 * b + (d & 1), sT0, x))
                    A("v_dot2c_f32_bf16 v%d, v%d, v%d" % (SUM + 4 * b + 2 + (d & 1), x, x))
        for b in range(2):
            A("v_add_f32 v%d, v%d, v%d\nv_add_f32 v%d, v%d, v%d" % (SUM + 2 * b, SUM + 4 * b, SUM + 4 * b + 1, SUM + 2 * b + 1, SUM + 4 * b + 2, SUM + 4 * b + 3))
        A("s_nop 0")
        for ctl in ("quad_perm:[1,0,3,2]", "quad_perm:[2,3,0,1]", "row_half_mirror"):
            for i in range(4): A("v_add_f32_dpp v%d, v%d, v%d %s row_mask:0xf bank_mask:0xf" % (SUM + i, SUM + i, SUM + i, ctl))
        A("v_cmp_eq_u32 vcc, 1, v114\nv_lshrrev_b32 v113, 3, v1\nv_lshl_add_u32 v113, v114, 3, v113")
        SQ = SUM + 1
        A("v_cndmask_b32 v%d, v%d, v%d, vcc\nv_cndmask_b32 v%d, v%d, v%d, vcc" % (SUM, SUM, SUM + 2, SQ, SQ, SUM + 3))
        A("v_mul_f32 v%d, 0x3b000000, v%d\nv_mul_f32 v%d, 0x3b000000, v%d" % (SUM, SUM, SQ, SQ))
        A("v_fma_f32 v%d, -v%d, v%d, v%d\nv_max_f32 v%d, 0, v%d" % (SQ, SUM, SUM, SQ, SQ, SQ))
        A("v_cvt_pk_bf16_f32 v%d, v%d, v%d" % (SUM + 2, SUM, SQ))
        A("v_lshlrev_b32 v%d, 16, v%d\nv_and_b32 v%d, 0xffff0000, v%d" % (SUM, SUM + 2, SQ, SUM + 2))
        A("v_add_f32 v%d, 0x3727c5ac, v%d" % (SQ, SQ))
        A("v_cvt_pk_bf16_f32 v%d, v%d, v%d\nv_lshlrev_b32 v%d, 16, v%d\nv_sqrt_f32 v%d, v%d" % (SQ, SQ, SQ, SQ, SQ, SQ, SQ))
        A("v_cmp_gt_u32 vcc, 2, v114\nv_lshlrev_b32 v113, 3, v113\nv_mov_b32 v115, 0x%x" % OOB)
        A("v_cvt_pk_bf16_f32 v%d, v%d, v%d\nv_lshlrev_b32 v%d, 16, v%d\nv_rcp_f32 v%d, v%d" % (SQ, SQ, SQ, SQ, SQ, SQ, SQ))
        A("v_cndmask_b32 v113, v115, v113, vcc")
        A("s_lshl_b32 s%d, s%d, 2\ns_add_u32 s%d, s%d, s%d\ns_lshl_b32 s%d, s%d, 7\ns_add_u32 s%d, s%d, 0x%x" % (sT0, sMI, sT0, sT0, sW4, sT0, sT0, sT0, sT0, WS_ST))
        A("buffer_store_dwordx2 %s, v113, %s, s%d offen sc1" % (R(SUM, 2), SR(rWS), sT0)); vm.add("st")
        A("s_lshl_b32 s%d, s%d, 3\ns_add_u32 s%d, s%d, s%d" % (sMI, sMI, sMI, sMI, sW4))
        s.flagoff(sMI, WS_FS)
        vm.wait("H", extra=" lgkmcnt(0)")
        s.stamp("h", "S1a")
        A("s_barrier")
        H["N"]()
        if "r" in o["ord"]: H["f"]()
        H["z"](); H["c"](); H["d"]()
        vm.wait("st")
        A("buffer_store_dwordx2 v[28:29], v27, %s, s%d offen sc1" % (SR(rWS), sMI)); vm.add("fs")
        s.stamp("h", "sflag")
        H["R"]()
        A("s_waitcnt lgkmcnt(0)"); s.stamp("h", "S2a"); A("s_barrier\ns_setprio 0")
        H["n"]()
        for ch in s.prejoin:
            if ch in "wvxu": H[ch]()
        a = [t for t in s.vmjoin if t[0] == "w"]
        assert [t for t in vm.q if t[0] == "w"] == a and (not a or vm.q[-len(a):] == a)
        for t in set(a):
            i = max(k for k, x in enumerate(s.vmjoin) if x == t); j = max(k for k, x in enumerate(vm.q) if x == t)
            if len(s.vmjoin) - i > len(vm.q) - j: A("s_waitcnt vmcnt(0)"); break
        A("s_branch L_h_join")

    def hitems(s, vm):
        A = s.A
        o = s.o
        WREG = 120
        QS = {0: 4, 1: 0, 2: 2, 3: 6, 4: 4, 5: 0, 6: 2}
        nreg = o["nreg"]
        st_ = {"p": False, "S": False, "h": False}
        def stage(k, stream=(), g0=0):
            slot = k % 3
            a, b, c = 0, 1, 3
            if k == 0 or not o["rot"]:
                A("s_add_u32 s%d, s%d, %d\ns_add_u32 s%d, s%d, %d" % (a, sXB, 128 * k, b, sWB, 64 * 3584 * k))
            else:
                A("s_lshl_b32 s%d, s%d, 7\ns_add_u32 s%d, s%d, s%d" % (a, sCNT, a, a, sXB))
                A("s_mul_i32 s%d, s%d, %d\ns_add_u32 s%d, s%d, s%d" % (b, sCNT, 64 * 3584, b, b, sWB))
            stream = list(stream)
            need = True
            for j in range(8):
                if need or j == 4: A("s_add_u32 m0, s%d, %d" % (sLB, slot * 32768 + (j >> 2) * 16384)); need = False
                if j < 4:
                    A("s_add_u32 s%d, s%d, %d" % (c, a, j * (16384 - 1024)))
                    A("buffer_load_dwordx4 v%d, %s, s%d offen offset:%d lds" % (10 + (j & 1), SR(rA), c, j * 1024))
                else:
                    A("s_add_u32 s%d, s%d, %d" % (c, b, (j - 4) * (4 * 3584 - 1024)))
                    A("buffer_load_dwordx4 v%d, %s, s%d offen offset:%d lds" % (12 + ((j - 4) >> 1), SR(rB), c, (j - 4) * 1024))
                vm.add("s%d" % k)
                if j == 0 and 0 < k < 7 and o["rot"]: A("s_cmp_eq_u32 s%d, 7\ns_cselect_b32 s%d, 0, s%d\ns_add_u32 s%d, s%d, 1" % (sCNT, sCNT, sCNT, sCNT, sCNT))
                if g0 <= j < 7:
                    n = -(-len(stream) // (7 - j))
                    for x in stream[:n]:
                        if callable(x): x(); need = True
                        else: A(x)
                    stream = stream[n:]
            assert not stream
        def nonce():
            A("v_mov_b32 v3, %d\nds_read_b64 v[28:29], v3\ns_waitcnt lgkmcnt(0)\nv_readfirstlane_b32 s%d, v28\nv_readfirstlane_b32 s%d, v29" % (NONL, sN, sN + 1))
        def rout():
            A("ds_read_b128 v[56:59], v18\nds_read_b128 v[60:63], v18 offset:1024")
            A("s_lshl_b32 s%d, s%d, 2\ns_add_u32 s%d, s%d, s%d\ns_lshl_b32 s%d, s%d, 5\ns_sub_u32 s%d, 31, s%d" % (sT0, sC, sT0, sT0, sW4, sFH, sT0, sT1, sIDX))
            A("s_add_u32 s%d, s%d, s%d\ns_lshl_b32 s%d, s%d, 16\ns_lshl_b32 s%d, s%d, 7\ns_add_u32 s%d, s%d, s%d\ns_add_u32 s%d, s%d, 0x8000" % (sFH, sFH, sT1, sT0, sT0, sT1, sT1, sT0, sT0, sT1, sT1, sT0))
            s.flagoff(sFH, WS_FA)
            A("s_waitcnt lgkmcnt(1)\nbuffer_store_dwordx4 v[56:59], v19, %s, s%d offen sc1" % (SR(rWS), sT0))
            A("s_waitcnt lgkmcnt(0)\nbuffer_store_dwordx4 v[60:63], v19, %s, s%d offen sc1" % (SR(rWS), sT1))
            vm.add("r", 2)
        def flag_a():
            vm.wait("r")
            A("buffer_store_dwordx2 v[28:29], v27, %s, s%d offen sc1" % (SR(rWS), sFH)); vm.add("fa")
            s.stamp("h", "aflag")
        def bar_a():
            s.stamp("h", "BAa")
            A("s_barrier")
        def zero():
            A("v_lshrrev_b32 v3, 5, v1\nv_mul_u32_u24 v3, 4608, v3\nv_and_b32 v4, 31, v1\nv_lshl_add_u32 v3, v4, 4, v3\nv_add_u32 v3, %d, v3" % (RB + 4096))
            A("ds_write_b128 v3, v[52:55]")
        def h_rows():
            if not st_["S"]:
                s.srd(rH, sH, 2 << 20); A("v_lshlrev_b32 v14, 4, v1"); st_["h"] = True
            A("s_lshl_b32 s%d, s%d, 13\ns_lshl_b32 s%d, s%d, 11\ns_add_u32 s%d, s%d, s%d" % (sT2, sSLOT, sT1, sW4, sT2, sT2, sT1))
            A("s_lshr_b32 s%d, s%d, 1\ns_mul_i32 s%d, s%d, %d\ns_add_u32 s%d, s%d, s%d\ns_add_u32 m0, s%d, %d\ns_nop 0" % (sT0, sW4, sT0, sT0, 16640 - 4096, sT0, sT0, sT1, sT0, HC + 32))
            A("buffer_load_dwordx4 v14, %s, s%d offen %s lds" % (SR(rH), sT2, o["ph"]))
            A("buffer_load_dwordx4 v14, %s, s%d offen offset:1024 %s lds" % (SR(rH), sT2, o["ph"])); vm.add("H", 2)
        def copies(ch):
            b = 64
            A("s_lshl_b32 s%d, s%d, 10\ns_add_u32 s%d, s%d, %d\nv_add_u32 v3, s%d, v14" % (sT0, sW4, sT0, sT0, HC + 24 + ch * 16640, sT0))
            A("s_waitcnt lgkmcnt(0)\nds_read_b64 %s, v3\nds_read_b128 %s, v3 offset:8\ns_waitcnt lgkmcnt(0)" % (R(b, 2), R(b + 2, 4)))
            for j in range(4): A("v_alignbyte_b32 v%d, v%d, v%d, 2" % (b + 6 + j, b + 2 + j, b + 1 + j))
            A("ds_write_b128 v3, %s offset:%d" % (R(b + 6, 4), 4160 + 8))
            for j in range(4): A("v_mov_b32 v%d, v%d" % (b + 10 + j, b + 1 + j))
            A("ds_write_b128 v3, %s offset:%d" % (R(b + 10, 4), 2 * 4160 + 8))
            for j in range(4): A("v_alignbyte_b32 v%d, v%d, v%d, 2" % (b + 14 + j, b + 1 + j, b + j))
            A("ds_write_b128 v3, %s offset:%d" % (R(b + 14, 4), 3 * 4160 + 8))
        def p_a():
            A("s_lshr_b32 s%d, s%d, 3\ns_lshl_b32 s%d, s%d, 2\ns_add_u32 s%d, s%d, s%d\ns_lshl_b32 s%d, s%d, 3" % (sT0, sSLOT, sT0, sT0, sT0, sT0, sW4, sFH, sT0))
            s.flagoff(sFH, WS_FA)
            s.poll_issue(8, sFH)
            st_["p"] = True
        def r_in():
            if not st_["p"]: p_a()
            A("s_lshl_b32 s%d, s%d, 13\ns_lshl_b32 s%d, s%d, 10\ns_add_u32 s%d, s%d, s%d\ns_add_u32 m0, s%d, %d" % (sT0, sSLOT, sT1, sW4, sT0, sT0, sT1, sT1, RB))
            s.poll_check(8, sFH)
            s.stamp("h", "pollA")
            A("buffer_load_dwordx4 v14, %s, s%d offen sc1 lds" % (SR(rWS), sT0))
            A("s_add_u32 m0, s%d, %d\ns_add_u32 s%d, s%d, 4096" % (sT1, RB + 4608, sT0, sT0))
            A("buffer_load_dwordx4 v14, %s, s%d offen sc1 lds" % (SR(rWS), sT0)); vm.add("R", 2)
        def setup():
            st_["S"] = True
            s.srd(rC, sW2, 1792 * 1024); s.srd(rWS, sWS, WS_SIZE); s.srd(rOUT, sOUT, 2 << 20)
            if not st_["h"]:
                s.srd(rH, sH, 2 << 20); A("v_lshlrev_b32 v14, 4, v1")
            A("v_mov_b32 v52, 0\nv_mov_b32 v53, 0\nv_mov_b32 v54, 0\nv_mov_b32 v55, 0")
            A("v_lshrrev_b32 v3, 1, v20\nv_mul_u32_u24 v3, 4160, v3\nv_and_b32 v4, 1, v1\nv_lshl_add_u32 v3, v4, 4, v3\nv_add_u32 v3, %d, v3" % HC)
            A("ds_write_b128 v3, v[52:55]")
            A("v_mov_b32 v3, %d\nv_min_u32 v27, 1, v1\nv_lshlrev_b32 v27, 31, v27" % NONL)
            A("v_bfrev_b32 v4, 1\nds_write2_b32 v3, v52, v4 offset0:2 offset1:3")
            A("v_lshrrev_b32 v3, 3, v1")
            if "r" in o["ord"]:
                A("v_xor_b32 v4, v3, v5\nv_lshlrev_b32 v18, 7, v3\nv_lshl_add_u32 v18, v4, 4, v18")
                A("s_lshl_b32 s%d, s%d, 11\ns_add_u32 s%d, s%d, %d\nv_add_u32 v18, s%d, v18\nv_lshlrev_b32 v19, 12, v3\nv_lshl_add_u32 v19, v5, 4, v19" % (sT0, sW4, sT0, sT0, ROUT, sT0))
            A("v_lshlrev_b32 v4, 1, v9\nv_xor_b32 v4, v4, v5\nv_lshlrev_b32 v3, 10, v3\nv_lshl_add_u32 v24, v4, 4, v3")
            A("s_lshl_b32 s%d, s%d, 7\ns_lshl_b32 s%d, s%d, 15\ns_add_u32 s%d, s%d, s%d" % (sT0, sN2, sT1, sW4, sW2B, sT0, sT1))
            s.rot(hROT, sT0)
            A("s_lshl_b32 s%d, s%d, 17\ns_add_u32 s%d, s%d, s%d" % (sT0, hROT, sW2B, sW2B, sT0))
        def notify():
            A("v_mov_b32 v3, %d\nv_mov_b32 v4, 1" % NONL)
            vm.wait("R", extra=" lgkmcnt(0)")
            A("s_mov_b64 exec, 1\nds_add_u32 v3, v4 offset:8\ns_mov_b64 exec, -1")
            s.stamp("h", "rnote")
        def w2half(j, kh):
            dma = not (3 <= j < 3 + nreg)
            t = 7 * kh + j
            if dma: A("s_add_u32 m0, s%d, %d" % (sLB, (QS[j] + kh) * 16384))
            A("s_cmp_ge_u32 s%d, %d\ns_cselect_b32 s%d, %d, 0\ns_sub_u32 s%d, s%d, s%d" % (hROT, 7 - j, sT1, 7 * 131072, sT1, sW2B, sT1))
            for q in range(4):
                if dma:
                    A("s_add_u32 s%d, s%d, %d" % (sT0, sT1, q * (8192 - 1024) + t * 131072))
                    A("buffer_load_dwordx4 v24, %s, s%d offen offset:%d lds" % (SR(rC), sT0, q * 1024))
                else:
                    A("s_add_u32 s%d, s%d, %d" % (sT0, sT1, q * 8192 + t * 131072))
                    A("buffer_load_dwordx4 %s, v24, %s, s%d offen" % (R(WREG + 32 * (j - 3) + 16 * kh + 4 * q, 4), SR(rC), sT0))
                vm.add("w%d_%d" % (j, kh))
        def w2load(j):
            for kh in range(2): w2half(j, kh)
        def w2put(j):
            if "d" in o["dbg"] and j >= 3 + nreg:
                for kh in range(2): vm.add("w%d_%d" % (j, kh), 0); vm.q.insert(0, "w%d_%d" % (j, kh))
                return
            if "b" in o["dbg"] and j < 3 + nreg: return
            if not (3 <= j < 3 + nreg): return w2load(j)
            a = 15 if QS[j] < 4 else 16
            for kh in range(2):
                vm.wait("w%d_%d" % (j, kh))
                for q in range(4):
                    A("ds_write_b128 v%d, %s offset:%d" % (a, R(WREG + 32 * (j - 3) + 16 * kh + 4 * q, 4), ((QS[j] & 3) + kh) * 16384 + q * 1024))
        nx = {"w": 0, "v": 6}
        def nxt(k, n=2):
            for _ in range(n):
                j = nx[k]; nx[k] += 1
                assert j < (6 if k == "w" else 6 + 2 * nreg)
                w2half(j >> 1, j & 1)
        def daddr():
            A("v_add_u32 v15, s%d, v14\nv_add_u32 v16, 0x10000, v15" % sLB)
            s.tail_addr()
            A("s_lshl_b32 s%d, s%d, 14\ns_sub_u32 s%d, s%d, s%d\ns_lshl_b32 s%d, s%d, 15\ns_add_u32 s%d, s%d, s%d" % (sT0, sW8, sY0, sOB, sT0, sT0, sW4, sY0, sY0, sT0))
            A("s_lshl_b32 s%d, s%d, 5\ns_add_u32 s%d, s%d, %d" % (sT0, sW4, sT0, sT0, XT))
            A("v_lshlrev_b32 v3, 7, v20\nv_add_u32 v3, s%d, v3\nv_lshl_add_u32 v21, v9, 3, v3" % sT0)
            A("v_bfe_u32 v4, v1, 2, 2\nv_lshl_add_u32 v4, v9, 2, v4\nv_lshlrev_b32 v4, 7, v4\nv_and_b32 v6, 3, v1\nv_lshl_add_u32 v4, v6, 3, v4")
            A("s_lshl_b32 s%d, s%d, 11\ns_add_u32 s%d, s%d, %d\nv_add_u32 v22, s%d, v4" % (sT1, sW4, sT1, sT1, YT, sT1))
            A("v_lshlrev_b32 v17, 3, v20\nv_add_u32 v17, %d, v17" % STL)
            A("s_xor_b32 s%d, s%d, 1\ns_min_u32 s%d, s%d, 1\ns_lshl_b32 s%d, s%d, 31\ns_add_u32 s%d, s%d, %d" % (sT0, sW4, sT0, sT0, sT0, sT0, sT0, sT0, STL))
            A("v_lshl_add_u32 v30, v1, 3, s%d\ns_sub_u32 s%d, s%d, %d" % (sT0, sST, sST, STL))
            A("s_lshl_b32 s%d, s%d, 2\ns_add_u32 s%d, s%d, s%d\ns_lshr_b32 s%d, s%d, 4\ns_lshl_b32 s%d, s%d, 5" % (sT0, sN2, sT0, sT0, sW4, sT1, sM2, sT1, sT1))
            A("s_add_u32 s%d, s%d, s%d\ns_lshl_b32 s%d, s%d, 4" % (sT1, sT1, sT0, sFY, sT1))
            s.flagoff(sFY, WS_FY)
            A("s_lshl_b32 s%d, s%d, 11\ns_lshl_b32 s%d, s%d, 16\ns_add_u32 s%d, s%d, s%d\ns_add_u32 s%d, s%d, 0x%x" % (sT0, sT0, sT1, sM2, sT0, sT0, sT1, sY1, sT0, WS_Y))
            A("s_lshl_b32 s%d, s%d, 4\ns_add_u32 s%d, s%d, s%d\ns_lshl_b32 s%d, s%d, 2" % (sPH, sM2, sPH, sPH, hROT, sPH, sPH))
            A("s_mul_i32 s%d, s%d, 6\ns_add_u32 s%d, s%d, s%d" % (sT0, sW4, sPH, sPH, sT0)); s.flagoff(sPH, WS_FH)
            A("s_lshl_b32 s%d, s%d, 11\ns_add_u32 s%d, s%d, %d\nv_add_u32 v23, s%d, v14" % (sT0, sW4, sT0, sT0, XT, sT0))
            A("s_lshl_b32 s%d, s%d, 3" % (sHB, sM2)); s.flagoff(sHB, WS_FS)
        def v_touch():
            A("v_lshrrev_b32 v3, 2, v1\nv_and_b32 v4, 3, v1\nv_lshlrev_b32 v3, 10, v3\nv_lshl_add_u32 v3, v4, 7, v3")
            A("s_and_b32 s%d, s%d, 1\ns_lshl_b32 s%d, s%d, 2\ns_add_u32 s%d, s%d, s%d\ns_lshr_b32 s%d, s%d, 2\ns_lshl_b32 s%d, s%d, 3\ns_add_u32 s%d, s%d, s%d\ns_lshl_b32 s%d, s%d, 14" % (sT0, sIDX, sT0, sT0, sT0, sT0, sW4, sT1, sIDX, sT1, sT1, sT0, sT0, sT1, sT0, sT0))
            A("s_bfe_u32 s%d, s%d, 0x10001\ns_mul_i32 s%d, s%d, %d\ns_add_u32 s%d, s%d, s%d" % (sT1, sIDX, sT1, sT1, 896 * 1024, sT0, sT0, sT1))
            A("s_and_b32 s%d, s%d, 1\ns_lshl_b32 s%d, s%d, 9\ns_add_u32 s%d, s%d, s%d" % (sT1, sC, sT1, sT1, sT0, sT0, sT1))
            A("buffer_load_dword v31, v3, %s, s%d offen %s" % (SR(rC), sT0, o["pV"])); vm.add("V")
        def only(w, f):
            l = s.lab("w")
            A("s_cmp_lg_u32 s%d, %d\ns_cbranch_scc1 %s" % (sW4, w, l)); f(); A("%s:" % l)
        def s_issue(): only(1, lambda: s.poll_issue(4, sHB)); st_["s"] = True
        def s_check():
            if not st_.get("s"): s_issue()
            only(1, lambda: s.poll_check(4, sHB))
            A("buffer_load_dwordx2 v[56:57], v30, %s, s%d offen sc1" % (SR(rWS), sST)); vm.add("ms")
        def m_put():
            vm.wait("ms")
            only(1, lambda: A("ds_write_b64 v30, v[56:57] offset:%d\ns_waitcnt lgkmcnt(0)" % 0))
        def x_load():
            A("s_add_u32 s%d, s%d, 16384" % (sT1, sY0))
            A("buffer_load_dwordx4 v[32:35], v46, %s, s%d offen" % (SR(rA), sY0))
            A("buffer_load_dwordx4 v[36:39], v46, %s, s%d offen" % (SR(rA), sT1)); vm.add("x", 2)
        def h_issue():
            only(0, lambda: s.poll_issue(12, sPH)); only(2, lambda: s.poll_issue(16, sPH)); st_["P"] = True
        def h_check():
            if not st_.get("P"): h_issue()
            only(0, lambda: (s.poll_check(12, sPH), A("v_mov_b32 v3, %d\nds_write_b32 v3, v52 offset:12" % NONL), s.stamp("h", "pollH1")))
        H = dict(V=v_touch, s=s_issue, t=s_check, m=m_put, X=x_load, P=h_issue, Q=h_check, only=only, N=nonce, A=bar_a, r=rout, f=flag_a, z=zero, h=h_rows, c=lambda: copies(0), d=lambda: copies(1), R=r_in, n=notify, D=daddr,
                 w=lambda: nxt("w"), v=lambda: nxt("v"), x=lambda: nxt("w", 1), u=lambda: nxt("v", 1), put=w2put, p=p_a, S=setup)
        for ch in o.get("skip", ""): H[ch] = lambda: None
        def dot():
            st_["dot"] = st_.get("dot", 0) + 1
            s.stamp("h", "t%d" % st_["dot"])
        H["."] = dot
        def cap(f):
            old = s.L; s.L = []
            f()
            r = s.L; s.L = old
            return r
        def section(sec):
            for m in re.finditer(r"(\d)(?:\((?:(\d):)?([^)]*)\))?|(.)", sec):
                if m.group(4): H[m.group(4)](); continue
                stream = []
                for ch in m.group(3) or "":
                    if ch in "SDzcdN": stream += cap(H[ch])
                    else: stream.append(H[ch])
                stage(int(m.group(1)), stream, int(m.group(2) or 0))
        H["section"] = section
        return H

    def helper_waves(s):
        A = s.A
        o = s.o
        s.stamp("h", "start")
        vm = VM(s)
        H = s.hitems(vm)
        A("v_lshrrev_b32 v3, 5, v1\nv_bfe_u32 v4, v1, 3, 2\nv_lshl_add_u32 v3, v3, 8, v4\nv_lshlrev_b32 v3, 10, v3")
        A("v_and_b32 v5, 7, v1\nv_lshrrev_b32 v9, 4, v1\nv_xor_b32 v6, v5, v9\nv_lshl_add_u32 v10, v6, 4, v3\nv_xor_b32 v11, 64, v10")
        A("s_lshr_b32 s%d, s%d, 2\ns_lshl_b32 s%d, s%d, 7\ns_and_b32 s%d, s%d, 3\ns_add_u32 s%d, s%d, s%d" % (sT0, sMI, sT0, sT0, sT1, sMI, sT0, sT0, sT1))
        A("s_lshl_b32 s%d, s%d, 12\ns_lshl_b32 s%d, s%d, 16\ns_add_u32 s%d, s%d, s%d" % (sT0, sT0, sT1, sW4, sXB, sT0, sT1))
        A("v_and_b32 v20, 15, v1\nv_lshlrev_b32 v6, 1, v9\nv_xor_b32 v6, v6, v20\nv_mul_u32_u24 v7, 3584, v9\nv_lshl_add_u32 v12, v6, 4, v7\nv_xor_b32 v13, 0x80, v12")
        A("s_lshl_b32 s%d, s%d, 8\ns_mul_i32 s%d, s%d, %d\ns_add_u32 s%d, s%d, s%d" % (sT0, sFI, sT1, sW4, 16 * 3584, sWB, sT0, sT1))
        A("s_lshl_b32 s%d, s%d, 12" % (sLB, sW4))
        if o["rot"]:
            A("s_and_b32 s%d, s%d, 3\ns_lshl_b32 s%d, s%d, 1\ns_lshr_b32 s%d, s%d, 2\ns_add_u32 s%d, s%d, s%d" % (sT0, sIDX, sT0, sT0, sCNT, sIDX, sCNT, sCNT, sT0))
            A("s_lshr_b32 s%d, s%d, 1\ns_add_u32 s%d, s%d, s%d" % (sT0, sC, sCNT, sCNT, sT0))
            for _ in range(2): A("s_cmp_ge_u32 s%d, 7\ns_cselect_b32 s%d, 7, 0\ns_sub_u32 s%d, s%d, s%d" % (sCNT, sT0, sCNT, sCNT, sT0))
            A("s_add_u32 s%d, s%d, 1" % (sCNT, sCNT))
        A("s_cmp_eq_u32 s%d, 0\ns_waitcnt lgkmcnt(0)" % sISB)
        s.srd(rA, sQ, 2 << 20); s.srd(rB, sW1, 512 * 3584)
        A("s_cbranch_scc1 L_spare_h0")
        sched = o["ord"].split("|")
        assert len(sched) == 10
        s.sched = sched
        assert "N" in "".join(sched[o["flate"] + 1:]) and ("A" in sched[0]) != ("r" in o["ord"])
        if "r" in o["ord"]:
            sec = lambda ch: [i for i, x in enumerate(sched) if ch in x][0]
            assert sec("r") < sec("z") and sec("r") < sec("R") and re.search("N.*f", o["ord"]) and re.search("f.*p", o["ord"])
        assert re.match(r"[^tsmX]*n.*t.*m", sched[9]) and "X" in sched[9]
        H["section"](sched[0])
        hk = [i for i, x in enumerate(sched) if "c" in x][0] - 1
        vm.wait(*(["s0", "H"] if hk == 0 else ["s0"]), extra=" lgkmcnt(0)")
        s.stamp("h", "s0")
        A("s_barrier")
        for k in range(8):
            s.stamp("h", "B%d" % k)
            H["section"](sched[k + 1])
            s.stamp("h", "I%d" % k)
            tags = ["s%d" % (k + 1)] if k < 7 else []
            if k + 1 == hk: tags.append("H")
            pend = re.sub(r"^.*R", "", "".join(sched[:8]))
            lg = " lgkmcnt(0)" if k == 6 and set(pend) & set("zcd") else ""
            if tags: vm.wait(*tags, extra=lg)
            s.stamp("h", "B%da" % (k + 1))
            A("s_barrier")
        s.stamp("h", "B8")
        k = max([i + 1 for i, ch in enumerate(sched[9]) if ch in "cdnR"] + [0])
        H["section"](sched[9][:k])
        s.vmjoin = list(vm.q); s.prejoin = "".join(sched[:9]) + sched[9][:k]
        A("L_h_join:")
        s.stamp("h", "join")
        H["section"](sched[9][k:])
        s.stamp("h", "w2_issued")
        if "Q" not in sched[9]: H["Q"]()
        vm.wait("w0_0", "w0_1")
        s.stamp("h", "BC2a")
        A("s_barrier")
        nreg = o["nreg"]
        isreg = lambda j: 3 <= j < 3 + nreg
        XV, YV = 64, 72
        vm.wait("x")
        A("ds_write_b128 v23, v[32:35]\nds_write_b128 v23, v[36:39] offset:1024")
        H["put"](3)
        H["only"](2, lambda: (s.poll_check(16, sPH), s.stamp("h", "pollH2")))
        vm.wait("w1_0", "w1_1", extra=" lgkmcnt(0)")
        s.stamp("h", "X0a")
        A("s_barrier")
        for i in range(4): A("ds_read_b64 %s, v21 offset:%d\nds_read_b64 %s, v17 offset:%d" % (R(XV + 2 * i, 2), 2048 * i, R(56 + 2 * i, 2), 128 * i))
        A("ds_read_b32 v47, v47")
        H["put"](4)
        vm.wait("w2_0", "w2_1")
        s.stamp("h", "X1a")
        A("s_barrier")
        H["put"](5)
        A("s_waitcnt lgkmcnt(%d)" % (8 if isreg(5) else 0))
        for i in range(4):
            for u in range(2):
                x = XV + 2 * i + u; t = 80 + 4 * i + 2 * u
                A("v_lshlrev_b32 v%d, 16, v%d\nv_and_b32 v%d, 0xffff0000, v%d" % (t, x, t + 1, x))
            for e in range(4): A("v_sub_f32 v%d, v%d, v%d" % (96 + 4 * i + e, 80 + 4 * i + e, 56 + 2 * i))
            for e in range(4): A("v_mul_f32 v%d, v%d, v%d" % (96 + 4 * i + e, 96 + 4 * i + e, 57 + 2 * i))
        tags = ([] if isreg(3) else ["w3_0", "w3_1"]) + ([] if isreg(4) else ["w4_0", "w4_1"])
        if tags: vm.wait(*tags)
        if o["ypoll"] == 1: s.poll_issue(16, sFY)
        s.stamp("h", "X2a")
        A("s_barrier")
        def y_in():
            s.poll_check(16, sFY)
            s.stamp("h", "pollY")
            A("s_lshl_b32 s%d, s%d, 11\ns_add_u32 m0, s%d, %d\ns_nop 0" % (sT0, sW4, sT0, YT))
            A("buffer_load_dwordx4 v14, %s, s%d offen sc1 lds" % (SR(rWS), sY1))
            A("buffer_load_dwordx4 v14, %s, s%d offen offset:1024 sc1 lds" % (SR(rWS), sY1)); vm.add("y", 2)
        if nreg < 4:
            if o["ypoll"] != 1: s.poll_issue(16, sFY)
            H["put"](6)
            if o["ypoll"] < 3: y_in()
            vm.wait("w5_0", "w5_1", "w6_0", "w6_1")
            s.stamp("h", "X4a")
            A("s_barrier")
            if o["ypoll"] == 3: y_in()
        else:
            H["put"](6)
            A("s_waitcnt lgkmcnt(0)")
            if o["ypoll"] != 1: s.poll_issue(16, sFY)
            s.stamp("h", "X3a")
            A("s_barrier")
            y_in()
        A("s_waitcnt vmcnt(0)")
        s.stamp("h", "y_landed")
        for i in range(4): A("ds_read_b64_tr_b16 %s, v22 offset:%d" % (R(YV + 2 * i, 2), 32 * i))
        for i in range(4):
            A("s_waitcnt lgkmcnt(%d)" % 3)
            for u in range(2):
                y = YV + 2 * i + u; t = 80 + 4 * i + 2 * u
                A("v_lshlrev_b32 v112, 16, v%d\nv_and_b32 v113, 0xffff0000, v%d" % (y, y))
                A("v_fmac_f32 v%d, v%d, v112\nv_fmac_f32 v%d, v%d, v113" % (t, t + 16, t + 1, t + 17))
                A("v_cvt_pk_bf16_f32 v%d, v%d, v%d" % (XV + 2 * i + u, t, t + 1))
            A("ds_write_b64 v21, %s offset:%d" % (R(XV + 2 * i, 2), 2048 * i))


HEAD = open("cdna_kernels/%s.s.ref" % NAME).read()


def render(g):
    head = HEAD[:HEAD.index("; @launch")]
    t = head + "; @launch grid=(256,1,1) block=(512,1,1) lds=%d\n" % LDS_SIZE
    t += '.amdgcn_target "amdgcn-amd-amdhsa--gfx950"\n.text\n.globl %s_kernel\n.p2align 8\n.type %s_kernel,@function\n%s_kernel:\n' % (NAME, NAME, NAME)
    for x in g.L:
        t += (x if x.endswith(":") else "    " + x) + "\n"
    t += HEAD[HEAD.index("s_endpgm"):]
    return t


if __name__ == "__main__":
    out = sys.argv[1]
    opts = dict(eval("dict(%s)" % sys.argv[2])) if len(sys.argv) > 2 else {}
    g = Gen(**opts).build()
    open(out, "w").write(render(g))
    print("wrote", out, len(g.L), "lines", g.nst)
```

```python
import sys, re

NAME = "parallel_sum__ssm_conv_h3__dense_activation_relu__prompt"

WS_R = 0
WS_Y = 2 << 20
WS_H = 4 << 20
WS_ST = 12 << 20
WS_FA = 13 << 20
WS_FH = WS_FA + 65536
WS_FY = WS_FA + 2 * 65536
WS_FS = WS_FA + 3 * 65536
WS_NONCE = WS_FA + 4 * 65536
WS_TS = 14 << 20
WS_SIZE = 16 << 20

HC = 98304
RB = 131584
ROUT = RB
NONL = 140800
STL = NONL + 64
KV = 143360
XCH = 143360
RED = 147456
PART = 98304
XT = 131072
YT = 139264
LDS_SIZE = 163840

sQ, sK, sV, sSK, sH, sD, sW1, sW2, sOUT, sDBG, sWS = 4, 6, 8, 10, 12, 14, 18, 20, 22, 24, 26
rA, rB, rWS, rC, rH, rOUT, rDBG = 28, 32, 36, 40, 44, 48, 52
sN = 52
sW8, sW4, sC, sIDX, sMI, sFI, sM2, sN2 = 56, 57, 58, 59, 60, 61, 62, 63
sT0, sT1, sT2, sT3 = 64, 65, 66, 67
sXB, sWB, sLB, sSLOT = 68, 69, 70, 71
sHB, sW2B, sCNT, sDV = 72, 73, 74, 75
sFH, sPH, sFY, sST = 76, 77, 78, 79
sOB, sY0, sISB, sY1 = 80, 81, 82, 83
P0, P1 = 4, 84
sHS = 84
sROT = 94
hROT = 20
RG = (sCNT, sY0, sDV, 54)
sTS = 100
OOB = 0x80000000
XF, XN, XR_, MS = 232, 240, 56, 60


def R(a, n): return "v[%d:%d]" % (a, a + n - 1)
def SR(a, n=4): return "s[%d:%d]" % (a, a + n - 1)


class VM:
    def __init__(s, g): s.q = []; s.g = g
    def add(s, t, n=1): s.q += [t] * n
    def n(s, *tags):
        last = max(i for i, t in enumerate(s.q) if t in tags)
        n = len(s.q) - 1 - last
        if n > 63: n = 63
        return n
    def wait(s, *tags, extra=""):
        s.g.A("s_waitcnt vmcnt(%d)%s" % (s.n(*tags), extra))


class Gen:
    def __init__(s, **o):
        s.L = []
        s.o = dict(stamps=False, hflag_at=64, spin=1 << 16, depth=5, nt_kv="nt", outsc="sc1", prio=3, sfirst=1, rot=1, fsp=8,
                   ord="01(SD)A|2(z)|3|4h|5(N)|6p|7R|xx|x|cdnsXxwtvvPvm", nreg=3, rchk=8, ysplit=3, barpos=6, flate=1, sba=7, drot=(1, 0), dbg="", early=0, epos=0, inl=1, dord="3q|0r4a|15|26py|5", rgrp=(2, 5), hsc="sc1", slots="01201201", xld=14, xar=20, ksp=0, kq=12, kf=6, kx=(5, 9), kr="0234678a", krb="2234678a", kl=1, dprio=3, ko=5, tdot=0, b8pos=14, npre=14, r1pos=0, dens0=0, dens1=0, oldw=0, sord="H|U", pH="nt", sh="zcdFR|n", th=1, pU="", pV="", ph="")
        s.o.update(o)
        s.nlab = 0
        s.nst = {}

    def A(s, t):
        for x in t.split("\n"):
            x = x.strip()
            if x: s.L.append(x)

    def lab(s, p):
        s.nlab += 1
        return "L_%s_%d" % (p, s.nlab)

    def srd(s, r, p, size):
        s.A("s_mov_b32 s%d, s%d\ns_mov_b32 s%d, s%d\ns_mov_b32 s%d, 0x%x\ns_mov_b32 s%d, 0x20000" % (r, p, r + 1, p + 1, r + 2, size, r + 3))

    def stamp_s(s, role, name):
        if not s.o["stamps"]: return ""
        if isinstance(s.o["stamps"], (list, tuple, set)) and name not in s.o["stamps"] and name not in ("start", "end"): return ""
        k = s.nst.setdefault(role, [])
        if name not in k: k.append(name)
        if s.o.get("cyc") and role == "m":
            return "s_memrealtime s[%d:%d]\ns_memtime s[96:97]\ns_waitcnt lgkmcnt(0)\nv_writelane_b32 v255, s%d, %d\nv_writelane_b32 v255, s96, %d" % (sTS, sTS + 1, sTS, k.index(name), 30 + k.index(name))
        return "s_memrealtime s[%d:%d]\ns_waitcnt lgkmcnt(0)\nv_writelane_b32 v255, s%d, %d" % (sTS, sTS + 1, sTS, k.index(name))

    def stamp(s, role, name): s.A(s.stamp_s(role, name))

    def stamp_out(s):
        if not s.o["stamps"]: return
        s.A("s_lshl_b32 s%d, s2, 3\ns_add_u32 s%d, s%d, s%d\ns_lshl_b32 s%d, s%d, 8\ns_add_u32 s%d, s%d, 0x%x" % (sT0, sT0, sT0, sW8, sT0, sT0, sT0, sT0, WS_TS))
        s.A("v_lshlrev_b32 v254, 2, v1\ns_nop 1\nbuffer_store_dword v255, v254, %s, s%d offen" % (SR(rWS), sT0))

    def weave(s, ms, fill, pre=None):
        for i, m in enumerate(ms):
            for f in (pre or {}).get(i, []): s.A(f)
            s.A(m)
            for f in fill.get(i, []): s.A(f)

    def freg(s, i): return (P0 if i < 8 else P1 - 16) + 2 * i

    def poll_issue(s, n, soff):
        A = s.A
        fsp = s.o["fsp"]
        if fsp == 8:
            i = 0
            while i < n:
                w = 8 if n - i >= 8 else (4 if n - i >= 4 else (2 if n - i >= 2 else 1))
                if i: A("s_add_u32 s%d, s%d, %d" % (sT2, soff, 8 * i))
                A("s_load_dwordx%d %s, %s, s%d glc" % (2 * w, SR(s.freg(i), 2 * w), SR(sWS, 2), sT2 if i else soff))
                i += w
        else:
            for i in range(n):
                if i: A("s_add_u32 s%d, s%d, %d" % (sT2, soff, fsp * i))
                A("s_load_dwordx2 %s, %s, s%d glc" % (SR(s.freg(i), 2), SR(sWS, 2), sT2 if i else soff))

    def poll_check(s, n, soff):
        A = s.A
        l0, l1, l2 = s.lab("pl"), s.lab("pr"), s.lab("pd")
        A("s_mov_b32 s%d, 0\n%s:\ns_waitcnt lgkmcnt(0)" % (sT3, l0))
        for i in range(n - 1):
            A("s_cmp_lg_u64 %s, %s\ns_cbranch_scc1 %s" % (SR(s.freg(i), 2), SR(sN, 2), l1))
        A("s_cmp_eq_u64 %s, %s\ns_cbranch_scc1 %s" % (SR(s.freg(n - 1), 2), SR(sN, 2), l2))
        A("%s:\ns_add_u32 s%d, s%d, 1\ns_cmp_gt_u32 s%d, 0x%x\ns_cbranch_scc1 %s" % (l1, sT3, sT3, sT3, s.o["spin"], l2))
        s.poll_issue(n, soff)
        A("s_branch %s\n%s:" % (l0, l2))

    def tokbase(s, dst, m2, t):
        return ("s_lshr_b32 s%d, s%d, 3\ns_lshl_b32 s%d, s%d, 9\ns_bfe_u32 s%d, s%d, 0x20001\ns_lshl_b32 s%d, s%d, 2\ns_add_u32 s%d, s%d, s%d\n" % (dst, m2, dst, dst, t, m2, t, t, dst, dst, t) +
                "s_and_b32 s%d, s%d, 1\ns_lshl_b32 s%d, s%d, 7\ns_add_u32 s%d, s%d, s%d" % (t, m2, t, t, dst, dst, t))

    def rot(s, dst, t):
        a, b = s.o["drot"]
        s.A("s_and_b32 s%d, s%d, 7\ns_mul_i32 s%d, s%d, %d\ns_lshr_b32 s%d, s%d, 3\ns_mul_i32 s%d, s%d, %d\ns_add_u32 s%d, s%d, s%d" % (dst, sIDX, dst, dst, a, t, sIDX, t, t, b, dst, dst, t))
        for _ in range((7 * a + 3 * b) // 7): s.A("s_add_u32 s%d, s%d, -7\ns_min_u32 s%d, s%d, s%d" % (t, dst, dst, dst, t))

    def rgrp(s, k):
        a0 = 1
        for g, n in enumerate(s.o["rgrp"]):
            if k < a0 + n: return g, a0
            a0 += n

    def flagoff(s, dst, base):
        s.A("s_lshl_b32 s%d, s%d, %d\ns_add_u32 s%d, s%d, 0x%x" % (dst, dst, s.o["fsp"].bit_length() - 1, dst, dst, base))

    def build(s):
        A = s.A
        A("s_cmp_ge_u32 s2, 256\ns_cbranch_scc1 L_end")
        A("s_load_dwordx16 s[4:19], s[0:1], 0\ns_load_dwordx8 s[20:27], s[0:1], 64")
        A("v_lshrrev_b32 v2, 6, v0\nv_and_b32 v1, 63, v0\nv_readfirstlane_b32 s%d, v2" % sW8)
        if s.o["stamps"]: A("v_mov_b32 v255, 0\ns_memtime s[%d:%d]\ns_waitcnt lgkmcnt(0)\nv_writelane_b32 v255, s%d, 60" % (sTS, sTS + 1, sTS))
        A("s_and_b32 s%d, s2, 7\ns_lshr_b32 s%d, s2, 3" % (sC, sIDX))
        if s.o["sfirst"]: A("s_add_u32 s%d, s%d, 28\ns_and_b32 s%d, s%d, 31" % (sIDX, sIDX, sIDX, sIDX))
        A("s_and_b32 s%d, s%d, 3\ns_and_b32 s%d, s%d, 6\ns_lshl_b32 s%d, s%d, 1\ns_add_u32 s%d, s%d, s%d" % (sMI, sIDX, sT0, sC, sT0, sT0, sMI, sMI, sT0))
        A("s_and_b32 s%d, s%d, 1\ns_mul_i32 s%d, s%d, 7\ns_lshr_b32 s%d, s%d, 2\ns_add_u32 s%d, s%d, s%d" % (sT0, sC, sT0, sT0, sFI, sIDX, sFI, sFI, sT0))
        A("s_and_b32 s%d, s%d, 7\ns_and_b32 s%d, s%d, 6\ns_lshl_b32 s%d, s%d, 2\ns_add_u32 s%d, s%d, s%d" % (sM2, sIDX, sT0, sC, sT0, sT0, sM2, sM2, sT0))
        A("s_and_b32 s%d, s%d, 1\ns_lshl_b32 s%d, s%d, 2\ns_lshr_b32 s%d, s%d, 3\ns_add_u32 s%d, s%d, s%d" % (sT0, sC, sT0, sT0, sN2, sIDX, sN2, sN2, sT0))
        A("s_cmp_lt_u32 s%d, 28\ns_cselect_b32 s%d, 1, 0" % (sIDX, sISB))
        A("s_and_b32 s%d, s%d, 3" % (sW4, sW8))
        A("s_lshl_b32 s%d, s%d, 5\ns_add_u32 s%d, s%d, s%d" % (sSLOT, sC, sSLOT, sSLOT, sIDX))
        A("s_cmp_ge_u32 s%d, 4\ns_cbranch_scc1 L_helper" % sW8)
        s.mfma_waves()
        A("L_helper:")
        s.helper_waves()
        s.tail()
        s.spare_m()
        s.spare_h()
        A("L_end:")
        return s

    def mfma_waves(s):
        A = s.A
        o = s.o
        nkv = o["nt_kv"]
        s.stamp("m", "start")
        A("v_lshrrev_b32 v184, 3, v1\nv_and_b32 v191, 7, v1\nv_lshlrev_b32 v184, 10, v184\nv_lshl_add_u32 v184, v191, 4, v184")
        A("s_lshl_b32 s%d, s%d, 16\ns_lshl_b32 s%d, s%d, 14\ns_add_u32 s%d, s%d, s%d" % (sT0, sIDX, sT1, sW4, sT0, sT0, sT1))
        A("s_lshl_b32 s%d, s%d, 7\ns_add_u32 s%d, s%d, s%d" % (sT1, sC, sT0, sT0, sT1))
        A("v_add_u32 v184, s%d, v184\nv_subrev_u32 v185, 0x2000, v184" % sT0)
        A("s_mul_i32 s%d, s%d, 5120\ns_add_u32 s%d, s%d, %d" % (sLB, sW4, sLB, sLB, KV))
        A("s_lshl_b32 s%d, s%d, 9\nv_lshl_add_u32 v186, v1, 3, s%d" % (sT1, sC, sT1))
        A("s_lshl_b32 s%d, s%d, 2" % (sT1, sSLOT))
        if o["prio"]: A("s_setprio %d" % o["prio"])
        A("s_mov_b32 m0, s%d\ns_movk_i32 s%d, 0x1c00" % (sLB, sT2))
        A("s_waitcnt lgkmcnt(0)")
        s.srd(rA, sK, 2 << 20)
        A("buffer_load_dwordx4 v185, %s, 0 offen %s lds" % (SR(rA), nkv))
        A("s_add_u32 m0, s%d, 1024" % sLB)
        s.srd(rB, sV, 2 << 20)
        A("buffer_load_dwordx4 v184, %s, 0 offen %s lds" % (SR(rA), nkv))
        A("buffer_load_dwordx4 v184, %s, s%d offen offset:1024 %s lds" % (SR(rA), sT2, nkv))
        s.srd(rC, sSK, 4096)
        A("buffer_load_dwordx2 v[188:189], v186, %s, 0 offen" % SR(rC))
        A("s_add_u32 m0, s%d, 3072" % sLB)
        A("s_load_dword s%d, s[%d:%d], s%d" % (sDV, sD, sD + 1, sT1))
        A("buffer_load_dwordx4 v184, %s, 0 offen %s lds" % (SR(rB), nkv))
        A("buffer_load_dwordx4 v184, %s, s%d offen offset:1024 %s lds" % (SR(rB), sT2, nkv))
        s.srd(rWS, sWS, WS_SIZE)
        A("v_min_u32 v27, 1, v1\nv_lshlrev_b32 v28, 31, v27\nv_lshlrev_b32 v26, 4, v1")
        A("s_mov_b32 s%d, 0x%x\ns_load_dwordx2 s[88:89], s[%d:%d], s%d" % (sW2B, WS_NONCE, sWS, sWS + 1, sW2B))
        s.srd(rOUT, sOUT, 2 << 20); s.srd(rC, sQ, 2 << 20)
        A("v_bfe_u32 v8, v1, 2, 2\nv_lshrrev_b32 v9, 4, v1\nv_and_b32 v10, 3, v1\nv_and_b32 v20, 15, v1")
        A("v_lshlrev_b32 v187, 7, v8\nv_lshl_add_u32 v187, v9, 5, v187\nv_lshl_add_u32 v187, v10, 3, v187\nv_add_u32 v187, s%d, v187" % sLB)
        A("s_lshl_b32 s%d, s%d, 1\ns_sub_u32 s%d, 6, s%d\nv_xor_b32 v191, s%d, v191\nv_lshlrev_b32 v190, 7, v1" % (sT0, sW4, sT0, sT0, sT0))
        A("v_lshl_add_u32 v190, v191, 4, v190\nv_add_u32 v190, %d, v190\nv_xor_b32 v191, 16, v190" % ROUT)
        A("s_lshr_b32 s%d, s%d, 1\ns_and_b32 s%d, s%d, 1" % (sT0, sW4, sT1, sW4))
        A("v_lshrrev_b32 v21, 1, v20\nv_xor_b32 v21, v21, v9\nv_lshlrev_b32 v22, 7, v20\nv_lshl_add_u32 v12, v21, 4, v22")
        sl0 = int(o["slots"][0]) * 32768
        A("s_lshl_b32 s%d, s%d, 12\n%sv_add_u32 v12, s%d, v12" % (sT2, sW4, "s_add_u32 s%d, s%d, %d\n" % (sT2, sT2, sl0) if sl0 else "", sT2))
        A("v_xor_b32 v13, 0x1000, v12\nv_xor_b32 v14, 64, v12\nv_xor_b32 v15, 64, v13")
        A("v_and_b32 v21, 1, v9\nv_lshl_or_b32 v21, v21, 2, v8")
        A("s_lshl_b32 s%d, s%d, 1\ns_add_u32 s%d, s%d, s%d\ns_lshl_b32 s%d, s%d, 1\nv_xor_b32 v21, s%d, v21" % (sT2, sT1, sT2, sT2, sT0, sT2, sT2, sT2))
        A("v_lshl_add_u32 v22, v9, 3, v8\nv_lshlrev_b32 v22, 8, v22\nv_lshl_add_u32 v22, v10, 3, v22\nv_add_u32 v22, 0x%x, v22" % (0x4000 + sl0))
        for ft in range(4):
            A("v_xor_b32 v23, %d, v21\nv_lshl_add_u32 v%d, v23, 5, v22" % (ft, 16 + ft))
        A("s_lshl_b32 s%d, s%d, 1\ns_add_u32 s%d, s%d, s%d\ns_mul_i32 s%d, s%d, 14\ns_add_u32 s%d, s%d, s%d" % (sT2, sMI, sT2, sT2, sT0, sT3, sT2, sT3, sT3, sFI))
        A("s_lshl_b32 s%d, s%d, 3\ns_mul_i32 s%d, s%d, 6\ns_add_u32 s%d, s%d, s%d\ns_add_u32 s%d, s%d, s%d" % (sT3, sT3, sHS, sT1, sT3, sT3, sHS, sT3, sT3, sT0))
        A("s_lshl_b32 s%d, s%d, 11\ns_add_u32 s%d, s%d, 0x%x" % (sT3, sT3, sHS, sT3, WS_H))
        A("s_xor_b32 s%d, s%d, 0x800\ns_xor_b32 s%d, s%d, 0x2000\ns_xor_b32 s%d, s%d, 0x2800" % (sHS + 1, sHS, sHS + 2, sHS, sHS + 3, sHS))
        A("s_lshl_b32 s%d, s%d, 6\ns_and_b32 s%d, s%d, 28\ns_add_u32 s%d, s%d, s%d" % (sFH, sT2, sT3, sIDX, sFH, sFH, sT3))
        A("v_lshrrev_b32 v11, 1, v1\nv_min_u32 v11, 1, v11\nv_lshlrev_b32 v11, 31, v11\nv_mad_u32_u24 v11, v1, %d, v11" % (28 * o["fsp"]) if 0 else
          "v_lshrrev_b32 v11, 1, v1\nv_min_u32 v11, 1, v11\nv_lshlrev_b32 v11, 31, v11\nv_mul_u32_u24 v27, %d, v1\nv_or_b32 v11, v11, v27" % (28 * o["fsp"]))
        A("s_and_b32 s%d, s%d, 1\ns_lshl_b32 s%d, s%d, 1\ns_add_u32 s%d, s%d, s%d\ns_add_u32 s%d, s%d, s%d" % (sT3, sC, sT3, sT3, sFH, sFH, sT3, sFH, sFH, sT1))
        s.flagoff(sFH, WS_FH)
        ONE, SX, SW, CB, CA_, TM = 192, 196, 200, 204, 212, 220
        A("s_lshl_b32 s%d, s%d, 10\ns_add_u32 s%d, s%d, %d\nv_lshl_add_u32 v21, v1, 2, s%d\nv_xor_b32 v22, 0x400, v21\nv_xor_b32 v23, 0x800, v21" % (sT2, sW4, sT2, sT2, XCH, sT2))
        A("v_mov_b32 v24, 0xbb000000\nv_cmp_gt_u32 vcc, 16, v1\nv_lshrrev_b32 v27, 5, v1\nv_bfe_u32 v30, v1, 1, 1\nv_cndmask_b32 v24, 0, v24, vcc")
        A("v_cmp_eq_u32 vcc, v27, v30\nv_mov_b32 v27, 0x3f803f80\nv_and_b32 v30, 1, v1")
        for i in range(4): A("v_cndmask_b32 v%d, 0, v27, vcc" % (ONE + i))
        A("v_mul_u32_u24 v25, 0xaaaa, v30\nv_add_u32 v25, 0x4444, v25\nv_mov_b32 v29, %d" % NONL)
        for i in range(SX, TM): A("v_mov_b32 v%d, 0" % i)
        ACC = 64
        for i in range(64): A("v_mov_b32 v%d, 0" % (ACC + i))
        s.conv_addr(); s.d_addr(); s.tail_addr()
        SL = [int(ch) for ch in o["slots"]]
        A("s_mov_b32 s%d, 0\ns_mov_b32 s%d, 0x%x" % (sCNT, sXB, sum(((SL[k + 1] - SL[k]) & 15) << (4 * k) for k in range(7))))
        mr = "r" not in o["ord"]
        old = s.L; s.L = s.L if mr else []
        A("v_lshrrev_b32 v2, 3, v1\nv_and_b32 v3, 7, v1\nv_xor_b32 v27, v2, v3\nv_lshlrev_b32 v30, 7, v2\nv_lshl_add_u32 v30, v27, 4, v30")
        A("s_lshl_b32 s%d, s%d, 11\ns_add_u32 s%d, s%d, %d\nv_add_u32 v30, s%d, v30\nv_lshlrev_b32 v31, 12, v2\nv_lshl_add_u32 v31, v3, 4, v31" % (sT0, sW4, sT0, sT0, ROUT, sT0))
        A("s_lshl_b32 s%d, s%d, 2\ns_add_u32 s%d, s%d, s%d\ns_lshl_b32 s92, s%d, 5\ns_sub_u32 s%d, 31, s%d" % (sT0, sC, sT0, sT0, sW4, sT0, sT1, sIDX))
        A("s_add_u32 s92, s92, s%d\ns_lshl_b32 s%d, s%d, 16\ns_lshl_b32 s%d, s%d, 7\ns_add_u32 s90, s%d, s%d\ns_add_u32 s91, s90, 0x8000" % (sT1, sT0, sT0, sT1, sT1, sT0, sT1))
        s.flagoff(92, WS_FA)
        s.L = old
        s.stamp("m", "pa_in")
        A("s_waitcnt vmcnt(2)")
        s.stamp("m", "k_landed")
        K, V, T, O, U, P = 128, 138, 146, 152, 168, 128
        for G in range(5): A("ds_read_b64_tr_b16 %s, v187 offset:%d" % (R(K + 2 * G, 2), 512 * (G + 1)))
        A("v_alignbyte_b32 v%d, v189, v189, 2" % (T + 0))
        A("v_alignbyte_b32 v%d, v188, v188, 2" % (T + 1))
        A("v_and_b32 v%d, 0xffff0000, v189" % (T + 2))
        A("s_mov_b32 s%d, 0xffff\nv_bfi_b32 v%d, s%d, v189, v188" % (sT0, T + 3, sT0))
        A("v_and_b32 v%d, 0xffff, v188" % (T + 4))
        A("s_waitcnt lgkmcnt(0)")
        for m in range(8):
            A("v_dot2_f32_bf16 v%d, v%d, v%d, 0" % (O + 2 * m, K + m, T + 2))
            A("v_dot2_f32_bf16 v%d, v%d, v%d, 0" % (O + 2 * m + 1, K + m + 1, T + 0))
        for m in range(8):
            A("v_dot2_f32_bf16 v%d, v%d, v%d, v%d" % (O + 2 * m, K + m + 1, T + 3, O + 2 * m))
            A("v_dot2_f32_bf16 v%d, v%d, v%d, v%d" % (O + 2 * m + 1, K + m + 2, T + 1, O + 2 * m + 1))
        A("s_waitcnt vmcnt(0)")
        for G in range(4): A("ds_read_b64_tr_b16 %s, v187 offset:%d" % (R(V + 2 * G, 2), 3072 + 512 * G))
        A("s_add_u32 s88, s88, 0x7f4a7c15\ns_add_u32 s89, s89, 0x9e3779b9")
        A("v_mov_b32 v2, s88\nv_mov_b32 v3, s89")
        for m in range(8):
            A("v_dot2_f32_bf16 v%d, v%d, v%d, v%d" % (O + 2 * m, K + m + 2, T + 4, O + 2 * m))
        A("s_waitcnt lgkmcnt(0)")
        for hf in range(2):
            ms_ = range(4, 8) if hf == 0 else range(0, 4)
            for m in ms_:
                A("v_lshlrev_b32 v%d, 16, v%d\nv_and_b32 v%d, 0xffff0000, v%d" % (U + 2 * m, V + m, U + 2 * m + 1, V + m))
            for m in ms_:
                A("v_pk_mul_f32 %s, %s, %s" % (R(O + 2 * m, 2), R(O + 2 * m, 2), R(U + 2 * m, 2)))
            for d in range(4 * hf, 4 * hf + 4):
                A("v_cvt_pk_bf16_f32 v%d, v%d, v%d" % (P + d, O + 15 - 2 * d, O + 14 - 2 * d))
            A("ds_write_b128 v%d, %s" % (190 + hf, R(P + 4 * hf, 4)))
        A("s_waitcnt lgkmcnt(0)")
        s.stamp("m", "kv_done")
        old = s.L; s.L = s.L if mr else []
        A("s_barrier")
        A("ds_read_b128 v[48:51], v30\nds_read_b128 v[52:55], v30 offset:1024")
        A("s_waitcnt lgkmcnt(1)\nbuffer_store_dwordx4 v[48:51], v31, %s, s90 offen sc1" % SR(rWS))
        A("s_waitcnt lgkmcnt(0)\nbuffer_store_dwordx4 v[52:55], v31, %s, s91 offen sc1" % SR(rWS))
        s.stamp("m", "r_st")
        s.L = old
        A("s_cmp_eq_u32 s%d, 0" % sISB)
        A("s_barrier")
        A("s_cbranch_scc1 L_spare_m")
        s.stamp("m", "B0")
        FA = [128, 160]; FB = [144, 176]
        def rd(ks, st):
            r = []
            for t in range(4):
                r.append("ds_read_b64_tr_b16 %s, v%d offset:%d" % (R(FA[st] + 4 * t, 2), 16 + t, ks * 8192))
                r.append("ds_read_b64_tr_b16 %s, v%d offset:%d" % (R(FA[st] + 4 * t + 2, 2), 16 + t, ks * 8192 + 1024))
                r.append("ds_read_b128 %s, v%d offset:%d" % (R(FB[st] + 4 * t, 4), 12 + 2 * ks + (t >> 1), (t & 1) * 2048))
            return r
        def mm(st, i, j):
            a = ACC + 4 * (4 * i + j)
            return "v_mfma_f32_16x16x32_bf16 %s, %s, %s, %s" % (R(a, 4), R(FA[st] + 4 * i, 4), R(FB[st] + 4 * j, 4), R(a, 4))
        def sm(st):
            return ["v_smfmac_f32_16x16x64_bf16 %s, %s, %s, v25" % (R(SX, 4), R(ONE, 4), R(FB[st], 8)),
                    "v_smfmac_f32_16x16x64_bf16 %s, %s, %s, v25" % (R(SW, 4), R(ONE, 4), R(FA[st], 8))]
        def mf(st):
            q = sm(st)
            ms = [mm(st, 0, 0), mm(st, 1, 0), mm(st, 0, 1), mm(st, 1, 1), q[0], q[1]]
            ms += [mm(st, i, j) for i, j in ((2, 0), (2, 1), (0, 2), (1, 2), (2, 2), (3, 0), (3, 1), (3, 2), (0, 3), (1, 3), (2, 3), (3, 3))]
            return ms
        need = {0: 3, 1: 6, 6: 9, 11: 12}
        def place(r, g0, dens):
            fill = {}; g = g0; k = 0
            for i, x in enumerate(r):
                fill.setdefault(g, []).append(x); k += 1
                if k >= (2 if i < dens else 1): g += 1; k = 0
            assert max(fill) < 18
            return fill
        def waits(fill, upto=18):
            pre = {}
            for i, n in need.items():
                if i >= upto: continue
                newer = sum(1 for g, v in fill.items() if g < i for x in v if x.startswith("ds_"))
                assert 12 - n + newer < 16
                pre[i] = ["s_waitcnt lgkmcnt(%d)" % (12 - n + newer)]
            return pre
        for x in rd(0, 0): A(x)
        A("L_g1:")
        fill = place(rd(1, 1), o["r1pos"], o["dens1"])
        pre = waits(fill)
        if o["oldw"]: pre = {0: ["s_waitcnt lgkmcnt(0)"]}
        for g, x in enumerate(["s_bfe_i32 s%d, s%d, 0x40000" % (sT1, sXB), "s_lshr_b32 s%d, s%d, 4" % (sXB, sXB), "s_lshl_b32 s%d, s%d, 15" % (sT1, sT1),
                               "s_add_u32 s%d, s%d, 1" % (sCNT, sCNT), "s_cmp_eq_u32 s%d, 8" % sCNT]): fill.setdefault(g, []).append(x)
        last = max(g for g, v in fill.items() if any(x.startswith("ds_") for x in v))
        upd = ["v_add_u32 v%d, s%d, v%d" % (12 + q, sT1, 12 + q) for q in range(8)]
        g = max(last + 1, 6)
        per = -(-8 // (18 - g))
        for q in range(8): fill.setdefault(g + q // per, []).append(upd[q])
        s.weave(mf(0), fill, pre)
        A("s_cbranch_scc1 L_g1_last")
        bp = o["barpos"]
        fill = place(rd(0, 0), bp, o["dens0"])
        pre = waits({}, bp)
        if o["oldw"]: pre = {0: ["s_waitcnt lgkmcnt(0)"]}
        pre[bp] = ["s_waitcnt lgkmcnt(0)", "s_barrier"]
        def aflag():
            if not mr: return "s_nop 0"
            return "s_waitcnt vmcnt(0)\nbuffer_store_dwordx2 v[2:3], v28, %s, s92 offen sc1\n" % SR(rWS) + s.stamp_s("m", "aflag")
        s.aflag = aflag
        pre[bp].insert(0, "s_cmp_lg_u32 s%d, %d\ns_cbranch_scc1 L_noflag\n" % (sCNT, o["flate"]) + aflag() + "\nL_noflag:")
        if o["stamps"] and o.get("mloop"):
            k = s.nst.setdefault("m", []); b = len(k); k += ["M%da" % q for q in range(1, 8)]
            pre[bp].insert(1, "s_memrealtime s[%d:%d]\ns_add_u32 m0, s%d, %d\ns_waitcnt lgkmcnt(0)\nv_writelane_b32 v255, s%d, m0" % (sTS, sTS + 1, sCNT, b - 1, sTS))
        s.weave(mf(1), fill, pre)
        A("s_branch L_g1")
        A("L_g1_last:")
        order = [(2 * pp + ii, j) for pp in range(2) for j in range(4) for ii in range(2)]
        ms = sm(1) + [mm(1, i, j) for i, j in order]
        cr = s.conv_reads(0, 0)
        cra = [x for x in cr if "v4 " in x]; crb = [x for x in cr if "v5 " in x]
        alate = "c" in o["ord"].split("|")[9] or "d" in o["ord"].split("|")[9] or "c" in o["ord"].split("|")[8]
        s.alate = alate
        if alate: cra = [""] * 16; crb = cr[:o["npre"]]
        s.crb = crb
        a0, a1, b0, b1, t_, u0, u1 = range(TM, TM + 7)
        fill = {0: [cra[0]], 1: cra[1:3], 2: cra[3:5], 3: cra[5:7],
                4: ["v_add_f32 v%d, v%d, v%d" % (a0, SX, SX + 1), "v_add_f32 v%d, v%d, v%d" % (a1, SX + 2, SX + 3)],
                5: ["v_mul_f32 v%d, v24, v%d" % (a0, a0), "v_mul_f32 v%d, v24, v%d" % (a1, a1)],
                6: ["v_add_f32 v%d, v%d, v%d" % (b0, SW, SW + 1), "v_add_f32 v%d, v%d, v%d" % (b1, SW + 2, SW + 3)],
                7: ["v_cvt_pk_bf16_f32 v%d, v%d, v%d" % (CB, a0, a0), "v_cvt_pk_bf16_f32 v%d, v%d, v%d" % (CB + 2, a1, a1)],
                8: ["v_cvt_pk_bf16_f32 v%d, v%d, v%d" % (t_, b0, b1), "ds_write2st64_b32 v21, v%d, v%d offset0:0 offset1:1" % (CB, CB + 2)],
                9: ["v_lshlrev_b32 v%d, 16, v%d" % (u0, t_), "v_and_b32 v%d, 0xffff0000, v%d" % (u1, t_)],
                10: ["v_sub_f32 v%d, v%d, v%d" % (u0, b0, u0), "v_sub_f32 v%d, v%d, v%d" % (u1, b1, u1)],
                11: ["v_cvt_pk_bf16_f32 v%d, v%d, v%d" % (CA_, b0, u0), "v_cvt_pk_bf16_f32 v%d, v%d, v%d" % (CA_ + 2, b1, u1)],
                12: ["ds_write2st64_b32 v21, v%d, v%d offset0:2 offset1:3" % (CA_, CA_ + 2), cra[7]],
                13: cra[8:10], 14: cra[10:12],
                16: ["s_waitcnt lgkmcnt(0)", s.stamp_s("m", "B8a"), "s_barrier", s.stamp_s("m", "B8")],
                17: ["ds_read_b32 v%d, v22" % (CB + 4), "ds_read_b32 v%d, v22 offset:256" % (CB + 6)]}
        pre = {0: ["s_waitcnt lgkmcnt(0)"]}
        if alate:
            pre = {0: ["s_waitcnt lgkmcnt(6)"], 6: ["s_waitcnt lgkmcnt(3)"], 8: ["s_waitcnt lgkmcnt(0)"]}
            fill[0] = ["s_nop 1"]; fill[1] = ["s_nop 1"]; fill[2] = ["s_nop 1"]; fill[3] = ["s_nop 1"]
            bb = o["b8pos"]
            if bb != 16:
                fill[bb] = fill.get(bb, []) + fill.pop(16); fill[bb + 1] = fill.get(bb + 1, []) + fill.pop(17)
        s.weave(ms, fill, pre)
        s.stamp("m", "g1_done")
        HP = 48
        def cm(n, ii):
            pp, j = n >> 2, n & 3
            i = 2 * pp + ii
            a = ACC + 4 * (4 * i + j)
            return "v_mfma_f32_16x16x16bf16_1k %s, %s, %s, %s" % (R(a, 4), R(CA_ + 2 * i, 2), R(CB + 2 * j, 2), R(a, 4))
        A(cm(0, 0)); A("ds_read_b32 v%d, v23 offset:512\nds_read_b32 v%d, v23 offset:768" % (CA_ + 4, CA_ + 6))
        A(cm(0, 1)); A(cra[12]); A(cra[13])
        if alate: A("s_nop 1")
        A(cm(1, 0)); A(cra[14]); A(cra[15])
        A(cm(1, 1)); A("s_waitcnt lgkmcnt(%d)" % (0 if alate else 4))
        rest = []
        rchk = o["rchk"]
        def rcheck():
            l0, l1 = s.lab("rl"), s.lab("rd")
            A("s_mov_b32 s%d, 0\n%s:\ns_waitcnt lgkmcnt(0)\nv_readfirstlane_b32 s%d, v27" % (sT3, l0, sT0))
            A("s_add_u32 s%d, s%d, 1\ns_cmp_ge_u32 s%d, 4\ns_cbranch_scc1 %s" % (sT3, sT3, sT0, l1))
            A("s_cmp_gt_u32 s%d, 0x%x\ns_cbranch_scc1 %s\nds_read_b32 v27, v29 offset:8\ns_branch %s\n%s:" % (sT3, 16 * o["spin"], l1, l0, l1))
            s.stamp("m", "rchk")
        s.rcheck = rcheck
        for n in range(8):
            pp, j = n >> 2, n & 3
            hp = HP + 4 * (n & 3)
            if n == rchk: rcheck(); rest = list(crb)
            if n == rchk - 1: A("ds_read_b32 v27, v29 offset:8")
            v = []
            for ii in range(2):
                a = ACC + 4 * (4 * (2 * pp + ii) + j)
                for u in range(2): v.append("v_cvt_pk_bf16_f32 v%d, v%d, v%d" % (hp + 2 * ii + u, a + 2 * u, a + 2 * u + 1))
            for d in range(4): v.append("v_pk_max_i16 v%d, v%d, 0" % (hp + d, hp + d))
            if n + 2 < 8:
                v.insert(0, cm(n + 2, 0)); v.insert(5, cm(n + 2, 1))
            for x in v: A(x)
            hst = "buffer_store_dwordx4 %s, v26, %s, s%d offen offset:%d" % (R(hp, 4), SR(rWS), sHS + 2 * (j >> 1) + pp, (j & 1) * 1024)
            if "g" not in o["dbg"]: A(hst + " sc1")
            if "e" in o["dbg"] or "g" in o["dbg"]: A(hst)
            k = -(-len(rest) // (8 - n))
            for x in rest[:k]: A(x)
            rest = rest[k:]
        s.stamp("m", "h_stored")
        if rchk == 8:
            A("L_m_rchk:")
            rcheck()
            for x in crb: A(x)
        A("L_m_conv:")
        s.stamp("m", "conv0")
        DA, WF, HR = 64, 96, 152
        dp = o["depth"]; NB = dp + 1
        ysp = o["ysplit"]
        sE, sRDY = 90, 93
        def hfirst(va):
            return ["buffer_load_dwordx4 %s, v%d, %s, s%d offen offset:%d %s" % (R(HR + 8 * stp + 4 * t, 4), va, SR(rWS), sE + (stp >> 1), (stp & 1) * 2048 + t * 1024, o["hsc"]) for stp in range(ysp) for t in range(2)]
        CA = 64
        cnt = 0
        for jj in range(4):
            st = jj & 1
            ms = []
            for J in range(8):
                for ct in range(J, 8):
                    a = CA + 4 * ct
                    c = "0" if (jj == 0 and J == 0) else R(a, 4)
                    ms.append("v_mfma_f32_16x16x32_bf16 %s, %s, %s, %s" % (R(a, 4), R(s.cA(st, J), 4), R(s.cB(st, ct - J), 4), c))
            pre = {}
            if jj == 0 and not alate:
                for m in range(8): pre[m] = ["s_waitcnt lgkmcnt(%d)" % (7 - m)]
            elif jj: A("s_waitcnt lgkmcnt(0)")
            fill = {}
            if jj == 0 and alate:
                r = cr[o["npre"]:] + s.conv_reads(1, 1)
                g = 0; pos = []
                for i, x in enumerate(r):
                    fill.setdefault(g, []).append(x); pos.append(g)
                    if len(fill[g]) >= (2 if len(r) - i > 30 - g else 1): g += 1
                done = 0; i = 0
                for J in range(8):
                    for ct in range(J, 8):
                        nd = max(2 + (ct - J) + 1, 10 + 2 * J if J else 0)
                        issued = o["npre"] + sum(1 for q in pos if q < i)
                        assert nd <= issued
                        if nd > done:
                            w = min(14, issued - nd); done = issued - w
                            pre[i] = ["s_waitcnt lgkmcnt(%d)" % w]
                        i += 1
            elif jj < 3:
                r = s.conv_reads(jj + 1, 1 - st)
                for i, x in enumerate(r): fill[i + (8 if jj == 0 else 0)] = [x]
            else:
                for e in range(4): fill[e] = ["ds_read_b64 %s, v6 offset:%d" % (R(128 + 2 * e, 2), 512 * (3 - e))]
                fill[12] = ["s_waitcnt lgkmcnt(0)"]
                for e in range(4):
                    k = 128 + 2 * e; u = 136 + 4 * e
                    fill[13 + 2 * e] = ["v_and_b32 v%d, 0xffff0000, v%d\nv_lshlrev_b32 v%d, 16, v%d" % (u, k + 1, u + 1, k + 1)]
                    fill[14 + 2 * e] = ["v_and_b32 v%d, 0xffff0000, v%d\nv_lshlrev_b32 v%d, 16, v%d" % (u + 2, k, u + 3, k)]
                fill[22] = ["s_bitcmp1_b32 s%d, 1\ns_cselect_b32 s%d, 0, 16" % (sW4, sT0)]
                fill[23] = ["s_lshl_b32 s%d, s%d, s%d\ns_and_b32 s%d, s%d, 0xffff0000" % (sT0, sDV, sT0, sDV, sT0)]
                fill[35] = ["s_bitcmp1_b32 s%d, 0" % sW4]
                fill[4] = ["s_mov_b32 s%d, s%d\ns_add_u32 s%d, s%d, 4096" % (sE, sHB, sE + 1, sHB)]
                fill[5] = ["s_cmp_eq_u32 s%d, 6\ns_cselect_b32 s%d, %d, s%d" % (sROT, sT0, 12288 - 7 * 16384, sROT + 1)]
                fill[6] = ["s_add_u32 s%d, s%d, s%d\ns_mov_b32 s%d, s%d" % (sE + 2, sE + 1, sT0, sHB, sE + (ysp >> 1))]
                if o["ksp"]:
                    fill[4] = ["v_add_u32 v27, 0x2000, v26"]; fill[5] = []; fill[6] = []
                e0 = o["early"]
                if e0:
                    assert ysp <= 5 and (e0 >= 13 or e0 == 4)
                    e1 = 12 if e0 == 4 else e0 + 5
                    fill.setdefault(e0, []).append("ds_read_b32 v27, v29 offset:12")
                    fill.setdefault(e1, []).append("s_waitcnt lgkmcnt(0)\nv_readfirstlane_b32 s%d, v27\nv_or_b32 v27, v27, v26" % sRDY)
                    e2 = max(e1 + 1, o["epos"])
                    for q, x in enumerate(hfirst(27)): fill.setdefault(min(35, e2 + q), []).append(x)
            for i in range(36):
                if cnt + i == o["hflag_at"]:
                    assert jj < 3 or i < 22
                    l = s.lab("hf")
                    fill.setdefault(i, []).append("s_cmp_eq_u32 s%d, 0\ns_cbranch_scc1 %s\ns_waitcnt vmcnt(0)\n" % (sISB, l) +
                                                  "buffer_store_dwordx2 v[2:3], v11, %s, s%d offen sc1\n" % (SR(rWS), sFH) + s.stamp_s("m", "hflag") + "\n%s:" % l)
            cnt += 36
            s.weave(ms, fill, pre)
        s.stamp("m", "conv_done")
        A("s_cbranch_scc1 L_cx1")
        for i in range(9): A("v_fmac_f32 v%d, s%d, v%d" % (CA + i, sDV, 136 + i))
        for q in range(4): A("ds_write_b128 v7, %s offset:%d" % (R(CA + 16 + 4 * q, 4), 1024 * q))
        for i in range(9, 16): A("v_fmac_f32 v%d, s%d, v%d" % (CA + i, sDV, 136 + i))
        A("s_branch L_cx2")
        A("L_cx1:")
        for q in range(4): A("ds_write_b128 v7, %s offset:%d" % (R(CA + 4 * q, 4), 1024 * q))
        A("s_nop 1")
        for i in range(16): A("v_fma_f32 v%d, s%d, v%d, v%d" % (CA + i, sDV, 136 + i, CA + 16 + i))
        A("L_cx2:")
        A("s_waitcnt lgkmcnt(0)")
        s.stamp("m", "BC2a")
        A("s_barrier")
        s.stamp("m", "BC2")
        vm = VM(s)
        if o["dprio"] != o["prio"]: A("s_setprio %d" % o["dprio"])
        if o["ksp"]: return s.gemm2_k(vm)
        assert HR + 8 * NB <= 255 and dp + 2 <= 11
        def wrd(stp):
            j, ks = stp >> 2, stp & 3
            hi = j in (0, 3, 4)
            off = (32768 if j in (2, 3, 6) else 0) + ks * 4096
            r = []
            for i in range(4):
                for hh in range(2):
                    r.append("ds_read_b64_tr_b16 %s, v%d offset:%d" % (R(WF + 16 * (stp & 1) + 4 * i + 2 * hh, 2), (36 if hi else 32) + i, off + hh * 2048))
            return r
        def hld(stp):
            b = HR + 8 * (stp % NB)
            r = ["buffer_load_dwordx4 %s, v26, %s, s%d offen offset:%d %s" % (R(b + 4 * t, 4), SR(rWS), sHB, (stp & 1) * 2048 + t * 1024, o["hsc"]) for t in range(2)]
            if "a" in o["dbg"]: return r
            if "c" in o["dbg"]: return ["s_nop 0", "s_nop 0"]
            if stp & 3 == 1: r.append("s_add_u32 s%d, s%d, 4096" % (sHB, sHB))
            elif stp & 3 == 3 and stp < 27:
                r.append("s_cmp_eq_u32 s%d, %d\ns_cselect_b32 s%d, %d, s%d\ns_add_u32 s%d, s%d, s%d" % (sROT, 6 - (stp >> 2), sT0, 12288 - 7 * 16384, sROT + 1, sHB, sHB, sT0))
            return r
        A("ds_read_b64 %s, v47" % R(MS, 2))
        for e in range(4): A("ds_read_b128 %s, v8 offset:%d" % (R(CA + 16 + 4 * e, 4), 1024 * e))
        if o["early"]: A("s_cmp_eq_u32 s%d, 0\ns_cbranch_scc1 L_h_early" % sRDY)
        for x in hfirst(26): A(x)
        A("L_h_early:")
        for stp in range(ysp): vm.add("h%d" % stp, 2)
        for pp in range(2):
            A("s_waitcnt lgkmcnt(%d)" % (2 - 2 * pp))
            for i in range(4):
                a = CA + 8 * pp + 2 * i
                A("v_pk_add_f32 %s, %s, %s" % (R(a, 2), R(a, 2), R(a + 16, 2)))
            for i in range(4):
                a = CA + 8 * pp + 2 * i
                A("v_cvt_pk_bf16_f32 v%d, v%d, v%d" % (HP + 4 * pp + i, a, a + 1))
            A("buffer_store_dwordx4 %s, v10, %s, s%d offen sc1" % (R(HP + 4 * pp, 4), SR(rWS), sY1 if pp else sY0)); vm.add("y")
        s.stamp("m", "y_stored")
        for x in wrd(0): A(x)
        for stp in range(ysp, dp):
            for x in hld(stp): A(x)
            vm.add("h%d" % stp, 2)
        bars = [int(x[0]) for x in o["dord"].split("|")[1:]]
        prevbar = False
        for stp in range(28):
            j, ks = stp >> 2, stp & 3
            bar = ks == 3 and j in bars
            ms = []
            for i in range(4):
                for tj in range(2):
                    a = DA + 4 * (2 * i + tj)
                    c = "0" if stp == 0 else R(a, 4)
                    ms.append("v_mfma_f32_16x16x32_bf16 %s, %s, %s, %s" % (R(a, 4), R(WF + 16 * (stp & 1) + 4 * i, 4), R(HR + 8 * (stp % NB) + 4 * tj, 4), c))
            pre, fill = {}, {}
            nxt = wrd(stp + 1) if stp < 27 else []
            pre[0] = ["s_waitcnt vmcnt(%d) lgkmcnt(4)" % vm.n("h%d" % stp)]
            if stp == 0: pre[0].append(s.stamp_s("m", "h0"))
            if bar:
                pre[2] = ["s_waitcnt lgkmcnt(0)\n" + s.stamp_s("m", "X%da" % j) + "\ns_barrier\n" + s.stamp_s("m", "X%d" % j)]
                for q, g_ in enumerate((2, 2, 3, 3, 4, 5, 6, 7)): fill.setdefault(g_, []).append(nxt[q])
                lp = (0, 5, 7)
            elif nxt:
                for q in range(8): fill[q] = [nxt[q]]
                pre[4] = ["s_waitcnt lgkmcnt(4)"]
                lp = (1, 5, 6)
            else:
                pre[4] = ["s_waitcnt lgkmcnt(0)"]
            if stp == ysp:
                fill.setdefault(2 if not bar else 1, []).append("buffer_store_dwordx2 v[2:3], v28, %s, s%d offen sc1" % (SR(rWS), sFY))
                yf = True
            else: yf = False
            if stp == o["xld"]:
                fill.setdefault(0, []).insert(0, "buffer_load_dwordx4 %s, v46, %s, s%d offen" % (R(XR_, 4), SR(rC), sOB)); vm.add("x")
            if stp == o["xar"]:
                assert vm.n("x") >= vm.n("h%d" % stp); xa = s.xarith(XR_)
            if stp >= o["xar"]:
                for g_ in (2, 3, 4, 7):
                    if xa: fill.setdefault(g_, []).append(xa.pop(0))
            if stp + dp < 28:
                l = hld(stp + dp)
                for q, x in enumerate(l): fill.setdefault(lp[q], []).append(x)
                vm.add("h%d" % (stp + dp))
                if yf: vm.add("fy")
                vm.add("h%d" % (stp + dp))
            s.weave(ms, fill, pre)
        assert not xa
        s.stamp("m", "g2_done")
        for i in range(4):
            for tj in range(2):
                a = DA + 4 * (2 * i + tj)
                p = WF + 2 * (2 * i + tj)
                for u in range(2):
                    A("v_cvt_pk_bf16_f32 v%d, v%d, v%d" % (p + u, a + 2 * u, a + 2 * u + 1))
                A("ds_write_b64 v%d, %s offset:%d" % (40 + i, R(p, 2), tj * 2048))
        if o["inl"]: s.tail(False)
        else: A("s_branch L_tail")

    def gemm2_k(s, vm):
        A = s.A
        o = s.o
        CA, HP, DA, WF, HR = 64, 48, 64, 128, 160
        dq, nf = o["kq"], o["kf"]
        NL = dq + 2
        assert HR + 4 * NL <= XF and dq <= 16 and not o["early"]
        bars = [int(x[0]) for x in o["dord"].split("|")[1:]]
        assert bars[-1] >= 3
        def wrd(stp):
            j, ks = stp >> 1, stp & 1
            hi = j in (0, 3, 4)
            off = (32768 if j in (2, 3, 6) else 0) + ks * 4096
            return ["ds_read_b64_tr_b16 %s, v%d offset:%d" % (R(WF + 16 * (stp & 1) + 4 * i + 2 * hh, 2), (36 if hi else 32) + i, off + hh * 2048) for i in range(4) for hh in range(2)]
        def hld(q):
            stp, t = q >> 2, q & 3
            r = "buffer_load_dwordx4 %s, v%d, %s, s%d offen offset:%d %s" % (R(HR + 4 * (q % NL), 4), 26 + (t >> 1), SR(rWS), sHB, (stp & 1) * 2048 + (t & 1) * 1024, o["hsc"])
            if "c" in o["dbg"] and q >= dq: r = "s_nop 0"
            vm.add("h%d" % q)
            u = ""
            if q & 7 == 7 and q < 55 and "a" not in o["dbg"]:
                u = "s_cmp_eq_u32 s%d, %d\ns_cselect_b32 s%d, %d, s%d\ns_add_u32 s%d, s%d, s%d" % (sROT, 6 - (q >> 3), sT0, -6 * 16384, sROT + 1, sHB, sHB, sT0)
            return r, u
        A("ds_read_b64 %s, v47" % R(MS, 2))
        for e in range(4): A("ds_read_b128 %s, v8 offset:%d" % (R(CA + 16 + 4 * e, 4), 1024 * e))
        for q in range(nf):
            for x in hld(q): A(x)
        for pp in range(2):
            A("s_waitcnt lgkmcnt(%d)" % (8 if pp else 2))
            for i in range(4):
                a = CA + 8 * pp + 2 * i
                A("v_pk_add_f32 %s, %s, %s" % (R(a, 2), R(a, 2), R(a + 16, 2)))
            for i in range(4):
                a = CA + 8 * pp + 2 * i
                A("v_cvt_pk_bf16_f32 v%d, v%d, v%d" % (HP + 4 * pp + i, a, a + 1))
            A("buffer_store_dwordx4 %s, v10, %s, s%d offen sc1" % (R(HP + 4 * pp, 4), SR(rWS), sY1 if pp else sY0)); vm.add("y")
            if pp == 0:
                for x in wrd(0): A(x)
        s.stamp("m", "y_stored")
        for q in range(nf, dq):
            for x in hld(q): A(x)
        xa = []; ko = o["ko"]
        def out(i, t):
            a = DA + 4 * (4 * t + i); p = WF + 2 * i + 8 * (t & 1)
            return ["v_cvt_pk_bf16_f32 v%d, v%d, v%d" % (p + u, a + 2 * u, a + 2 * u + 1) for u in range(2)] + ["ds_write_b64 v%d, %s offset:%d" % (40 + i, R(p, 2), t * 2048)]
        for stp in range(14):
            bar = stp & 1 and (stp >> 1) in bars
            ms = []; pre = {}; fill = {}
            nxt = wrd(stp + 1) if stp < 13 else []
            for x, g_ in zip(nxt, o["krb" if bar else "kr"]): fill.setdefault(int(g_, 16), []).append(x)
            for t in range(4):
                q = 4 * stp + t
                for i in range(4):
                    a = DA + 4 * (4 * t + i)
                    ms.append("v_mfma_f32_16x16x32_bf16 %s, %s, %s, %s" % (R(a, 4), R(WF + 16 * (stp & 1) + 4 * i, 4), R(HR + 4 * (q % NL), 4), "0" if stp == 0 else R(a, 4)))
                pre[4 * t] = ["s_waitcnt vmcnt(%d)%s" % (vm.n("h%d" % q), " lgkmcnt(0)" if t == 0 else "")]
                if q == 0: pre[0].append(s.stamp_s("m", "h0"))
                if q == nf:
                    fill.setdefault(4 * t, []).insert(0, "buffer_store_dwordx2 v[2:3], v28, %s, s%d offen sc1" % (SR(rWS), sFY)); vm.add("fy")
                if q == 4 * o["kx"][0]:
                    fill.setdefault(4 * t, []).insert(0, "buffer_load_dwordx4 %s, v46, %s, s%d offen" % (R(XR_, 4), SR(rC), sOB)); vm.add("x")
                if q == 4 * o["kx"][1]:
                    assert vm.n("x") >= vm.n("h%d" % q); xa = s.xarith(XR_)
                if q + dq < 56:
                    r, u = hld(q + dq)
                    fill.setdefault(4 * t + o["kl"], []).append(r)
                    fill.setdefault(4 * t + 3, []).append(u)
            for g_ in (11, 12, 14, 15, 15):
                if xa: fill.setdefault(g_, []).append(xa.pop(0))
            if bar: pre.setdefault(2, []).append(s.stamp_s("m", "X%da" % (stp >> 1)) + "\ns_barrier\n" + s.stamp_s("m", "X%d" % (stp >> 1)))
            if stp == 13:
                fill.setdefault(ko - 1, []).append("s_nop %d" % max(0, 7 - ko))
                for k in range(16 - ko): fill.setdefault(k + ko, []).extend(out(k & 3, k >> 2))
            s.weave(ms, fill, pre)
        assert not xa
        s.stamp("m", "g2_done")
        for k in range(16 - ko, 16):
            for x in out(k & 3, k >> 2): A(x)
        s.tail(False)

    def xarith(s, b):
        r = ["v_mul_f32 v%d, v%d, v%d" % (MS, MS, MS + 1)]
        for d in range(4): r += ["v_lshlrev_b32 v%d, 16, v%d" % (XF + 2 * d, b + d), "v_and_b32 v%d, 0xffff0000, v%d" % (XF + 2 * d + 1, b + d)]
        for d in range(8): r.append("v_fma_f32 v%d, v%d, v%d, -v%d" % (XN + d, XF + d, MS + 1, MS))
        return r

    def cA(s, st, J): return (128 + 4 * J) if st == 0 else (192 + 4 * J)
    def cB(s, st, m): return (160 + 4 * m) if st == 0 else (96 + 4 * m)

    def conv_addr(s):
        A = s.A
        A("v_and_b32 v27, 3, v20\nv_sub_u32 v27, 3, v27\nv_mul_u32_u24 v27, 4160, v27")
        A("v_lshrrev_b32 v4, 2, v20\nv_lshl_add_u32 v4, v4, 3, v27\nv_lshl_add_u32 v4, v9, 4, v4")
        A("s_lshr_b32 s%d, s%d, 1\ns_and_b32 s%d, s%d, 1\n" % (sT0, sW4, sT1, sW4) +
          "s_mul_i32 s%d, s%d, 16640\ns_lshl_b32 s%d, s%d, 8\ns_add_u32 s%d, s%d, s%d\ns_add_u32 s%d, s%d, %d\n" % (sT2, sT0, sT3, sT1, sT2, sT2, sT3, sT2, sT2, HC + 8) +
          "v_add_u32 v4, s%d, v4" % sT2)
        A("s_mul_i32 s%d, s%d, 4608\ns_add_u32 s%d, s%d, s%d\ns_add_u32 s%d, s%d, %d\n" % (sT2, sT0, sT3, sT3, sT2, sT3, sT3, RB + 4064 - 3584) +
          "v_lshlrev_b32 v27, 5, v20\nv_lshlrev_b32 v5, 4, v9")
        A("v_sub_u32 v5, v5, v27\nv_add_u32 v5, s%d, v5" % sT3)
        A("s_lshl_b32 s%d, s%d, 11\ns_sub_u32 s%d, s%d, s%d\ns_add_u32 s%d, s%d, %d\n" % (sT3, sT1, sT2, sT2, sT3, sT2, sT2, RB + 4088 - 1536) +
          "v_lshl_add_u32 v6, v9, 3, v27\nv_sub_u32 v6, s%d, v6" % sT2)
        A("s_lshl_b32 s%d, s%d, 12\ns_add_u32 s%d, s%d, %d\nv_lshl_add_u32 v7, v1, 4, s%d\nv_xor_b32 v8, 0x1000, v7" % (sT2, sW4, sT2, sT2, RED, sT2))
        A("v_lshrrev_b32 v10, 3, v20\nv_lshl_add_u32 v10, v9, 1, v10")
        A("v_lshlrev_b32 v10, 16, v10\nv_and_b32 v27, 7, v20")
        A("v_lshl_add_u32 v10, v27, 4, v10")

    def conv_reads(s, jj, st):
        def a(J, h): return "ds_read_b64 %s, v4 offset:%d" % (R(s.cA(st, J) + 2 * h, 2), 512 * J + 64 * jj + 8 * h)
        def b(m): return "ds_read_b128 %s, v5 offset:%d" % (R(s.cB(st, m), 4), 512 * (7 - m) + 64 * jj)
        o = [a(0, 0), a(0, 1)] + [b(m) for m in range(8)]
        for J in range(1, 8): o += [a(J, 0), a(J, 1)]
        return o

    def d_addr(s):
        A = s.A
        A("s_and_b32 s%d, s%d, 1\ns_lshr_b32 s%d, s%d, 1" % (sT1, sW4, sT0, sW4))
        A("v_bfe_u32 v27, v1, 2, 2\nv_lshl_add_u32 v30, v9, 2, v27")
        A("v_bfe_u32 v27, v30, 1, 2\nv_lshlrev_b32 v30, 7, v30")
        A("v_lshl_add_u32 v27, v27, 5, v30\nv_and_b32 v30, 3, v1")
        ksp = s.o["ksp"]
        A("s_lshl_b32 s%d, s%d, %d\nv_lshl_add_u32 v27, v30, 3, v27\nv_add_u32 v32, s%d, v27" % (sT2, sW4 if ksp else sT0, 13 if ksp else 14, sT2))
        A("v_xor_b32 v33, 32, v32\nv_xor_b32 v34, 64, v32\nv_xor_b32 v35, 0x60, v32")
        for i in range(4): A("v_add_u32 v%d, 0x10000, v%d" % (36 + i, 32 + i))
        A("v_lshrrev_b32 v40, 1, v9\nv_and_b32 v41, 7, v20\nv_xor_b32 v40, v40, v41")
        A("v_and_b32 v41, 1, v9\nv_lshlrev_b32 v41, 3, v41")
        A("v_lshl_add_u32 v40, v40, 4, v41\nv_lshl_add_u32 v40, v20, 7, v40")
        A("s_lshl_b32 s%d, s%d, %d\ns_add_u32 s%d, s%d, %d\nv_add_u32 v40, s%d, v40\nv_xor_b32 v41, 32, v40" % (sT2, sW4, 12 + ksp, sT2, sT2, PART if ksp else RED, sT2))
        A("v_xor_b32 v42, 64, v40\nv_xor_b32 v43, 0x60, v40")
        if "f" in s.o["dbg"]: A("s_and_b32 s%d, s%d, 1" % (sT0, sC))
        A("s_lshl_b32 s%d, s%d, 1\ns_add_u32 s%d, s%d, s%d\ns_mul_i32 s%d, s%d, %d\ns_add_u32 s%d, s%d, s%d" % (sT2, sM2, sT2, sT2, sT0, sT2, sT2, 14 << ksp, sT2, sT2, sT1))
        s.rot(sROT, sT3)
        A("s_movk_i32 s%d, 0x%x" % (sROT + 1, 0x4000 if ksp else 0x3000))
        A("s_lshl_b32 s%d, s%d, %d\ns_add_u32 s%d, s%d, s%d" % (sT3, sROT, 1 + ksp, sT2, sT2, sT3))
        A("s_lshl_b32 s%d, s%d, %d\ns_add_u32 s%d, s%d, 0x%x" % (sHB, sT2, 13 - ksp, sHB, sHB, WS_H))
        if "f" in s.o["dbg"]: A("s_lshr_b32 s%d, s%d, 1" % (sT0, sW4))
        A("s_lshl_b32 s%d, s%d, 1\ns_add_u32 s%d, s%d, s%d\ns_lshl_b32 s%d, s%d, 9\ns_add_u32 s%d, s%d, s%d" % (sT2, sSLOT, sT2, sT2, sT0, sFY, sT1, sFY, sFY, sT2))
        s.flagoff(sFY, WS_FY)
        A("s_lshl_b32 s%d, s%d, 7\ns_lshl_b32 s%d, s%d, 20\ns_add_u32 s%d, s%d, s%d\ns_add_u32 s%d, s%d, 0x%x\ns_add_u32 s%d, s%d, 0x80000" % (sT2, sT2, sT3, sT1, sT2, sT2, sT3, sY0, sT2, WS_Y, sY1, sY0))

    def tail_addr(s):
        A = s.A
        A("s_and_b32 s%d, s%d, 1\ns_lshl_b32 s%d, s%d, 2\nv_or_b32 v44, s%d, v9\nv_xor_b32 v44, v44, v1" % (sT0, sW8, sT0, sT0, sT0))
        A("s_lshl_b32 s%d, s%d, 10\ns_add_u32 s%d, s%d, %d\nv_lshl_add_u32 v44, v44, 4, s%d" % (sT0, sW8, sT1, sT0, XT, sT1))
        A("v_lshrrev_b32 v45, 3, v1\nv_and_b32 v46, 7, v1")
        A("v_xor_b32 v47, v45, v46\nv_lshlrev_b32 v45, 7, v45")
        A("s_add_u32 s%d, s%d, %d\nv_lshl_add_u32 v45, v47, 4, v45\nv_add_u32 v45, s%d, v45" % (sT1, sT0, PART if s.o["ksp"] else RED, sT1))
        A("v_lshrrev_b32 v47, 5, v1\nv_lshlrev_b32 v47, 18, v47")
        A("v_lshl_add_u32 v46, v46, 4, v47\nv_bfe_u32 v47, v1, 3, 2")
        A("v_lshl_add_u32 v46, v47, 10, v46\n" + s.tokbase(sOB, sM2, sT1))
        A("s_lshl_b32 s%d, s%d, 4\ns_add_u32 s%d, s%d, s%d\ns_lshl_b32 s%d, s%d, 10\ns_lshl_b32 s%d, s%d, 7\ns_add_u32 s%d, s%d, s%d" % (sT1, sW8, sOB, sOB, sT1, sOB, sOB, sT1, sN2, sOB, sOB, sT1))
        A("s_lshl_b32 s%d, s%d, 6\ns_add_u32 s%d, s%d, %d\nv_and_b32 v47, 0x38, v1\nv_add_u32 v47, s%d, v47" % (sT1, sW8, sT1, sT1, STL, sT1))
        A("s_lshl_b32 s%d, s%d, 9\ns_add_u32 s%d, s%d, 0x%x" % (sST, sM2, sST, sST, WS_ST))

    def tail(s, lab=True):
        A = s.A
        if lab: A("L_tail:")
        A("s_waitcnt vmcnt(0) lgkmcnt(0)")
        if s.o["stamps"]:
            if lab: s.nst["m"].append("DEa"); s.nst["h"].append("DEa")
            A("s_memrealtime s[%d:%d]\ns_waitcnt lgkmcnt(0)\nv_writelane_b32 v255, s%d, 62" % (sTS, sTS + 1, sTS))
        A("s_barrier")
        npart = 4 if s.o["ksp"] else 2
        A("ds_read_b128 v[64:67], v44")
        for t in range(npart): A("ds_read_b128 %s, v45 offset:%d" % (R(104 + 4 * t, 4), 8192 * t))
        if s.o["tdot"]: A("s_movk_i32 s%d, 0x3f80\ns_mov_b32 s%d, 0x3f800000" % (sT0, sT1))
        A("s_waitcnt lgkmcnt(%d)" % npart)
        for d in range(4): A("v_lshlrev_b32 v%d, 16, v%d\nv_and_b32 v%d, 0xffff0000, v%d" % (80 + 2 * d, 64 + d, 81 + 2 * d, 64 + d))
        for d in range(4): A("v_pk_fma_f32 %s, %s, %s, %s" % (R(80 + 2 * d, 2), R(80 + 2 * d, 2), R(XN + 2 * d, 2), R(XF + 2 * d, 2)))
        for t in range(npart):
            A("s_waitcnt lgkmcnt(%d)" % (npart - 1 - t))
            b = 96 if t else 88
            for d in range(4):
                p = 104 + 4 * t + d
                if s.o["tdot"] and t: A("v_dot2_f32_bf16 v%d, v%d, s%d, v%d\nv_dot2_f32_bf16 v%d, v%d, s%d, v%d" % (88 + 2 * d, p, sT0, 88 + 2 * d, 89 + 2 * d, p, sT1, 89 + 2 * d))
                else: A("v_lshlrev_b32 v%d, 16, v%d\nv_and_b32 v%d, 0xffff0000, v%d" % (b + 2 * d, p, b + 2 * d + 1, p))
            if t and not s.o["tdot"]:
                for d in range(4): A("v_pk_add_f32 %s, %s, %s" % (R(88 + 2 * d, 2), R(88 + 2 * d, 2), R(96 + 2 * d, 2)))
        for d in range(4): A("v_pk_fma_f32 %s, %s, %s, %s op_sel:[0,1,0] op_sel_hi:[1,1,1]" % (R(80 + 2 * d, 2), R(88 + 2 * d, 2), R(MS, 2), R(80 + 2 * d, 2)))
        for d in range(4): A("v_cvt_pk_bf16_f32 v%d, v%d, v%d" % (64 + d, 80 + 2 * d, 81 + 2 * d))
        A("buffer_store_dwordx4 v[64:67], v46, %s, s%d offen %s" % (SR(rOUT), sOB, s.o["outsc"]))
        if s.o["stamps"]:
            if lab: s.nst["m"].append("end"); s.nst["h"].append("end")
            A("s_memrealtime s[%d:%d]\ns_waitcnt lgkmcnt(0)\nv_writelane_b32 v255, s%d, 63" % (sTS, sTS + 1, sTS))
            A("s_memtime s[%d:%d]\ns_waitcnt lgkmcnt(0)\nv_writelane_b32 v255, s%d, 61" % (sTS, sTS + 1, sTS))
        s.stamp_out()
        A("s_endpgm")

    def spare_m(s):
        A = s.A
        o = s.o
        A("L_spare_m:")
        A(s.aflag())
        A("s_setprio 0")
        s.srd(rA, sH, 2 << 20); s.srd(rB, sW2, 1792 * 1024)
        A("v_lshlrev_b32 v128, 7, v1\nv_lshrrev_b32 v129, 2, v1\nv_and_b32 v130, 3, v1\nv_lshlrev_b32 v129, 10, v129\nv_lshl_add_u32 v129, v130, 7, v129")
        def item(ch):
            if ch == "H":
                A("s_and_b32 s%d, s%d, 3\ns_lshl_b32 s%d, s%d, 2\ns_add_u32 s%d, s%d, s%d\ns_lshl_b32 s%d, s%d, 2\ns_add_u32 s%d, s%d, s%d" % (sT0, sIDX, sT1, sC, sT0, sT0, sT1, sT0, sT0, sT0, sT0, sW4))
                A("s_lshl_b32 s%d, s%d, 14\ns_add_u32 s%d, s%d, 8192" % (sT0, sT0, sT1, sT0))
                A("buffer_load_dword v132, v128, %s, s%d offen %s\nbuffer_load_dword v133, v128, %s, s%d offen %s" % (SR(rA), sT0, o["pH"], SR(rA), sT1, o["pH"]))
            elif ch in "Uab":
                A("s_and_b32 s%d, s%d, 3\ns_and_b32 s%d, s%d, 6\ns_lshl_b32 s%d, s%d, 1\ns_add_u32 s%d, s%d, s%d\ns_lshl_b32 s%d, s%d, 2\ns_add_u32 s%d, s%d, s%d" % (sT0, sIDX, sT1, sC, sT1, sT1, sT0, sT0, sT1, sT0, sT0, sT0, sT0, sW4))
                A("s_mul_i32 s%d, s%d, 56\ns_and_b32 s%d, s%d, 1\ns_add_u32 s%d, s%d, s%d\ns_lshl_b32 s%d, s%d, 9\ns_add_u32 s%d, s%d, 12288" % (sT0, sT0, sT1, sC, sT0, sT0, sT1, sT0, sT0, sT1, sT0))
                if ch in "Ua": A("buffer_load_dword v134, v129, %s, s%d offen %s" % (SR(rB), sT0, o["pU"]))
                if ch in "Ub": A("buffer_load_dword v135, v129, %s, s%d offen %s" % (SR(rB), sT1, o["pU"]))
            elif ch == "V" or ch.isdigit():
                A("s_and_b32 s%d, s%d, 1\ns_lshl_b32 s%d, s%d, 2\ns_add_u32 s%d, s%d, s%d\ns_lshl_b32 s%d, s%d, 14" % (sT0, sIDX, sT0, sT0, sT0, sT0, sW4, sT0, sT0))
                A("s_bfe_u32 s%d, s%d, 0x10001\ns_mul_i32 s%d, s%d, %d\ns_add_u32 s%d, s%d, s%d" % (sT1, sIDX, sT1, sT1, 896 * 1024, sT0, sT0, sT1))
                A("s_and_b32 s%d, s%d, 1\ns_lshl_b32 s%d, s%d, 9\ns_add_u32 s%d, s%d, s%d" % (sT1, sC, sT1, sT1, sT0, sT0, sT1))
                for j in (range(7) if ch == "V" else [int(ch)]):
                    A("s_add_u32 s%d, s%d, %d\nbuffer_load_dword v%d, v129, %s, s%d offen %s" % (sT1, sT0, j * 131072, 136 + j, SR(rB), sT1, o["pV"]))
            elif ch == "w": A("s_waitcnt vmcnt(0)")
        a, b = o["sord"].split("|")
        for ch in a: item(ch)
        s.stamp("m", "S1a")
        A("s_waitcnt lgkmcnt(0)\ns_barrier")
        for ch in b: item(ch)
        s.stamp("m", "S2a")
        l0, l1, l2 = s.lab("tl"), s.lab("td"), s.lab("te")
        ld = "buffer_load_dwordx4 v[144:147], v143, %s, s%d offen sc1\nbuffer_load_dwordx4 v[148:151], v143, %s, s%d offen offset:16 sc1" % (SR(rWS), sT1, SR(rWS), sT1)
        assert o["fsp"] == 8
        A("s_xor_b32 s%d, s%d, 3\ns_or_b32 s%d, s2, s%d\ns_cbranch_scc1 %s" % (sPH, sW4, sPH, sPH, l2))
        A("v_lshrrev_b32 v143, 3, v1\nv_and_b32 v144, 7, v1\nv_lshlrev_b32 v143, 10, v143\nv_lshl_add_u32 v143, v144, 5, v143\ns_mov_b32 s%d, 0x%x\ns_mov_b32 s%d, 0" % (sT1, WS_FA, sT3))
        A(ld)
        A("%s:" % l2)
        A("s_barrier")
        if o["prio"]: A("s_setprio %d" % o["prio"])
        A("s_waitcnt vmcnt(0)")
        l2 = s.lab("te")
        A("s_cmp_lg_u32 s%d, 0\ns_cbranch_scc1 %s\n%s:" % (sPH, l2, l0))
        A("v_cmp_ne_u64 vcc, v[144:145], v[2:3]\nv_cmp_ne_u64 s[90:91], v[146:147], v[2:3]\ns_or_b64 vcc, vcc, s[90:91]")
        A("v_cmp_ne_u64 s[90:91], v[148:149], v[2:3]\ns_or_b64 vcc, vcc, s[90:91]\nv_cmp_ne_u64 s[90:91], v[150:151], v[2:3]\ns_or_b64 vcc, vcc, s[90:91]")
        A("s_cbranch_scc0 %s\ns_add_u32 s%d, s%d, 1\ns_cmp_gt_u32 s%d, 0x%x\ns_cbranch_scc1 %s" % (l1, sT3, sT3, sT3, o["spin"], l1))
        A(ld + "\ns_waitcnt vmcnt(0)\ns_branch %s\n%s:" % (l0, l1))
        A("buffer_store_dwordx2 v[2:3], v28, %s, s%d offen sc1\n%s:" % (SR(rWS), sW2B, l2))
        cr = s.conv_reads(0, 0)
        for x in cr:
            if "v4 " in x and not s.alate: A(x)
        A("ds_read_b32 v27, v29 offset:8")
        if o["rchk"] == 8: A("s_branch L_m_rchk")
        else:
            s.rcheck()
            for x in s.crb: A(x)
            A("s_branch L_m_conv")

    def spare_h(s):
        A = s.A
        o = s.o
        XR, SUM = 128, 100
        vm = VM(s)
        A("L_spare_h0:")
        A("v_lshrrev_b32 v112, 5, v1\nv_bfe_u32 v113, v1, 3, 2\nv_lshl_add_u32 v112, v112, 8, v113\nv_and_b32 v114, 7, v1")
        A("v_lshlrev_b32 v112, 10, v112\nv_lshl_add_u32 v112, v114, 4, v112")
        A("s_and_b32 s%d, s%d, 3\ns_lshl_b32 s%d, s%d, 2\ns_add_u32 s%d, s%d, s%d" % (sT0, sIDX, sMI, sC, sMI, sMI, sT0))
        A(s.tokbase(sT0, sMI, sT1))
        A("s_lshl_b32 s%d, s%d, 5\ns_add_u32 s%d, s%d, s%d\ns_lshl_b32 s%d, s%d, 10\ns_add_u32 s%d, s%d, 16384" % (sT1, sW4, sT0, sT0, sT1, sT0, sT0, sT1, sT0))
        H = s.hitems(vm)
        A("s_mov_b32 s0, s%d\ns_mov_b32 s1, s%d" % (sT0, sT1))
        for b in range(2):
            for j in range(8):
                A("buffer_load_dwordx4 %s, v112, %s, s%d offen offset:%d" % (R(XR + 32 * b + 4 * j, 4), SR(rA), b, 128 * j)); vm.add("x%d" % (8 * b + j))
                if 8 * b + j == 3:
                    H["S"](); H["D"]()
                    if "Z" in o["ord"]: H["Z"]()
                if 8 * b + j == o["sba"] and "r" not in o["ord"]: H["A"]()
        A("s_setprio 1")
        A("s_waitcnt lgkmcnt(0)\ns_barrier")
        s.stamp("h", "B0")
        if "r" in o["ord"]: H["r"]()
        H["h"]()
        for i in range(8): A("v_mov_b32 v%d, 0" % (SUM + i))
        A("s_mov_b32 s%d, 0x3f803f80" % sT0)
        for b in range(2):
            for j in range(8):
                vm.wait("x%d" % (8 * b + j))
                for d in range(4):
                    x = XR + 32 * b + 4 * j + d
                    A("v_dot2c_f32_bf16 v%d, s%d, v%d" % (SUM + 4 * b + (d & 1), sT0, x))
                    A("v_dot2c_f32_bf16 v%d, v%d, v%d" % (SUM + 4 * b + 2 + (d & 1), x, x))
        for b in range(2):
            A("v_add_f32 v%d, v%d, v%d\nv_add_f32 v%d, v%d, v%d" % (SUM + 2 * b, SUM + 4 * b, SUM + 4 * b + 1, SUM + 2 * b + 1, SUM + 4 * b + 2, SUM + 4 * b + 3))
        A("s_nop 0")
        for ctl in ("quad_perm:[1,0,3,2]", "quad_perm:[2,3,0,1]", "row_half_mirror"):
            for i in range(4): A("v_add_f32_dpp v%d, v%d, v%d %s row_mask:0xf bank_mask:0xf" % (SUM + i, SUM + i, SUM + i, ctl))
        A("v_cmp_eq_u32 vcc, 1, v114\nv_lshrrev_b32 v113, 3, v1\nv_lshl_add_u32 v113, v114, 3, v113")
        SQ = SUM + 1
        A("v_cndmask_b32 v%d, v%d, v%d, vcc\nv_cndmask_b32 v%d, v%d, v%d, vcc" % (SUM, SUM, SUM + 2, SQ, SQ, SUM + 3))
        A("v_mul_f32 v%d, 0x3b000000, v%d\nv_mul_f32 v%d, 0x3b000000, v%d" % (SUM, SUM, SQ, SQ))
        A("v_fma_f32 v%d, -v%d, v%d, v%d\nv_max_f32 v%d, 0, v%d" % (SQ, SUM, SUM, SQ, SQ, SQ))
        A("v_cvt_pk_bf16_f32 v%d, v%d, v%d" % (SUM + 2, SUM, SQ))
        A("v_lshlrev_b32 v%d, 16, v%d\nv_and_b32 v%d, 0xffff0000, v%d" % (SUM, SUM + 2, SQ, SUM + 2))
        A("v_add_f32 v%d, 0x3727c5ac, v%d" % (SQ, SQ))
        A("v_cvt_pk_bf16_f32 v%d, v%d, v%d\nv_lshlrev_b32 v%d, 16, v%d\nv_sqrt_f32 v%d, v%d" % (SQ, SQ, SQ, SQ, SQ, SQ, SQ))
        A("v_cmp_gt_u32 vcc, 2, v114\nv_lshlrev_b32 v113, 3, v113\nv_mov_b32 v115, 0x%x" % OOB)
        A("v_cvt_pk_bf16_f32 v%d, v%d, v%d\nv_lshlrev_b32 v%d, 16, v%d\nv_rcp_f32 v%d, v%d" % (SQ, SQ, SQ, SQ, SQ, SQ, SQ))
        A("v_cndmask_b32 v113, v115, v113, vcc")
        A("s_lshl_b32 s%d, s%d, 2\ns_add_u32 s%d, s%d, s%d\ns_lshl_b32 s%d, s%d, 7\ns_add_u32 s%d, s%d, 0x%x" % (sT0, sMI, sT0, sT0, sW4, sT0, sT0, sT0, sT0, WS_ST))
        A("buffer_store_dwordx2 %s, v113, %s, s%d offen sc1" % (R(SUM, 2), SR(rWS), sT0)); vm.add("st")
        A("s_lshl_b32 s%d, s%d, 3\ns_add_u32 s%d, s%d, s%d" % (sMI, sMI, sMI, sMI, sW4))
        s.flagoff(sMI, WS_FS)
        vm.wait("H", extra=" lgkmcnt(0)")
        s.stamp("h", "S1a")
        A("s_barrier")
        H["N"]()
        if "r" in o["ord"]: H["f"]()
        assert sorted(o["sh"].replace("p", "")) == sorted("zcdFR|n") and re.search("R.*n", o["sh"]) and re.search("z.*n", o["sh"]) and re.search("d.*n", o["sh"])
        for ch in o["sh"]:
            if ch == "F":
                vm.wait("st")
                A("buffer_store_dwordx2 v[28:29], v27, %s, s%d offen sc1" % (SR(rWS), sMI)); vm.add("fs")
                s.stamp("h", "sflag")
            elif ch == "|": A("s_waitcnt lgkmcnt(0)"); s.stamp("h", "S2a"); A("s_barrier\ns_setprio 0")
            else: H[ch]()
        for ch in s.prejoin:
            if ch in "wvxu": H[ch]()
        a = [t for t in s.vmjoin if t[0] == "w"]
        assert [t for t in vm.q if t[0] == "w"] == a and (not a or vm.q[-len(a):] == a)
        for t in set(a):
            i = max(k for k, x in enumerate(s.vmjoin) if x == t); j = max(k for k, x in enumerate(vm.q) if x == t)
            if len(s.vmjoin) - i > len(vm.q) - j: A("s_waitcnt vmcnt(0)"); break
        A("s_branch L_h_join")

    def hitems(s, vm):
        A = s.A
        o = s.o
        WREG = 120
        QS = {0: 4, 1: 0, 2: 2, 3: 6, 4: 4, 5: 0, 6: 2}
        nreg = o["nreg"]
        st_ = {"p": False, "S": False, "h": False}
        def stage(k, stream=(), g0=0):
            slot = int(o["slots"][k])
            a, b, c = 0, 1, 3
            if k == 0 or not o["rot"]:
                A("s_add_u32 s%d, s%d, %d\ns_add_u32 s%d, s%d, %d" % (a, sXB, 128 * k, b, sWB, 64 * 3584 * k))
            else:
                A("s_lshl_b32 s%d, s%d, 7\ns_add_u32 s%d, s%d, s%d" % (a, sCNT, a, a, sXB))
                A("s_mul_i32 s%d, s%d, %d\ns_add_u32 s%d, s%d, s%d" % (b, sCNT, 64 * 3584, b, b, sWB))
            stream = list(stream)
            need = True
            for j in range(8):
                if need or j == 4: A("s_add_u32 m0, s%d, %d" % (sLB, slot * 32768 + (j >> 2) * 16384)); need = False
                if j < 4:
                    A("s_add_u32 s%d, s%d, %d" % (c, a, j * (16384 - 1024)))
                    A("buffer_load_dwordx4 v%d, %s, s%d offen offset:%d lds" % (10 + (j & 1), SR(rA), c, j * 1024))
                else:
                    A("s_add_u32 s%d, s%d, %d" % (c, b, (j - 4) * (4 * 3584 - 1024)))
                    A("buffer_load_dwordx4 v%d, %s, s%d offen offset:%d lds" % (12 + ((j - 4) >> 1), SR(rB), c, (j - 4) * 1024))
                vm.add("s%d" % k)
                if j == 0 and 0 < k < 7 and o["rot"]:
                    g, a0 = s.rgrp(k); g1, _ = s.rgrp(k + 1)
                    if g1 != g: A("s_mov_b32 s%d, s%d" % (sCNT, RG[g1]))
                    else: A("s_cmp_eq_u32 s%d, %d\ns_cselect_b32 s%d, %d, s%d\ns_add_u32 s%d, s%d, 1" % (sCNT, a0 + o["rgrp"][g] - 1, sCNT, a0 - 1, sCNT, sCNT, sCNT))
                if g0 <= j < 7:
                    n = -(-len(stream) // (7 - j))
                    for x in stream[:n]:
                        if callable(x): x(); need = True
                        else: A(x)
                    stream = stream[n:]
            assert not stream
        def nonce():
            A("s_add_u32 s%d, s%d, 0x7f4a7c15\ns_add_u32 s%d, s%d, 0x9e3779b9\nv_mov_b32 v28, s%d\nv_mov_b32 v29, s%d" % (sN, sN, sN + 1, sN + 1, sN, sN + 1))
        def rout():
            A("ds_read_b128 v[56:59], v18\nds_read_b128 v[60:63], v18 offset:1024")
            A("s_lshl_b32 s%d, s%d, 2\ns_add_u32 s%d, s%d, s%d\ns_lshl_b32 s%d, s%d, 5\ns_sub_u32 s%d, 31, s%d" % (sT0, sC, sT0, sT0, sW4, sFH, sT0, sT1, sIDX))
            A("s_add_u32 s%d, s%d, s%d\ns_lshl_b32 s%d, s%d, 16\ns_lshl_b32 s%d, s%d, 7\ns_add_u32 s%d, s%d, s%d\ns_add_u32 s%d, s%d, 0x8000" % (sFH, sFH, sT1, sT0, sT0, sT1, sT1, sT0, sT0, sT1, sT1, sT0))
            s.flagoff(sFH, WS_FA)
            A("s_waitcnt lgkmcnt(1)\nbuffer_store_dwordx4 v[56:59], v19, %s, s%d offen sc1" % (SR(rWS), sT0))
            A("s_waitcnt lgkmcnt(0)\nbuffer_store_dwordx4 v[60:63], v19, %s, s%d offen sc1" % (SR(rWS), sT1))
            vm.add("r", 2)
        def flag_a():
            vm.wait("r")
            A("buffer_store_dwordx2 v[28:29], v27, %s, s%d offen sc1" % (SR(rWS), sFH)); vm.add("fa")
            s.stamp("h", "aflag")
        def bar_a():
            s.stamp("h", "BAa")
            A("s_barrier")
        def zero():
            A("v_lshrrev_b32 v3, 5, v1\nv_mul_u32_u24 v3, 4608, v3\nv_and_b32 v4, 31, v1\nv_lshl_add_u32 v3, v4, 4, v3\nv_add_u32 v3, %d, v3" % (RB + 4096))
            A("ds_write_b128 v3, v[52:55]")
        def heads():
            A("v_lshrrev_b32 v3, 1, v20\nv_mul_u32_u24 v3, 4160, v3\nv_and_b32 v4, 1, v1\nv_lshl_add_u32 v3, v4, 4, v3\nv_add_u32 v3, %d, v3" % HC)
            A("ds_write_b128 v3, v[52:55]")
        def h_rows():
            if not st_["S"]:
                s.srd(rH, sH, 2 << 20); A("v_lshlrev_b32 v14, 4, v1"); st_["h"] = True
            A("s_lshl_b32 s%d, s%d, 13\ns_lshl_b32 s%d, s%d, 11\ns_add_u32 s%d, s%d, s%d" % (sT2, sSLOT, sT1, sW4, sT2, sT2, sT1))
            A("s_lshr_b32 s%d, s%d, 1\ns_mul_i32 s%d, s%d, %d\ns_add_u32 s%d, s%d, s%d\ns_add_u32 m0, s%d, %d\ns_nop 0" % (sT0, sW4, sT0, sT0, 16640 - 4096, sT0, sT0, sT1, sT0, HC + 32))
            A("buffer_load_dwordx4 v14, %s, s%d offen %s lds" % (SR(rH), sT2, o["ph"]))
            A("buffer_load_dwordx4 v14, %s, s%d offen offset:1024 %s lds" % (SR(rH), sT2, o["ph"])); vm.add("H", 2)
        def copies(ch):
            b = 64
            A("s_lshl_b32 s%d, s%d, 10\ns_add_u32 s%d, s%d, %d\nv_add_u32 v3, s%d, v14" % (sT0, sW4, sT0, sT0, HC + 24 + ch * 16640, sT0))
            A("s_waitcnt lgkmcnt(0)\nds_read_b64 %s, v3\nds_read_b128 %s, v3 offset:8\ns_waitcnt lgkmcnt(0)" % (R(b, 2), R(b + 2, 4)))
            for j in range(4): A("v_alignbyte_b32 v%d, v%d, v%d, 2" % (b + 6 + j, b + 2 + j, b + 1 + j))
            A("ds_write_b128 v3, %s offset:%d" % (R(b + 6, 4), 4160 + 8))
            for j in range(4): A("v_mov_b32 v%d, v%d" % (b + 10 + j, b + 1 + j))
            A("ds_write_b128 v3, %s offset:%d" % (R(b + 10, 4), 2 * 4160 + 8))
            for j in range(4): A("v_alignbyte_b32 v%d, v%d, v%d, 2" % (b + 14 + j, b + 1 + j, b + j))
            A("ds_write_b128 v3, %s offset:%d" % (R(b + 14, 4), 3 * 4160 + 8))
        def p_a():
            A("s_lshr_b32 s%d, s%d, 3\ns_lshl_b32 s%d, s%d, 2\ns_add_u32 s%d, s%d, s%d\ns_lshl_b32 s%d, s%d, 3" % (sT0, sSLOT, sT0, sT0, sT0, sT0, sW4, sFH, sT0))
            s.flagoff(sFH, WS_FA)
            s.poll_issue(8, sFH)
            st_["p"] = True
        def r_in():
            if not st_["p"]: p_a()
            A("s_lshl_b32 s%d, s%d, 13\ns_lshl_b32 s%d, s%d, 10\ns_add_u32 s%d, s%d, s%d\ns_add_u32 m0, s%d, %d" % (sT0, sSLOT, sT1, sW4, sT0, sT0, sT1, sT1, RB))
            s.poll_check(8, sFH)
            s.stamp("h", "pollA")
            A("buffer_load_dwordx4 v14, %s, s%d offen sc1 lds" % (SR(rWS), sT0))
            A("s_add_u32 m0, s%d, %d\ns_add_u32 s%d, s%d, 4096" % (sT1, RB + 4608, sT0, sT0))
            A("buffer_load_dwordx4 v14, %s, s%d offen sc1 lds" % (SR(rWS), sT0)); vm.add("R", 2)
        def setup():
            st_["S"] = True
            A("s_mov_b32 s%d, 0x%x\ns_load_dwordx2 %s, %s, s%d" % (sT0, WS_NONCE, SR(sN, 2), SR(sWS, 2), sT0))
            s.srd(rC, sW2, 1792 * 1024); s.srd(rWS, sWS, WS_SIZE); s.srd(rOUT, sOUT, 2 << 20)
            if not st_["h"]:
                s.srd(rH, sH, 2 << 20); A("v_lshlrev_b32 v14, 4, v1")
            A("v_mov_b32 v52, 0\nv_mov_b32 v53, 0\nv_mov_b32 v54, 0\nv_mov_b32 v55, 0")
            if "Z" not in o["ord"]: heads()
            A("v_mov_b32 v3, %d\nv_min_u32 v27, 1, v1\nv_lshlrev_b32 v27, 31, v27" % NONL)
            A("v_bfrev_b32 v4, 1\nds_write2_b32 v3, v52, v4 offset0:2 offset1:3")
            A("v_lshrrev_b32 v3, 3, v1")
            if "r" in o["ord"]:
                A("v_xor_b32 v4, v3, v5\nv_lshlrev_b32 v18, 7, v3\nv_lshl_add_u32 v18, v4, 4, v18")
                A("s_lshl_b32 s%d, s%d, 11\ns_add_u32 s%d, s%d, %d\nv_add_u32 v18, s%d, v18\nv_lshlrev_b32 v19, 12, v3\nv_lshl_add_u32 v19, v5, 4, v19" % (sT0, sW4, sT0, sT0, ROUT, sT0))
            A("v_lshlrev_b32 v4, 1, v9\nv_xor_b32 v4, v4, v5\nv_lshlrev_b32 v3, 10, v3\nv_lshl_add_u32 v24, v4, 4, v3")
            A("s_lshl_b32 s%d, s%d, 7\ns_lshl_b32 s%d, s%d, 15\ns_add_u32 s%d, s%d, s%d" % (sT0, sN2, sT1, sW4, sW2B, sT0, sT1))
            s.rot(hROT, sT0)
            A("s_lshl_b32 s%d, s%d, 17\ns_add_u32 s%d, s%d, s%d" % (sT0, hROT, sW2B, sW2B, sT0))
        def notify():
            A("v_mov_b32 v3, %d\nv_mov_b32 v4, 1" % NONL)
            vm.wait("R", extra=" lgkmcnt(0)")
            A("s_mov_b64 exec, 1\nds_add_u32 v3, v4 offset:8\ns_mov_b64 exec, -1")
            s.stamp("h", "rnote")
        def w2half(j, kh):
            dma = not (3 <= j < 3 + nreg)
            t = 7 * kh + j
            if dma: A("s_add_u32 m0, s%d, %d" % (sLB, (QS[j] + kh) * 16384))
            A("s_cmp_ge_u32 s%d, %d\ns_cselect_b32 s%d, %d, 0\ns_sub_u32 s%d, s%d, s%d" % (hROT, 7 - j, sT1, 7 * 131072, sT1, sW2B, sT1))
            for q in range(4):
                if dma:
                    A("s_add_u32 s%d, s%d, %d" % (sT0, sT1, q * (8192 - 1024) + t * 131072))
                    A("buffer_load_dwordx4 v24, %s, s%d offen offset:%d lds" % (SR(rC), sT0, q * 1024))
                else:
                    A("s_add_u32 s%d, s%d, %d" % (sT0, sT1, q * 8192 + t * 131072))
                    A("buffer_load_dwordx4 %s, v24, %s, s%d offen" % (R(WREG + 32 * (j - 3) + 16 * kh + 4 * q, 4), SR(rC), sT0))
                vm.add("w%d_%d" % (j, kh))
        def w2load(j):
            for kh in range(2): w2half(j, kh)
        def w2put(j):
            if "d" in o["dbg"] and j >= 3 + nreg:
                for kh in range(2): vm.add("w%d_%d" % (j, kh), 0); vm.q.insert(0, "w%d_%d" % (j, kh))
                return
            if "b" in o["dbg"] and j < 3 + nreg: return
            if not (3 <= j < 3 + nreg): return w2load(j)
            a = 15 if QS[j] < 4 else 16
            for kh in range(2):
                vm.wait("w%d_%d" % (j, kh))
                for q in range(4):
                    A("ds_write_b128 v%d, %s offset:%d" % (a, R(WREG + 32 * (j - 3) + 16 * kh + 4 * q, 4), ((QS[j] & 3) + kh) * 16384 + q * 1024))
        nx = {"w": 0, "v": 6}
        def nxt(k, n=2):
            for _ in range(n):
                j = nx[k]; nx[k] += 1
                assert j < (6 if k == "w" else 6 + 2 * nreg)
                w2half(j >> 1, j & 1)
        def daddr():
            A("v_add_u32 v15, s%d, v14\nv_add_u32 v16, 0x10000, v15" % sLB)
            s.tail_addr()
            A("s_lshl_b32 s%d, s%d, 5\nv_lshl_add_u32 v3, v9, 3, s%d\nv_lshrrev_b32 v4, 1, v20\nv_lshlrev_b32 v4, 4, v4\nv_xor_b32 v3, v3, v4" % (sT0, sW4, sT0))
            A("v_lshl_add_u32 v3, v20, 7, v3\nv_add_u32 v21, %d, v3" % XT)
            A("v_bfe_u32 v4, v1, 2, 2\nv_lshl_add_u32 v4, v9, 2, v4\nv_bfe_u32 v3, v4, 1, 2\nv_lshlrev_b32 v4, 7, v4\nv_and_b32 v6, 3, v1\nv_lshl_add_u32 v4, v6, 3, v4\nv_lshl_add_u32 v4, v3, 5, v4")
            A("s_lshl_b32 s%d, s%d, 11\ns_add_u32 s%d, s%d, %d\nv_add_u32 v22, s%d, v4" % (sT1, sW4, sT1, sT1, YT, sT1))
            A("v_xor_b32 v40, 32, v22\nv_xor_b32 v41, 64, v22\nv_xor_b32 v42, 0x60, v22")
            A("s_xor_b32 s%d, s%d, 1\ns_min_u32 s%d, s%d, 1\ns_lshl_b32 s%d, s%d, 31\ns_add_u32 s%d, s%d, %d" % (sT0, sW4, sT0, sT0, sT0, sT0, sT0, sT0, STL))
            A("v_lshl_add_u32 v30, v1, 3, s%d\ns_sub_u32 s%d, s%d, %d" % (sT0, sST, sST, STL))
            A("s_lshl_b32 s%d, s%d, 2\ns_add_u32 s%d, s%d, s%d\ns_lshr_b32 s%d, s%d, 4\ns_lshl_b32 s%d, s%d, 5" % (sT0, sN2, sT0, sT0, sW4, sT1, sM2, sT1, sT1))
            A("s_add_u32 s%d, s%d, s%d\ns_lshl_b32 s%d, s%d, 4" % (sT1, sT1, sT0, sFY, sT1))
            s.flagoff(sFY, WS_FY)
            A("s_lshl_b32 s%d, s%d, 11\ns_lshl_b32 s%d, s%d, 16\ns_add_u32 s%d, s%d, s%d\ns_add_u32 s%d, s%d, 0x%x" % (sT0, sT0, sT1, sM2, sT0, sT0, sT1, sY1, sT0, WS_Y))
            A("s_lshl_b32 s%d, s%d, 4\ns_add_u32 s%d, s%d, s%d\ns_lshl_b32 s%d, s%d, 2" % (sPH, sM2, sPH, sPH, hROT, sPH, sPH))
            A("s_mul_i32 s%d, s%d, 6\ns_add_u32 s%d, s%d, s%d" % (sT0, sW4, sPH, sPH, sT0)); s.flagoff(sPH, WS_FH)
            A("v_lshlrev_b32 v3, 5, v9\nv_xor_b32 v26, v3, v14")
            A("s_lshl_b32 s%d, s%d, 3" % (sHB, sM2)); s.flagoff(sHB, WS_FS)
        def v_touch():
            A("v_lshrrev_b32 v3, 2, v1\nv_and_b32 v4, 3, v1\nv_lshlrev_b32 v3, 10, v3\nv_lshl_add_u32 v3, v4, 7, v3")
            A("s_and_b32 s%d, s%d, 1\ns_lshl_b32 s%d, s%d, 2\ns_add_u32 s%d, s%d, s%d\ns_lshr_b32 s%d, s%d, 2\ns_lshl_b32 s%d, s%d, 3\ns_add_u32 s%d, s%d, s%d\ns_lshl_b32 s%d, s%d, 14" % (sT0, sIDX, sT0, sT0, sT0, sT0, sW4, sT1, sIDX, sT1, sT1, sT0, sT0, sT1, sT0, sT0))
            A("s_bfe_u32 s%d, s%d, 0x10001\ns_mul_i32 s%d, s%d, %d\ns_add_u32 s%d, s%d, s%d" % (sT1, sIDX, sT1, sT1, 896 * 1024, sT0, sT0, sT1))
            A("s_and_b32 s%d, s%d, 1\ns_lshl_b32 s%d, s%d, 9\ns_add_u32 s%d, s%d, s%d" % (sT1, sC, sT1, sT1, sT0, sT0, sT1))
            A("buffer_load_dword v31, v3, %s, s%d offen %s" % (SR(rC), sT0, o["pV"])); vm.add("V")
        def t_touch(n=4):
            k = st_.get("T", 0); st_["T"] = k + n
            if k % 4 == 0:
                A("s_lshr_b32 s%d, s%d, 1\ns_add_u32 s%d, s%d, %d\ns_and_b32 s%d, s%d, 3\ns_mul_i32 s%d, s%d, 28\ns_add_u32 s%d, s%d, s%d" % (sT0, sC, sT0, sT0, k >> 2, sT0, sT0, sT0, sT0, sT0, sT0, sIDX))
                A("s_lshl_b32 s%d, s%d, 2\ns_add_u32 s%d, s%d, s%d\ns_lshl_b32 s%d, s%d, 3\ns_and_b32 s%d, s%d, 1\ns_add_u32 s%d, s%d, s%d\ns_lshl_b32 s25, s%d, 9" % (sT0, sT0, sT0, sT0, sW4, sT0, sT0, sT1, sC, sT0, sT0, sT1, sT0))
            for rr in range(k % 4, k % 4 + n):
                for l in range(4):
                    for hh in range(o["th"]): A("s_buffer_load_dword s55, %s, s25 offset:%d" % (SR(rC), rr * 1024 + l * 128 + hh * 64))
        def only(w, f):
            l = s.lab("w")
            A("s_cmp_lg_u32 s%d, %d\ns_cbranch_scc1 %s" % (sW4, w, l)); f(); A("%s:" % l)
        def s_issue(): only(1, lambda: s.poll_issue(4, sHB)); st_["s"] = True
        def s_check():
            if not st_.get("s"): s_issue()
            only(1, lambda: s.poll_check(4, sHB))
            A("buffer_load_dwordx2 v[56:57], v30, %s, s%d offen sc1" % (SR(rWS), sST)); vm.add("ms")
        def m_put():
            vm.wait("ms")
            only(1, lambda: A("ds_write_b64 v30, v[56:57] offset:%d\ns_waitcnt lgkmcnt(0)" % 0))
        def x_load():
            A("buffer_load_dwordx4 v[32:35], v46, %s, s%d offen" % (SR(rA), sOB)); vm.add("x")
        def h_issue():
            only(0, lambda: s.poll_issue(12, sPH)); only(2, lambda: s.poll_issue(16, sPH)); st_["P"] = True
        def h_check():
            if not st_.get("P"): h_issue()
            only(0, lambda: (s.poll_check(12, sPH), A("v_mov_b32 v3, %d\nds_write_b32 v3, v52 offset:12" % NONL), s.stamp("h", "pollH1")))
        H = dict(V=v_touch, T=t_touch, Y=lambda: t_touch(2), s=s_issue, t=s_check, m=m_put, X=x_load, P=h_issue, Q=h_check, only=only, N=nonce, A=bar_a, r=rout, f=flag_a, z=zero, Z=heads, h=h_rows, c=lambda: copies(0), d=lambda: copies(1), R=r_in, n=notify, D=daddr,
                 w=lambda: nxt("w"), v=lambda: nxt("v"), x=lambda: nxt("w", 1), u=lambda: nxt("v", 1), put=w2put, p=p_a, S=setup)
        for ch in o.get("skip", ""): H[ch] = lambda: None
        def dot():
            st_["dot"] = st_.get("dot", 0) + 1
            s.stamp("h", "t%d" % st_["dot"])
        H["."] = dot
        def cap(f):
            old = s.L; s.L = []
            f()
            r = s.L; s.L = old
            return r
        def section(sec):
            for m in re.finditer(r"(\d)(?:\((?:(\d):)?([^)]*)\))?|(.)", sec):
                if m.group(4): H[m.group(4)](); continue
                stream = []
                for ch in m.group(3) or "":
                    if ch in "SDzZcdNTY": stream += cap(H[ch])
                    else: stream.append(H[ch])
                stage(int(m.group(1)), stream, int(m.group(2) or 0))
        H["section"] = section
        return H

    def helper_waves(s):
        A = s.A
        o = s.o
        s.stamp("h", "start")
        vm = VM(s)
        H = s.hitems(vm)
        A("v_lshrrev_b32 v3, 5, v1\nv_bfe_u32 v4, v1, 3, 2\nv_lshl_add_u32 v3, v3, 8, v4\nv_lshlrev_b32 v3, 10, v3")
        A("v_and_b32 v5, 7, v1\nv_lshrrev_b32 v9, 4, v1\nv_xor_b32 v6, v5, v9\nv_lshl_add_u32 v10, v6, 4, v3\nv_xor_b32 v11, 64, v10")
        A("s_lshr_b32 s%d, s%d, 2\ns_lshl_b32 s%d, s%d, 7\ns_and_b32 s%d, s%d, 3\ns_add_u32 s%d, s%d, s%d" % (sT0, sMI, sT0, sT0, sT1, sMI, sT0, sT0, sT1))
        A("s_lshl_b32 s%d, s%d, 12\ns_lshl_b32 s%d, s%d, 16\ns_add_u32 s%d, s%d, s%d" % (sT0, sT0, sT1, sW4, sXB, sT0, sT1))
        A("v_and_b32 v20, 15, v1\nv_lshlrev_b32 v6, 1, v9\nv_xor_b32 v6, v6, v20\nv_mul_u32_u24 v7, 3584, v9\nv_lshl_add_u32 v12, v6, 4, v7\nv_xor_b32 v13, 0x80, v12")
        A("s_lshl_b32 s%d, s%d, 8\ns_mul_i32 s%d, s%d, %d\ns_add_u32 s%d, s%d, s%d" % (sT0, sFI, sT1, sW4, 16 * 3584, sWB, sT0, sT1))
        A("s_lshl_b32 s%d, s%d, 12" % (sLB, sW4))
        if o["rot"]:
            A("s_and_b32 s%d, s%d, 3\ns_lshr_b32 s%d, s%d, 2\ns_lshr_b32 s%d, s%d, 1\ns_add_u32 s%d, s%d, s%d" % (sT0, sIDX, sT1, sIDX, sT2, sC, sT1, sT1, sT2))
            assert sum(o["rgrp"]) == 7
            a0 = 1
            for g, n in enumerate(o["rgrp"]):
                r = RG[g]
                A("s_lshl_b32 s%d, s%d, %d\ns_add_u32 s%d, s%d, s%d" % (r, sT0, int(n > 5), r, r, sT1))
                if n & (n - 1): A("s_mul_i32 s%d, s%d, %d\ns_lshr_b32 s%d, s%d, 8\ns_mul_i32 s%d, s%d, %d\ns_sub_u32 s%d, s%d, s%d" % (sT2, r, -(-256 // n), sT2, sT2, sT2, sT2, n, r, r, sT2))
                else: A("s_and_b32 s%d, s%d, %d" % (r, r, n - 1))
                A("s_add_u32 s%d, s%d, %d" % (r, r, a0))
                a0 += n
        A("s_cmp_eq_u32 s%d, 0\ns_waitcnt lgkmcnt(0)" % sISB)
        s.srd(rA, sQ, 2 << 20); s.srd(rB, sW1, 512 * 3584)
        A("s_cbranch_scc1 L_spare_h0")
        sched = o["ord"].split("|")
        assert len(sched) == 10
        s.sched = sched
        assert "N" in "".join(sched[1:]) and "S" in sched[0] and ("A" in sched[0]) != ("r" in o["ord"]) and o["flate"] >= 1 and o["sfirst"]
        if "r" in o["ord"]:
            sec = lambda ch: [i for i, x in enumerate(sched) if ch in x][0]
            assert sec("r") < sec("z") and sec("r") < sec("R") and re.search("N.*f", o["ord"]) and re.search("f.*p", o["ord"])
        assert re.match(r"[^tsmX]*n.*t.*m", sched[9]) and ("X" in sched[9]) != ("X" in o["dord"])
        sec = {ch: i for i, x in enumerate(sched) for ch in x}
        SL = o["slots"]
        free = lambda slot, k=8: max([p + 2 for p in range(k) if SL[p] == slot] + [0])
        for k in range(8): assert free(SL[k], k) <= sec[str(k)] <= k, k
        assert sec["h"] >= free("3") and sec.get("Z", 0) >= free("3")
        n = 0
        for i, x in enumerate(sched):
            for ch in x:
                for _ in range({"w": 2, "x": 1}.get(ch, 0)):
                    assert i >= free("201"[n >> 1]); n += 1
        H["section"](sched[0])
        hk = [i for i, x in enumerate(sched) if "c" in x][0] - 1
        vm.wait(*(["s0", "H"] if hk == 0 else ["s0"]), extra=" lgkmcnt(0)")
        s.stamp("h", "s0")
        A("s_barrier")
        for k in range(8):
            s.stamp("h", "B%d" % k)
            H["section"](sched[k + 1])
            s.stamp("h", "I%d" % k)
            tags = ["s%d" % (k + 1)] if k < 7 else []
            if k + 1 == hk: tags.append("H")
            pend = re.sub(r"^.*R", "", "".join(sched[:8]))
            lg = " lgkmcnt(0)" if (k == 6 and set(pend) & set("zcd")) or (k + 1 == hk and "Z" in re.sub(r"^.*R", "", "".join(sched[:k + 2]))) else ""
            if tags: vm.wait(*tags, extra=lg)
            s.stamp("h", "B%da" % (k + 1))
            A("s_barrier")
        s.stamp("h", "B8")
        k = max([i + 1 for i, ch in enumerate(sched[9]) if ch in "cdnR"] + [0])
        H["section"](sched[9][:k])
        s.vmjoin = list(vm.q); s.prejoin = "".join(sched[:9]) + sched[9][:k]
        A("L_h_join:")
        s.stamp("h", "join")
        H["section"](sched[9][k:])
        s.stamp("h", "w2_issued")
        if "Q" not in sched[9]: H["Q"]()
        vm.wait("w0_0", "w0_1")
        s.stamp("h", "BC2a")
        A("s_barrier")
        nreg = o["nreg"]
        isreg = lambda j: 3 <= j < 3 + nreg
        XV, YV = 64, 72
        lq = []
        def lwait(*tags):
            idx = [i for i, x in enumerate(lq) if x in tags]
            if not idx: return ""
            n = len(lq) - 1 - max(idx)
            n = 0 if "sm" in lq else min(n, 15)
            del lq[:len(lq) - n]
            return " lgkmcnt(%d)" % n
        def item(ch):
            if ch == "X": H["X"]()
            elif ch in "3456":
                H["put"](int(ch))
                if isreg(int(ch)): lq.extend([ch] * 8)
            elif ch == "q": H["only"](2, lambda: (s.poll_check(16, sPH), s.stamp("h", "pollH2")))
            elif ch == "r": A("ds_read_b64 %s, v47" % R(MS, 2)); lq.append("r")
            elif ch == "a":
                vm.wait("x", extra=lwait("r"))
                for x in s.xarith(32): A(x)
            elif ch == "p": s.poll_issue(16, sFY); lq.append("sm")
            elif ch == "y":
                s.poll_check(16, sFY); lq.clear()
                s.stamp("h", "pollY")
                A("s_lshl_b32 s%d, s%d, 11\ns_add_u32 m0, s%d, %d\ns_nop 0" % (sT0, sW4, sT0, YT))
                A("buffer_load_dwordx4 v26, %s, s%d offen sc1 lds" % (SR(rWS), sY1))
                A("buffer_load_dwordx4 v26, %s, s%d offen offset:1024 sc1 lds" % (SR(rWS), sY1)); vm.add("y", 2)
            elif ch == ".": H["."]()
            elif ch == "+": A("s_setprio 3")
            elif ch == "-": A("s_setprio 0")
            else: assert 0, ch
        segs = o["dord"].split("|")
        bars = [int(x[0]) for x in segs[1:]]
        at = {ch: (i, k) for i, x in enumerate(segs) for k, ch in enumerate(x if i == 0 else " " + x[1:])}
        for j in (4, 5, 6): assert at[str(j)][0] >= 1 and bars[at[str(j)][0] - 1] >= j - 4 and bars[at[str(j)][0]] <= j - 1
        assert bars[0] == 0 and at["q"][0] == 0 and at["3"][0] < len(bars) and bars[at["3"][0]] <= 2
        assert at["r"][0] < at["y"][0] and at["r"] < at["a"] and at["p"] < at["y"]
        for i, x in enumerate(segs):
            for ch in (x if i == 0 else x[1:]): item(ch)
            if i < len(bars):
                nb = bars[i + 1] if i + 1 < len(bars) else 6
                tiles = range(bars[i] + 1, nb + 1)
                lt = [str(j) for j in tiles if isreg(j)] + (["r"] if at["y"][0] == i + 1 else [])
                wt = ["w%d_%d" % (j, kh) for j in tiles if not isreg(j) for kh in range(2)]
                w = lwait(*lt)
                if wt: vm.wait(*wt, extra=w)
                elif w: A("s_waitcnt" + w)
                s.stamp("h", "X%da" % bars[i])
                A("s_barrier")
        A("s_waitcnt vmcnt(0)")
        s.stamp("h", "y_landed")
        for i in range(4): A("ds_read_b64_tr_b16 %s, v%d" % (R(YV + 2 * i, 2), 39 + i if i else 22))
        for i in range(4):
            A("s_waitcnt lgkmcnt(%d)" % 3)
            A("ds_write_b64 v21, %s offset:%d" % (R(YV + 2 * i, 2), 2048 * i))


HEAD = open("cdna_kernels/%s.s.ref" % NAME).read()


def render(g):
    head = HEAD[:HEAD.index("; @launch")]
    t = head + "; @launch grid=(256,1,1) block=(512,1,1) lds=%d\n" % LDS_SIZE
    t += '.amdgcn_target "amdgcn-amd-amdhsa--gfx950"\n.text\n.globl %s_kernel\n.p2align 8\n.type %s_kernel,@function\n%s_kernel:\n' % (NAME, NAME, NAME)
    for x in g.L:
        t += (x if x.endswith(":") else "    " + x) + "\n"
    t += HEAD[HEAD.index("s_endpgm"):]
    return t


if __name__ == "__main__":
    out = sys.argv[1]
    opts = dict(eval("dict(%s)" % sys.argv[2])) if len(sys.argv) > 2 else {}
    g = Gen(**opts).build()
    open(out, "w").write(render(g))
    print("wrote", out, len(g.L), "lines", g.nst)
```

```python
import sys, re

NAME = "parallel_sum__ssm_conv_h3__dense_activation_relu__prompt"

WS_R = 0
WS_Y = 2 << 20
WS_H = 4 << 20
WS_ST = 12 << 20
WS_FA = 13 << 20
WS_FH = WS_FA + 65536
WS_FY = WS_FA + 2 * 65536
WS_FS = WS_FA + 3 * 65536
WS_NONCE = WS_FA + 4 * 65536
WS_TS = 14 << 20
WS_SIZE = 16 << 20

HC = 98304
RB = 131584
ROUT = RB
NONL = 140800
STL = NONL + 64
KV = 143360
XCH = 143360
RED = 147456
PART = 98304
XT = 131072
YT = 139264
LDS_SIZE = 163840

sQ, sK, sV, sSK, sH, sD, sW1, sW2, sOUT, sDBG, sWS = 4, 6, 8, 10, 12, 14, 18, 20, 22, 24, 26
rA, rB, rWS, rC, rH, rOUT, rDBG = 28, 32, 36, 40, 44, 48, 52
sN = 52
sW8, sW4, sC, sIDX, sMI, sFI, sM2, sN2 = 56, 57, 58, 59, 60, 61, 62, 63
sT0, sT1, sT2, sT3 = 64, 65, 66, 67
sXB, sWB, sLB, sSLOT = 68, 69, 70, 71
sHB, sW2B, sCNT, sDV = 72, 73, 74, 75
sFH, sPH, sFY, sST = 76, 77, 78, 79
sOB, sY0, sISB, sY1 = 80, 81, 82, 83
P0, P1 = 4, 84
sHS = 84
sROT = 94
hROT = 20
RG = (sCNT, sY0, sDV, 54)
sTS = 100
OOB = 0x80000000
XF, XN, XR_, MS = 232, 240, 248, 60


def R(a, n): return "v[%d:%d]" % (a, a + n - 1)
def SR(a, n=4): return "s[%d:%d]" % (a, a + n - 1)


class VM:
    def __init__(s, g): s.q = []; s.g = g
    def add(s, t, n=1): s.q += [t] * n
    def n(s, *tags):
        last = max(i for i, t in enumerate(s.q) if t in tags)
        n = len(s.q) - 1 - last
        if n > 63: n = 63
        return n
    def wait(s, *tags, extra=""):
        s.g.A("s_waitcnt vmcnt(%d)%s" % (s.n(*tags), extra))


class Gen:
    def __init__(s, **o):
        s.L = []
        s.o = dict(stamps=False, hflag_at=64, spin=1 << 16, depth=5, nt_kv="nt", outsc="sc1", prio=3, sfirst=1, rot=1, fsp=8,
                   ord="01(SD)A|2(z)|3|4h|5(N)|6p|7R|xx||cdnsXwwtvvPvm", nreg=3, rchk=8, ysplit=3, barpos=6, flate=1, sba=7, drot=(1, 0), dbg="", early=0, epos=0, inl=1, dord="3q|0r4a|15|26py|5", rgrp=(7,), hsc="sc1", slots="01201201", xld=14, xar=20, ksp=0, kq=12, kf=6, kx=(5, 9), kr="0234678a", krb="2234678a", kl=1, dprio=3, cprio=3, ko=5, tdot=0, b8pos=14, npre=14, r1pos=0, dens0=0, dens1=0, oldw=0, sord="H|U", pH="nt", map=0, ntx="", ntw="", nts="", ntm="nt", ro=2, rx=2, f0=2, sh="zcdFR|n", hs=(12, 16, 0, 0), th=1, pU="", pV="", ph="")
        s.o.update(o)
        s.nlab = 0
        s.nst = {}

    def A(s, t):
        for x in t.split("\n"):
            x = x.strip()
            if x: s.L.append(x)

    def lab(s, p):
        s.nlab += 1
        return "L_%s_%d" % (p, s.nlab)

    def srd(s, r, p, size):
        s.A("s_mov_b32 s%d, s%d\ns_mov_b32 s%d, s%d\ns_mov_b32 s%d, 0x%x\ns_mov_b32 s%d, 0x20000" % (r, p, r + 1, p + 1, r + 2, size, r + 3))

    def stamp_s(s, role, name):
        if not s.o["stamps"]: return ""
        if isinstance(s.o["stamps"], (list, tuple, set)) and name not in s.o["stamps"] and name not in ("start", "end"): return ""
        k = s.nst.setdefault(role, [])
        if name not in k: k.append(name)
        if s.o.get("cyc") and role == "m":
            return "s_memrealtime s[%d:%d]\ns_memtime s[96:97]\ns_waitcnt lgkmcnt(0)\nv_writelane_b32 v255, s%d, %d\nv_writelane_b32 v255, s96, %d" % (sTS, sTS + 1, sTS, k.index(name), 30 + k.index(name))
        return "s_memrealtime s[%d:%d]\ns_waitcnt lgkmcnt(0)\nv_writelane_b32 v255, s%d, %d" % (sTS, sTS + 1, sTS, k.index(name))

    def stamp(s, role, name): s.A(s.stamp_s(role, name))

    def stamp_out(s):
        if not s.o["stamps"]: return
        s.A("s_lshl_b32 s%d, s2, 3\ns_add_u32 s%d, s%d, s%d\ns_lshl_b32 s%d, s%d, 8\ns_add_u32 s%d, s%d, 0x%x" % (sT0, sT0, sT0, sW8, sT0, sT0, sT0, sT0, WS_TS))
        s.A("v_lshlrev_b32 v254, 2, v1\ns_nop 1\nbuffer_store_dword v255, v254, %s, s%d offen" % (SR(rWS), sT0))

    def weave(s, ms, fill, pre=None):
        for i, m in enumerate(ms):
            for f in (pre or {}).get(i, []): s.A(f)
            s.A(m)
            for f in fill.get(i, []): s.A(f)

    def freg(s, i): return (P0 if i < 8 else P1 - 16) + 2 * i

    def poll_issue(s, n, soff):
        A = s.A
        fsp = s.o["fsp"]
        if fsp == 8:
            i = 0
            while i < n:
                w = 8 if n - i >= 8 else (4 if n - i >= 4 else (2 if n - i >= 2 else 1))
                if i: A("s_add_u32 s%d, s%d, %d" % (sT2, soff, 8 * i))
                A("s_load_dwordx%d %s, %s, s%d glc" % (2 * w, SR(s.freg(i), 2 * w), SR(sWS, 2), sT2 if i else soff))
                i += w
        else:
            for i in range(n):
                if i: A("s_add_u32 s%d, s%d, %d" % (sT2, soff, fsp * i))
                A("s_load_dwordx2 %s, %s, s%d glc" % (SR(s.freg(i), 2), SR(sWS, 2), sT2 if i else soff))

    def poll_check(s, n, soff):
        A = s.A
        l0, l1, l2 = s.lab("pl"), s.lab("pr"), s.lab("pd")
        A("s_mov_b32 s%d, 0\n%s:\ns_waitcnt lgkmcnt(0)" % (sT3, l0))
        for i in range(n - 1):
            A("s_cmp_lg_u64 %s, %s\ns_cbranch_scc1 %s" % (SR(s.freg(i), 2), SR(sN, 2), l1))
        A("s_cmp_eq_u64 %s, %s\ns_cbranch_scc1 %s" % (SR(s.freg(n - 1), 2), SR(sN, 2), l2))
        A("%s:\ns_add_u32 s%d, s%d, 1\ns_cmp_gt_u32 s%d, 0x%x\ns_cbranch_scc1 %s" % (l1, sT3, sT3, sT3, s.o["spin"], l2))
        s.poll_issue(n, soff)
        A("s_branch %s\n%s:" % (l0, l2))

    def tokbase(s, dst, m2, t):
        return ("s_lshr_b32 s%d, s%d, 3\ns_lshl_b32 s%d, s%d, 9\ns_bfe_u32 s%d, s%d, 0x20001\ns_lshl_b32 s%d, s%d, 2\ns_add_u32 s%d, s%d, s%d\n" % (dst, m2, dst, dst, t, m2, t, t, dst, dst, t) +
                "s_and_b32 s%d, s%d, 1\ns_lshl_b32 s%d, s%d, 7\ns_add_u32 s%d, s%d, s%d" % (t, m2, t, t, dst, dst, t))

    def rot(s, dst, t):
        a, b = s.o["drot"]
        s.A("s_and_b32 s%d, s%d, 7\ns_mul_i32 s%d, s%d, %d\ns_lshr_b32 s%d, s%d, 3\ns_mul_i32 s%d, s%d, %d\ns_add_u32 s%d, s%d, s%d" % (dst, sM2, dst, dst, a, t, sM2, t, t, b, dst, dst, t))
        for _ in range((7 * a + 3 * b) // 7): s.A("s_add_u32 s%d, s%d, -7\ns_min_u32 s%d, s%d, s%d" % (t, dst, dst, dst, t))

    def rgrp(s, k):
        a0 = 1
        for g, n in enumerate(s.o["rgrp"]):
            if k < a0 + n: return g, a0
            a0 += n

    def flagoff(s, dst, base):
        s.A("s_lshl_b32 s%d, s%d, %d\ns_add_u32 s%d, s%d, 0x%x" % (dst, dst, s.o["fsp"].bit_length() - 1, dst, dst, base))

    def build(s):
        A = s.A
        A("s_cmp_ge_u32 s2, 256\ns_cbranch_scc1 L_end")
        A("s_load_dwordx16 s[4:19], s[0:1], 0\ns_load_dwordx8 s[20:27], s[0:1], 64")
        A("v_lshrrev_b32 v2, 6, v0\nv_and_b32 v1, 63, v0\nv_readfirstlane_b32 s%d, v2" % sW8)
        if s.o["stamps"]: A("v_mov_b32 v255, 0\ns_memtime s[%d:%d]\ns_waitcnt lgkmcnt(0)\nv_writelane_b32 v255, s%d, 60" % (sTS, sTS + 1, sTS))
        A("s_and_b32 s%d, s2, 7\ns_lshr_b32 s%d, s2, 3" % (sC, sIDX))
        if s.o["sfirst"]: A("s_add_u32 s%d, s%d, 28\ns_and_b32 s%d, s%d, 31" % (sIDX, sIDX, sIDX, sIDX))
        A("s_and_b32 s%d, s%d, 3\ns_and_b32 s%d, s%d, 6\ns_lshl_b32 s%d, s%d, 1\ns_add_u32 s%d, s%d, s%d" % (sMI, sIDX, sT0, sC, sT0, sT0, sMI, sMI, sT0))
        A("s_and_b32 s%d, s%d, 1\ns_mul_i32 s%d, s%d, 7\ns_lshr_b32 s%d, s%d, 2\ns_add_u32 s%d, s%d, s%d" % (sT0, sC, sT0, sT0, sFI, sIDX, sFI, sFI, sT0))
        if s.o["map"]:
            A("s_lshr_b32 s%d, s%d, 2\ns_and_b32 s%d, s%d, 6\ns_lshl_b32 s%d, s%d, 2\ns_add_u32 s%d, s%d, s%d" % (sM2, sIDX, sT0, sC, sT0, sT0, sM2, sM2, sT0))
            A("s_and_b32 s%d, s%d, 1\ns_lshl_b32 s%d, s%d, 2\ns_and_b32 s%d, s%d, 3\ns_add_u32 s%d, s%d, s%d" % (sT0, sC, sT0, sT0, sN2, sIDX, sN2, sN2, sT0))
        else:
            A("s_and_b32 s%d, s%d, 7\ns_and_b32 s%d, s%d, 6\ns_lshl_b32 s%d, s%d, 2\ns_add_u32 s%d, s%d, s%d" % (sM2, sIDX, sT0, sC, sT0, sT0, sM2, sM2, sT0))
            A("s_and_b32 s%d, s%d, 1\ns_lshl_b32 s%d, s%d, 2\ns_lshr_b32 s%d, s%d, 3\ns_add_u32 s%d, s%d, s%d" % (sT0, sC, sT0, sT0, sN2, sIDX, sN2, sN2, sT0))
        A("s_cmp_lt_u32 s%d, 28\ns_cselect_b32 s%d, 1, 0" % (sIDX, sISB))
        A("s_and_b32 s%d, s%d, 3" % (sW4, sW8))
        A("s_lshl_b32 s%d, s%d, 5\ns_add_u32 s%d, s%d, s%d" % (sSLOT, sC, sSLOT, sSLOT, sIDX))
        A("s_cmp_ge_u32 s%d, 4\ns_cbranch_scc1 L_helper" % sW8)
        s.mfma_waves()
        A("L_helper:")
        s.helper_waves()
        s.tail()
        s.spare_m()
        s.spare_h()
        A("L_end:")
        return s

    def mfma_waves(s):
        A = s.A
        o = s.o
        nkv = o["nt_kv"]
        s.stamp("m", "start")
        A("v_lshrrev_b32 v184, 3, v1\nv_and_b32 v191, 7, v1\nv_lshlrev_b32 v184, 10, v184\nv_lshl_add_u32 v184, v191, 4, v184")
        A("s_lshl_b32 s%d, s%d, 16\ns_lshl_b32 s%d, s%d, 14\ns_add_u32 s%d, s%d, s%d" % (sT0, sIDX, sT1, sW4, sT0, sT0, sT1))
        A("s_lshl_b32 s%d, s%d, 7\ns_add_u32 s%d, s%d, s%d" % (sT1, sC, sT0, sT0, sT1))
        A("v_add_u32 v184, s%d, v184\nv_subrev_u32 v185, 0x2000, v184" % sT0)
        A("s_mul_i32 s%d, s%d, 5120\ns_add_u32 s%d, s%d, %d" % (sLB, sW4, sLB, sLB, KV))
        A("s_lshl_b32 s%d, s%d, 9\nv_lshl_add_u32 v186, v1, 3, s%d" % (sT1, sC, sT1))
        A("s_lshl_b32 s%d, s%d, 2" % (sT1, sSLOT))
        if o["prio"]: A("s_setprio %d" % o["prio"])
        A("s_mov_b32 m0, s%d\ns_movk_i32 s%d, 0x1c00" % (sLB, sT2))
        A("s_waitcnt lgkmcnt(0)")
        s.srd(rA, sK, 2 << 20)
        A("buffer_load_dwordx4 v185, %s, 0 offen %s lds" % (SR(rA), nkv))
        A("s_add_u32 m0, s%d, 1024" % sLB)
        s.srd(rB, sV, 2 << 20)
        A("buffer_load_dwordx4 v184, %s, 0 offen %s lds" % (SR(rA), nkv))
        A("buffer_load_dwordx4 v184, %s, s%d offen offset:1024 %s lds" % (SR(rA), sT2, nkv))
        s.srd(rC, sSK, 4096)
        A("buffer_load_dwordx2 v[188:189], v186, %s, 0 offen" % SR(rC))
        A("s_add_u32 m0, s%d, 3072" % sLB)
        A("s_load_dword s%d, s[%d:%d], s%d" % (sDV, sD, sD + 1, sT1))
        A("buffer_load_dwordx4 v184, %s, 0 offen %s lds" % (SR(rB), nkv))
        A("buffer_load_dwordx4 v184, %s, s%d offen offset:1024 %s lds" % (SR(rB), sT2, nkv))
        s.srd(rWS, sWS, WS_SIZE)
        A("v_min_u32 v27, 1, v1\nv_lshlrev_b32 v28, 31, v27\nv_lshlrev_b32 v26, 4, v1")
        A("s_mov_b32 s%d, 0x%x\ns_load_dwordx2 s[88:89], s[%d:%d], s%d" % (sW2B, WS_NONCE, sWS, sWS + 1, sW2B))
        s.srd(rOUT, sOUT, 2 << 20); s.srd(rC, sQ, 2 << 20)
        A("v_bfe_u32 v8, v1, 2, 2\nv_lshrrev_b32 v9, 4, v1\nv_and_b32 v10, 3, v1\nv_and_b32 v20, 15, v1")
        A("v_lshlrev_b32 v187, 7, v8\nv_lshl_add_u32 v187, v9, 5, v187\nv_lshl_add_u32 v187, v10, 3, v187\nv_add_u32 v187, s%d, v187" % sLB)
        A("s_lshl_b32 s%d, s%d, 1\ns_sub_u32 s%d, 6, s%d\nv_xor_b32 v191, s%d, v191\nv_lshlrev_b32 v190, 7, v1" % (sT0, sW4, sT0, sT0, sT0))
        A("v_lshl_add_u32 v190, v191, 4, v190\nv_add_u32 v190, %d, v190\nv_xor_b32 v191, 16, v190" % ROUT)
        A("s_lshr_b32 s%d, s%d, 1\ns_and_b32 s%d, s%d, 1" % (sT0, sW4, sT1, sW4))
        A("v_lshrrev_b32 v21, 1, v20\nv_xor_b32 v21, v21, v9\nv_lshlrev_b32 v22, 7, v20\nv_lshl_add_u32 v12, v21, 4, v22")
        sl0 = int(o["slots"][0]) * 32768
        A("s_lshl_b32 s%d, s%d, 12\n%sv_add_u32 v12, s%d, v12" % (sT2, sW4, "s_add_u32 s%d, s%d, %d\n" % (sT2, sT2, sl0) if sl0 else "", sT2))
        A("v_xor_b32 v13, 0x1000, v12\nv_xor_b32 v14, 64, v12\nv_xor_b32 v15, 64, v13")
        A("v_and_b32 v21, 1, v9\nv_lshl_or_b32 v21, v21, 2, v8")
        A("s_lshl_b32 s%d, s%d, 1\ns_add_u32 s%d, s%d, s%d\ns_lshl_b32 s%d, s%d, 1\nv_xor_b32 v21, s%d, v21" % (sT2, sT1, sT2, sT2, sT0, sT2, sT2, sT2))
        A("v_lshl_add_u32 v22, v9, 3, v8\nv_lshlrev_b32 v22, 8, v22\nv_lshl_add_u32 v22, v10, 3, v22\nv_add_u32 v22, 0x%x, v22" % (0x4000 + sl0))
        for ft in range(4):
            A("v_xor_b32 v23, %d, v21\nv_lshl_add_u32 v%d, v23, 5, v22" % (ft, 16 + ft))
        A("s_lshl_b32 s%d, s%d, 1\ns_add_u32 s%d, s%d, s%d\ns_mul_i32 s%d, s%d, 14\ns_add_u32 s%d, s%d, s%d" % (sT2, sMI, sT2, sT2, sT0, sT3, sT2, sT3, sT3, sFI))
        A("s_lshl_b32 s%d, s%d, 3\ns_mul_i32 s%d, s%d, 6\ns_add_u32 s%d, s%d, s%d\ns_add_u32 s%d, s%d, s%d" % (sT3, sT3, sHS, sT1, sT3, sT3, sHS, sT3, sT3, sT0))
        A("s_lshl_b32 s%d, s%d, 11\ns_add_u32 s%d, s%d, 0x%x" % (sT3, sT3, sHS, sT3, WS_H))
        A("s_xor_b32 s%d, s%d, 0x800\ns_xor_b32 s%d, s%d, 0x2000\ns_xor_b32 s%d, s%d, 0x2800" % (sHS + 1, sHS, sHS + 2, sHS, sHS + 3, sHS))
        A("s_lshl_b32 s%d, s%d, 6\ns_and_b32 s%d, s%d, 28\ns_add_u32 s%d, s%d, s%d" % (sFH, sT2, sT3, sIDX, sFH, sFH, sT3))
        A("v_lshrrev_b32 v11, 1, v1\nv_min_u32 v11, 1, v11\nv_lshlrev_b32 v11, 31, v11\nv_mad_u32_u24 v11, v1, %d, v11" % (28 * o["fsp"]) if 0 else
          "v_lshrrev_b32 v11, 1, v1\nv_min_u32 v11, 1, v11\nv_lshlrev_b32 v11, 31, v11\nv_mul_u32_u24 v27, %d, v1\nv_or_b32 v11, v11, v27" % (28 * o["fsp"]))
        A("s_and_b32 s%d, s%d, 1\ns_lshl_b32 s%d, s%d, 1\ns_add_u32 s%d, s%d, s%d\ns_add_u32 s%d, s%d, s%d" % (sT3, sC, sT3, sT3, sFH, sFH, sT3, sFH, sFH, sT1))
        s.flagoff(sFH, WS_FH)
        ONE, SX, SW, CB, CA_, TM = 192, 196, 200, 204, 212, 220
        A("s_lshl_b32 s%d, s%d, 10\ns_add_u32 s%d, s%d, %d\nv_lshl_add_u32 v21, v1, 2, s%d\nv_xor_b32 v22, 0x400, v21\nv_xor_b32 v23, 0x800, v21" % (sT2, sW4, sT2, sT2, XCH, sT2))
        A("v_mov_b32 v24, 0xbb000000\nv_cmp_gt_u32 vcc, 16, v1\nv_lshrrev_b32 v27, 5, v1\nv_bfe_u32 v30, v1, 1, 1\nv_cndmask_b32 v24, 0, v24, vcc")
        A("v_cmp_eq_u32 vcc, v27, v30\nv_mov_b32 v27, 0x3f803f80\nv_and_b32 v30, 1, v1")
        for i in range(4): A("v_cndmask_b32 v%d, 0, v27, vcc" % (ONE + i))
        A("v_mul_u32_u24 v25, 0xaaaa, v30\nv_add_u32 v25, 0x4444, v25\nv_mov_b32 v29, %d" % NONL)
        for i in range(SX, TM): A("v_mov_b32 v%d, 0" % i)
        ACC = 64
        for i in range(64): A("v_mov_b32 v%d, 0" % (ACC + i))
        s.conv_addr(); s.d_addr(); s.tail_addr()
        SL = [int(ch) for ch in o["slots"]]
        A("s_mov_b32 s%d, 0\ns_mov_b32 s%d, 0x%x" % (sCNT, sXB, sum(((SL[k + 1] - SL[k]) & 15) << (4 * k) for k in range(7))))
        mr = "r" not in o["ord"]
        old = s.L; s.L = s.L if mr else []
        A("v_lshrrev_b32 v2, 3, v1\nv_and_b32 v3, 7, v1\nv_xor_b32 v27, v2, v3\nv_lshlrev_b32 v30, 7, v2\nv_lshl_add_u32 v30, v27, 4, v30")
        A("s_lshl_b32 s%d, s%d, 11\ns_add_u32 s%d, s%d, %d\nv_add_u32 v30, s%d, v30\nv_lshlrev_b32 v31, 12, v2\nv_lshl_add_u32 v31, v3, 4, v31" % (sT0, sW4, sT0, sT0, ROUT, sT0))
        A("s_lshl_b32 s%d, s%d, 2\ns_add_u32 s%d, s%d, s%d\ns_lshl_b32 s92, s%d, 5\ns_sub_u32 s%d, 31, s%d" % (sT0, sC, sT0, sT0, sW4, sT0, sT1, sIDX))
        A("s_add_u32 s92, s92, s%d\ns_lshl_b32 s%d, s%d, 16\ns_lshl_b32 s%d, s%d, 7\ns_add_u32 s90, s%d, s%d\ns_add_u32 s91, s90, 0x8000" % (sT1, sT0, sT0, sT1, sT1, sT0, sT1))
        s.flagoff(92, WS_FA)
        s.L = old
        xe = int(o["xld"] == -1)
        if xe: A("buffer_load_dwordx4 %s, v46, %s, s%d offen" % (R(XR_, 4), SR(rC), sOB))
        s.stamp("m", "pa_in")
        A("s_waitcnt vmcnt(%d)" % (2 + xe))
        s.stamp("m", "k_landed")
        K, V, T, O, U, P = 128, 138, 146, 152, 168, 128
        for G in range(5): A("ds_read_b64_tr_b16 %s, v187 offset:%d" % (R(K + 2 * G, 2), 512 * (G + 1)))
        A("v_alignbyte_b32 v%d, v189, v189, 2" % (T + 0))
        A("v_alignbyte_b32 v%d, v188, v188, 2" % (T + 1))
        A("v_and_b32 v%d, 0xffff0000, v189" % (T + 2))
        A("s_mov_b32 s%d, 0xffff\nv_bfi_b32 v%d, s%d, v189, v188" % (sT0, T + 3, sT0))
        A("v_and_b32 v%d, 0xffff, v188" % (T + 4))
        A("s_waitcnt lgkmcnt(0)")
        for m in range(8):
            A("v_dot2_f32_bf16 v%d, v%d, v%d, 0" % (O + 2 * m, K + m, T + 2))
            A("v_dot2_f32_bf16 v%d, v%d, v%d, 0" % (O + 2 * m + 1, K + m + 1, T + 0))
        for m in range(8):
            A("v_dot2_f32_bf16 v%d, v%d, v%d, v%d" % (O + 2 * m, K + m + 1, T + 3, O + 2 * m))
            A("v_dot2_f32_bf16 v%d, v%d, v%d, v%d" % (O + 2 * m + 1, K + m + 2, T + 1, O + 2 * m + 1))
        A("s_waitcnt vmcnt(%d)" % xe)
        for G in range(4): A("ds_read_b64_tr_b16 %s, v187 offset:%d" % (R(V + 2 * G, 2), 3072 + 512 * G))
        A("s_add_u32 s88, s88, 0x7f4a7c15\ns_add_u32 s89, s89, 0x9e3779b9")
        A("v_mov_b32 v2, s88\nv_mov_b32 v3, s89")
        for m in range(8):
            A("v_dot2_f32_bf16 v%d, v%d, v%d, v%d" % (O + 2 * m, K + m + 2, T + 4, O + 2 * m))
        A("s_waitcnt lgkmcnt(0)")
        for hf in range(2):
            ms_ = range(4, 8) if hf == 0 else range(0, 4)
            for m in ms_:
                A("v_lshlrev_b32 v%d, 16, v%d\nv_and_b32 v%d, 0xffff0000, v%d" % (U + 2 * m, V + m, U + 2 * m + 1, V + m))
            for m in ms_:
                A("v_pk_mul_f32 %s, %s, %s" % (R(O + 2 * m, 2), R(O + 2 * m, 2), R(U + 2 * m, 2)))
            for d in range(4 * hf, 4 * hf + 4):
                A("v_cvt_pk_bf16_f32 v%d, v%d, v%d" % (P + d, O + 15 - 2 * d, O + 14 - 2 * d))
            A("ds_write_b128 v%d, %s" % (190 + hf, R(P + 4 * hf, 4)))
        A("s_waitcnt lgkmcnt(0)")
        s.stamp("m", "kv_done")
        old = s.L; s.L = s.L if mr else []
        A("s_barrier")
        A("ds_read_b128 v[48:51], v30\nds_read_b128 v[52:55], v30 offset:1024")
        A("s_waitcnt lgkmcnt(1)\nbuffer_store_dwordx4 v[48:51], v31, %s, s90 offen sc1" % SR(rWS))
        A("s_waitcnt lgkmcnt(0)\nbuffer_store_dwordx4 v[52:55], v31, %s, s91 offen sc1" % SR(rWS))
        if o["xld"] == -2: A("buffer_load_dwordx4 %s, v46, %s, s%d offen" % (R(XR_, 4), SR(rC), sOB))
        s.stamp("m", "r_st")
        s.L = old
        A("s_cmp_eq_u32 s%d, 0" % sISB)
        A("s_barrier")
        A("s_cbranch_scc1 L_spare_m")
        s.stamp("m", "B0")
        FA = [128, 160]; FB = [144, 176]
        def rd(ks, st):
            r = []
            for t in range(4):
                r.append("ds_read_b64_tr_b16 %s, v%d offset:%d" % (R(FA[st] + 4 * t, 2), 16 + t, ks * 8192))
                r.append("ds_read_b64_tr_b16 %s, v%d offset:%d" % (R(FA[st] + 4 * t + 2, 2), 16 + t, ks * 8192 + 1024))
                r.append("ds_read_b128 %s, v%d offset:%d" % (R(FB[st] + 4 * t, 4), 12 + 2 * ks + (t >> 1), (t & 1) * 2048))
            return r
        def mm(st, i, j):
            a = ACC + 4 * (4 * i + j)
            return "v_mfma_f32_16x16x32_bf16 %s, %s, %s, %s" % (R(a, 4), R(FA[st] + 4 * i, 4), R(FB[st] + 4 * j, 4), R(a, 4))
        def sm(st):
            return ["v_smfmac_f32_16x16x64_bf16 %s, %s, %s, v25" % (R(SX, 4), R(ONE, 4), R(FB[st], 8)),
                    "v_smfmac_f32_16x16x64_bf16 %s, %s, %s, v25" % (R(SW, 4), R(ONE, 4), R(FA[st], 8))]
        def mf(st):
            q = sm(st)
            ms = [mm(st, 0, 0), mm(st, 1, 0), mm(st, 0, 1), mm(st, 1, 1), q[0], q[1]]
            ms += [mm(st, i, j) for i, j in ((2, 0), (2, 1), (0, 2), (1, 2), (2, 2), (3, 0), (3, 1), (3, 2), (0, 3), (1, 3), (2, 3), (3, 3))]
            return ms
        need = {0: 3, 1: 6, 6: 9, 11: 12}
        def place(r, g0, dens):
            fill = {}; g = g0; k = 0
            for i, x in enumerate(r):
                fill.setdefault(g, []).append(x); k += 1
                if k >= (2 if i < dens else 1): g += 1; k = 0
            assert max(fill) < 18
            return fill
        def waits(fill, upto=18):
            pre = {}
            for i, n in need.items():
                if i >= upto: continue
                newer = sum(1 for g, v in fill.items() if g < i for x in v if x.startswith("ds_"))
                assert 12 - n + newer < 16
                pre[i] = ["s_waitcnt lgkmcnt(%d)" % (12 - n + newer)]
            return pre
        for x in rd(0, 0): A(x)
        A("L_g1:")
        fill = place(rd(1, 1), o["r1pos"], o["dens1"])
        pre = waits(fill)
        if o["oldw"]: pre = {0: ["s_waitcnt lgkmcnt(0)"]}
        for g, x in enumerate(["s_bfe_i32 s%d, s%d, 0x40000" % (sT1, sXB), "s_lshr_b32 s%d, s%d, 4" % (sXB, sXB), "s_lshl_b32 s%d, s%d, 15" % (sT1, sT1),
                               "s_add_u32 s%d, s%d, 1" % (sCNT, sCNT), "s_cmp_eq_u32 s%d, 8" % sCNT]): fill.setdefault(g, []).append(x)
        last = max(g for g, v in fill.items() if any(x.startswith("ds_") for x in v))
        upd = ["v_add_u32 v%d, s%d, v%d" % (12 + q, sT1, 12 + q) for q in range(8)]
        g = max(last + 1, 6)
        per = -(-8 // (18 - g))
        for q in range(8): fill.setdefault(g + q // per, []).append(upd[q])
        s.weave(mf(0), fill, pre)
        A("s_cbranch_scc1 L_g1_last")
        bp = o["barpos"]
        fill = place(rd(0, 0), bp, o["dens0"])
        pre = waits({}, bp)
        if o["oldw"]: pre = {0: ["s_waitcnt lgkmcnt(0)"]}
        pre[bp] = ["s_waitcnt lgkmcnt(0)", "s_barrier"]
        def aflag():
            if not mr: return "s_nop 0"
            return "s_waitcnt vmcnt(%d)\nbuffer_store_dwordx2 v[2:3], v28, %s, s92 offen sc1\n" % (int(o["xld"] == -2), SR(rWS)) + s.stamp_s("m", "aflag")
        s.aflag = aflag
        pre[bp].insert(0, "s_cmp_lg_u32 s%d, %d\ns_cbranch_scc1 L_noflag\n" % (sCNT, o["flate"]) + aflag() + "\nL_noflag:")
        if o["stamps"] and o.get("mloop"):
            k = s.nst.setdefault("m", []); b = len(k); k += ["M%da" % q for q in range(1, 8)]
            pre[bp].insert(1, "s_memrealtime s[%d:%d]\ns_add_u32 m0, s%d, %d\ns_waitcnt lgkmcnt(0)\nv_writelane_b32 v255, s%d, m0" % (sTS, sTS + 1, sCNT, b - 1, sTS))
        s.weave(mf(1), fill, pre)
        A("s_branch L_g1")
        A("L_g1_last:")
        order = [(2 * pp + ii, j) for pp in range(2) for j in range(4) for ii in range(2)]
        ms = sm(1) + [mm(1, i, j) for i, j in order]
        cr = s.conv_reads(0, 0)
        cra = [x for x in cr if "v4 " in x]; crb = [x for x in cr if "v5 " in x]
        alate = "c" in o["ord"].split("|")[9] or "d" in o["ord"].split("|")[9] or "c" in o["ord"].split("|")[8]
        s.alate = alate
        if alate: cra = [""] * 16; crb = cr[:o["npre"]]
        s.crb = crb
        a0, a1, b0, b1, t_, u0, u1 = range(TM, TM + 7)
        fill = {0: [cra[0]], 1: cra[1:3], 2: cra[3:5], 3: cra[5:7],
                4: ["v_add_f32 v%d, v%d, v%d" % (a0, SX, SX + 1), "v_add_f32 v%d, v%d, v%d" % (a1, SX + 2, SX + 3)],
                5: ["v_mul_f32 v%d, v24, v%d" % (a0, a0), "v_mul_f32 v%d, v24, v%d" % (a1, a1)],
                6: ["v_add_f32 v%d, v%d, v%d" % (b0, SW, SW + 1), "v_add_f32 v%d, v%d, v%d" % (b1, SW + 2, SW + 3)],
                7: ["v_cvt_pk_bf16_f32 v%d, v%d, v%d" % (CB, a0, a0), "v_cvt_pk_bf16_f32 v%d, v%d, v%d" % (CB + 2, a1, a1)],
                8: ["v_cvt_pk_bf16_f32 v%d, v%d, v%d" % (t_, b0, b1), "ds_write2st64_b32 v21, v%d, v%d offset0:0 offset1:1" % (CB, CB + 2)],
                9: ["v_lshlrev_b32 v%d, 16, v%d" % (u0, t_), "v_and_b32 v%d, 0xffff0000, v%d" % (u1, t_)],
                10: ["v_sub_f32 v%d, v%d, v%d" % (u0, b0, u0), "v_sub_f32 v%d, v%d, v%d" % (u1, b1, u1)],
                11: ["v_cvt_pk_bf16_f32 v%d, v%d, v%d" % (CA_, b0, u0), "v_cvt_pk_bf16_f32 v%d, v%d, v%d" % (CA_ + 2, b1, u1)],
                12: ["ds_write2st64_b32 v21, v%d, v%d offset0:2 offset1:3" % (CA_, CA_ + 2), cra[7]],
                13: cra[8:10], 14: cra[10:12],
                16: ["s_waitcnt lgkmcnt(0)", s.stamp_s("m", "B8a"), "s_barrier", s.stamp_s("m", "B8")],
                17: ["ds_read_b32 v%d, v22" % (CB + 4), "ds_read_b32 v%d, v22 offset:256" % (CB + 6)]}
        pre = {0: ["s_waitcnt lgkmcnt(0)"]}
        if alate:
            pre = {0: ["s_waitcnt lgkmcnt(6)"], 6: ["s_waitcnt lgkmcnt(3)"], 8: ["s_waitcnt lgkmcnt(0)"]}
            fill[0] = ["s_nop 1"]; fill[1] = ["s_nop 1"]; fill[2] = ["s_nop 1"]; fill[3] = ["s_nop 1"]
            bb = o["b8pos"]
            if bb != 16:
                fill[bb] = fill.get(bb, []) + fill.pop(16); fill[bb + 1] = fill.get(bb + 1, []) + fill.pop(17)
        s.weave(ms, fill, pre)
        s.stamp("m", "g1_done")
        HP = 48
        def cm(n, ii):
            pp, j = n >> 2, n & 3
            i = 2 * pp + ii
            a = ACC + 4 * (4 * i + j)
            return "v_mfma_f32_16x16x16bf16_1k %s, %s, %s, %s" % (R(a, 4), R(CA_ + 2 * i, 2), R(CB + 2 * j, 2), R(a, 4))
        A(cm(0, 0)); A("ds_read_b32 v%d, v23 offset:512\nds_read_b32 v%d, v23 offset:768" % (CA_ + 4, CA_ + 6))
        A(cm(0, 1)); A(cra[12]); A(cra[13])
        if alate: A("s_nop 1")
        A(cm(1, 0)); A(cra[14]); A(cra[15])
        A(cm(1, 1)); A("s_waitcnt lgkmcnt(%d)" % (0 if alate else 4))
        rest = []
        rchk = o["rchk"]
        def rcheck():
            l0, l1 = s.lab("rl"), s.lab("rd")
            A("s_mov_b32 s%d, 0\n%s:\ns_waitcnt lgkmcnt(0)\nv_readfirstlane_b32 s%d, v27" % (sT3, l0, sT0))
            A("s_add_u32 s%d, s%d, 1\ns_cmp_ge_u32 s%d, 4\ns_cbranch_scc1 %s" % (sT3, sT3, sT0, l1))
            A("s_cmp_gt_u32 s%d, 0x%x\ns_cbranch_scc1 %s\nds_read_b32 v27, v29 offset:8\ns_branch %s\n%s:" % (sT3, 16 * o["spin"], l1, l0, l1))
            s.stamp("m", "rchk")
        s.rcheck = rcheck
        for n in range(8):
            pp, j = n >> 2, n & 3
            hp = HP + 4 * (n & 3)
            if n == rchk: rcheck(); rest = list(crb)
            if n == rchk - 1: A("ds_read_b32 v27, v29 offset:8")
            v = []
            for ii in range(2):
                a = ACC + 4 * (4 * (2 * pp + ii) + j)
                for u in range(2): v.append("v_cvt_pk_bf16_f32 v%d, v%d, v%d" % (hp + 2 * ii + u, a + 2 * u, a + 2 * u + 1))
            for d in range(4): v.append("v_pk_max_i16 v%d, v%d, 0" % (hp + d, hp + d))
            if n + 2 < 8:
                v.insert(0, cm(n + 2, 0)); v.insert(5, cm(n + 2, 1))
            for x in v: A(x)
            hst = "buffer_store_dwordx4 %s, v26, %s, s%d offen offset:%d" % (R(hp, 4), SR(rWS), sHS + 2 * (j >> 1) + pp, (j & 1) * 1024)
            if "g" not in o["dbg"]: A(hst + " sc1")
            if "e" in o["dbg"] or "g" in o["dbg"]: A(hst)
            k = -(-len(rest) // (8 - n))
            for x in rest[:k]: A(x)
            rest = rest[k:]
        s.stamp("m", "h_stored")
        if rchk == 8:
            A("L_m_rchk:")
            rcheck()
            for x in crb: A(x)
        A("L_m_conv:")
        if o["cprio"] != o["prio"]: A("s_setprio %d" % o["cprio"])
        s.stamp("m", "conv0")
        DA, WF, HR = 64, 96, 152
        dp = o["depth"]; NB = dp + 1
        ysp = o["ysplit"]
        sE, sRDY = 90, 93
        def hfirst(va):
            return ["buffer_load_dwordx4 %s, v%d, %s, s%d offen offset:%d %s" % (R(HR + 8 * stp + 4 * t, 4), va, SR(rWS), sE + (stp >> 1), (stp & 1) * 2048 + t * 1024, o["hsc"]) for stp in range(ysp) for t in range(2)]
        CA = 64
        cnt = 0
        for jj in range(4):
            st = jj & 1
            ms = []
            for J in range(8):
                for ct in range(J, 8):
                    a = CA + 4 * ct
                    c = "0" if (jj == 0 and J == 0) else R(a, 4)
                    ms.append("v_mfma_f32_16x16x32_bf16 %s, %s, %s, %s" % (R(a, 4), R(s.cA(st, J), 4), R(s.cB(st, ct - J), 4), c))
            pre = {}
            if jj == 0 and not alate:
                for m in range(8): pre[m] = ["s_waitcnt lgkmcnt(%d)" % (7 - m)]
            elif jj: A("s_waitcnt lgkmcnt(0)")
            fill = {}
            if jj == 0 and alate:
                r = cr[o["npre"]:] + s.conv_reads(1, 1)
                g = 0; pos = []
                for i, x in enumerate(r):
                    fill.setdefault(g, []).append(x); pos.append(g)
                    if len(fill[g]) >= (2 if len(r) - i > 30 - g else 1): g += 1
                done = 0; i = 0
                for J in range(8):
                    for ct in range(J, 8):
                        nd = max(2 + (ct - J) + 1, 10 + 2 * J if J else 0)
                        issued = o["npre"] + sum(1 for q in pos if q < i)
                        assert nd <= issued
                        if nd > done:
                            w = min(14, issued - nd); done = issued - w
                            pre[i] = ["s_waitcnt lgkmcnt(%d)" % w]
                        i += 1
            elif jj < 3:
                r = s.conv_reads(jj + 1, 1 - st)
                for i, x in enumerate(r): fill[i + (8 if jj == 0 else 0)] = [x]
            else:
                for e in range(4): fill[e] = ["ds_read_b64 %s, v6 offset:%d" % (R(128 + 2 * e, 2), 512 * (3 - e))]
                fill[12] = ["s_waitcnt lgkmcnt(0)"]
                for e in range(4):
                    k = 128 + 2 * e; u = 136 + 4 * e
                    fill[13 + 2 * e] = ["v_and_b32 v%d, 0xffff0000, v%d\nv_lshlrev_b32 v%d, 16, v%d" % (u, k + 1, u + 1, k + 1)]
                    fill[14 + 2 * e] = ["v_and_b32 v%d, 0xffff0000, v%d\nv_lshlrev_b32 v%d, 16, v%d" % (u + 2, k, u + 3, k)]
                fill[22] = ["s_bitcmp1_b32 s%d, 1\ns_cselect_b32 s%d, 0, 16" % (sW4, sT0)]
                fill[23] = ["s_lshl_b32 s%d, s%d, s%d\ns_and_b32 s%d, s%d, 0xffff0000" % (sT0, sDV, sT0, sDV, sT0)]
                fill[35] = ["s_bitcmp1_b32 s%d, 0" % sW4]
                fill[4] = ["s_mov_b32 s%d, s%d\ns_add_u32 s%d, s%d, 4096" % (sE, sHB, sE + 1, sHB)]
                fill[5] = ["s_cmp_eq_u32 s%d, 6\ns_cselect_b32 s%d, %d, s%d" % (sROT, sT0, 12288 - 7 * 16384, sROT + 1)]
                fill[6] = ["s_add_u32 s%d, s%d, s%d\ns_mov_b32 s%d, s%d" % (sE + 2, sE + 1, sT0, sHB, sE + (ysp >> 1))]
                if o["ksp"]:
                    fill[4] = ["v_add_u32 v27, 0x2000, v26"]; fill[5] = []; fill[6] = []
                e0 = o["early"]
                if e0:
                    assert ysp <= 5 and (e0 >= 13 or e0 == 4)
                    e1 = 12 if e0 == 4 else e0 + 5
                    fill.setdefault(e0, []).append("ds_read_b32 v27, v29 offset:12")
                    fill.setdefault(e1, []).append("s_waitcnt lgkmcnt(0)\nv_readfirstlane_b32 s%d, v27\nv_or_b32 v27, v27, v26" % sRDY)
                    e2 = max(e1 + 1, o["epos"])
                    for q, x in enumerate(hfirst(27)): fill.setdefault(min(35, e2 + q), []).append(x)
            for i in range(36):
                if cnt + i == o["hflag_at"]:
                    assert jj < 3 or i < 22
                    l = s.lab("hf")
                    fill.setdefault(i, []).append("s_cmp_eq_u32 s%d, 0\ns_cbranch_scc1 %s\ns_waitcnt vmcnt(0)\n" % (sISB, l) +
                                                  "buffer_store_dwordx2 v[2:3], v11, %s, s%d offen sc1\n" % (SR(rWS), sFH) + s.stamp_s("m", "hflag") + "\n%s:" % l)
            cnt += 36
            s.weave(ms, fill, pre)
        s.stamp("m", "conv_done")
        A("s_cbranch_scc1 L_cx1")
        for i in range(9): A("v_fmac_f32 v%d, s%d, v%d" % (CA + i, sDV, 136 + i))
        for q in range(4): A("ds_write_b128 v7, %s offset:%d" % (R(CA + 16 + 4 * q, 4), 1024 * q))
        for i in range(9, 16): A("v_fmac_f32 v%d, s%d, v%d" % (CA + i, sDV, 136 + i))
        A("s_branch L_cx2")
        A("L_cx1:")
        for q in range(4): A("ds_write_b128 v7, %s offset:%d" % (R(CA + 4 * q, 4), 1024 * q))
        A("s_nop 1")
        for i in range(16): A("v_fma_f32 v%d, s%d, v%d, v%d" % (CA + i, sDV, 136 + i, CA + 16 + i))
        A("L_cx2:")
        A("s_waitcnt lgkmcnt(0)")
        s.stamp("m", "BC2a")
        A("s_barrier")
        s.stamp("m", "BC2")
        vm = VM(s)
        if o["dprio"] != o["cprio"]: A("s_setprio %d" % o["dprio"])
        if o["ksp"]: return s.gemm2_k(vm)
        assert HR + 8 * NB <= 255 and dp + 2 <= 11
        def wrd(stp):
            j, ks = stp >> 2, stp & 3
            hi = j in (0, 3, 4)
            off = (32768 if j in (2, 3, 6) else 0) + ks * 4096
            r = []
            for i in range(4):
                for hh in range(2):
                    r.append("ds_read_b64_tr_b16 %s, v%d offset:%d" % (R(WF + 16 * (stp & 1) + 4 * i + 2 * hh, 2), (36 if hi else 32) + i, off + hh * 2048))
            return r
        def hld(stp):
            b = HR + 8 * (stp % NB)
            r = ["buffer_load_dwordx4 %s, v26, %s, s%d offen offset:%d %s" % (R(b + 4 * t, 4), SR(rWS), sHB, (stp & 1) * 2048 + t * 1024, o["hsc"]) for t in range(2)]
            if "a" in o["dbg"]: return r
            if "c" in o["dbg"]: return ["s_nop 0", "s_nop 0"]
            if stp & 3 == 1: r.append("s_add_u32 s%d, s%d, 4096" % (sHB, sHB))
            elif stp & 3 == 3 and stp < 27:
                r.append("s_cmp_eq_u32 s%d, %d\ns_cselect_b32 s%d, %d, s%d\ns_add_u32 s%d, s%d, s%d" % (sROT, 6 - (stp >> 2), sT0, 12288 - 7 * 16384, sROT + 1, sHB, sHB, sT0))
            return r
        A("ds_read_b64 %s, v47" % R(MS, 2))
        for e in range(4): A("ds_read_b128 %s, v8 offset:%d" % (R(CA + 16 + 4 * e, 4), 1024 * e))
        if o["early"]: A("s_cmp_eq_u32 s%d, 0\ns_cbranch_scc1 L_h_early" % sRDY)
        for x in hfirst(26): A(x)
        A("L_h_early:")
        for stp in range(ysp): vm.add("h%d" % stp, 2)
        for pp in range(2):
            A("s_waitcnt lgkmcnt(%d)" % (2 - 2 * pp))
            for i in range(4):
                a = CA + 8 * pp + 2 * i
                A("v_pk_add_f32 %s, %s, %s" % (R(a, 2), R(a, 2), R(a + 16, 2)))
            for i in range(4):
                a = CA + 8 * pp + 2 * i
                A("v_cvt_pk_bf16_f32 v%d, v%d, v%d" % (HP + 4 * pp + i, a, a + 1))
            A("buffer_store_dwordx4 %s, v10, %s, s%d offen sc1" % (R(HP + 4 * pp, 4), SR(rWS), sY1 if pp else sY0)); vm.add("y")
        s.stamp("m", "y_stored")
        for x in wrd(0): A(x)
        for stp in range(ysp, dp):
            for x in hld(stp): A(x)
            vm.add("h%d" % stp, 2)
        bars = [int(x[0]) for x in o["dord"].split("|")[1:]]
        prevbar = False
        for stp in range(28):
            j, ks = stp >> 2, stp & 3
            bar = ks == 3 and j in bars
            ms = []
            for i in range(4):
                for tj in range(2):
                    a = DA + 4 * (2 * i + tj)
                    c = "0" if stp == 0 else R(a, 4)
                    ms.append("v_mfma_f32_16x16x32_bf16 %s, %s, %s, %s" % (R(a, 4), R(WF + 16 * (stp & 1) + 4 * i, 4), R(HR + 8 * (stp % NB) + 4 * tj, 4), c))
            pre, fill = {}, {}
            nxt = wrd(stp + 1) if stp < 27 else []
            pre[0] = ["s_waitcnt vmcnt(%d) lgkmcnt(4)" % vm.n("h%d" % stp)]
            if stp == 0: pre[0].append(s.stamp_s("m", "h0"))
            if bar:
                pre[2] = ["s_waitcnt lgkmcnt(0)\n" + s.stamp_s("m", "X%da" % j) + "\ns_barrier\n" + s.stamp_s("m", "X%d" % j)]
                for q, g_ in enumerate((2, 2, 3, 3, 4, 5, 6, 7)): fill.setdefault(g_, []).append(nxt[q])
                lp = (2, 5, 7) if j < 3 and sum(o["hs"][:j + 1]) < 4 * j + 12 else (0, 5, 7)
            elif nxt:
                for q in range(8): fill[q] = [nxt[q]]
                pre[4] = ["s_waitcnt lgkmcnt(4)"]
                lp = (1, 5, 6)
            else:
                pre[4] = ["s_waitcnt lgkmcnt(0)"]
            if stp == ysp:
                fill.setdefault(2 if not bar else 1, []).append("buffer_store_dwordx2 v[2:3], v28, %s, s%d offen sc1" % (SR(rWS), sFY))
                yf = True
            else: yf = False
            if stp == o["xld"]:
                fill.setdefault(0, []).insert(0, "buffer_load_dwordx4 %s, v46, %s, s%d offen" % (R(XR_, 4), SR(rC), sOB)); vm.add("x")
            if stp == o["xar"]:
                assert o["xld"] < 0 or vm.n("x") >= vm.n("h%d" % stp); xa = s.xarith(XR_)
            if stp >= o["xar"]:
                for g_ in (2, 3, 4, 7):
                    if xa: fill.setdefault(g_, []).append(xa.pop(0))
            if stp + dp < 28:
                l = hld(stp + dp)
                for q, x in enumerate(l): fill.setdefault(lp[q], []).append(x)
                vm.add("h%d" % (stp + dp))
                if yf: vm.add("fy")
                vm.add("h%d" % (stp + dp))
            s.weave(ms, fill, pre)
        assert not xa
        s.stamp("m", "g2_done")
        for i in range(4):
            for tj in range(2):
                a = DA + 4 * (2 * i + tj)
                p = WF + 2 * (2 * i + tj)
                for u in range(2):
                    A("v_cvt_pk_bf16_f32 v%d, v%d, v%d" % (p + u, a + 2 * u, a + 2 * u + 1))
                A("ds_write_b64 v%d, %s offset:%d" % (40 + i, R(p, 2), tj * 2048))
        if o["inl"]: s.tail(False)
        else: A("s_branch L_tail")

    def gemm2_k(s, vm):
        A = s.A
        o = s.o
        CA, HP, DA, WF, HR = 64, 48, 64, 128, 160
        dq, nf = o["kq"], o["kf"]
        NL = dq + 2
        assert HR + 4 * NL <= XF and dq <= 16 and not o["early"]
        bars = [int(x[0]) for x in o["dord"].split("|")[1:]]
        assert bars[-1] >= 3
        def wrd(stp):
            j, ks = stp >> 1, stp & 1
            hi = j in (0, 3, 4)
            off = (32768 if j in (2, 3, 6) else 0) + ks * 4096
            return ["ds_read_b64_tr_b16 %s, v%d offset:%d" % (R(WF + 16 * (stp & 1) + 4 * i + 2 * hh, 2), (36 if hi else 32) + i, off + hh * 2048) for i in range(4) for hh in range(2)]
        def hld(q):
            stp, t = q >> 2, q & 3
            r = "buffer_load_dwordx4 %s, v%d, %s, s%d offen offset:%d %s" % (R(HR + 4 * (q % NL), 4), 26 + (t >> 1), SR(rWS), sHB, (stp & 1) * 2048 + (t & 1) * 1024, o["hsc"])
            if "c" in o["dbg"] and q >= dq: r = "s_nop 0"
            vm.add("h%d" % q)
            u = ""
            if q & 7 == 7 and q < 55 and "a" not in o["dbg"]:
                u = "s_cmp_eq_u32 s%d, %d\ns_cselect_b32 s%d, %d, s%d\ns_add_u32 s%d, s%d, s%d" % (sROT, 6 - (q >> 3), sT0, -6 * 16384, sROT + 1, sHB, sHB, sT0)
            return r, u
        A("ds_read_b64 %s, v47" % R(MS, 2))
        for e in range(4): A("ds_read_b128 %s, v8 offset:%d" % (R(CA + 16 + 4 * e, 4), 1024 * e))
        for q in range(nf):
            for x in hld(q): A(x)
        for pp in range(2):
            A("s_waitcnt lgkmcnt(%d)" % (8 if pp else 2))
            for i in range(4):
                a = CA + 8 * pp + 2 * i
                A("v_pk_add_f32 %s, %s, %s" % (R(a, 2), R(a, 2), R(a + 16, 2)))
            for i in range(4):
                a = CA + 8 * pp + 2 * i
                A("v_cvt_pk_bf16_f32 v%d, v%d, v%d" % (HP + 4 * pp + i, a, a + 1))
            A("buffer_store_dwordx4 %s, v10, %s, s%d offen sc1" % (R(HP + 4 * pp, 4), SR(rWS), sY1 if pp else sY0)); vm.add("y")
            if pp == 0:
                for x in wrd(0): A(x)
        s.stamp("m", "y_stored")
        for q in range(nf, dq):
            for x in hld(q): A(x)
        xa = []; ko = o["ko"]
        def out(i, t):
            a = DA + 4 * (4 * t + i); p = WF + 2 * i + 8 * (t & 1)
            return ["v_cvt_pk_bf16_f32 v%d, v%d, v%d" % (p + u, a + 2 * u, a + 2 * u + 1) for u in range(2)] + ["ds_write_b64 v%d, %s offset:%d" % (40 + i, R(p, 2), t * 2048)]
        for stp in range(14):
            bar = stp & 1 and (stp >> 1) in bars
            ms = []; pre = {}; fill = {}
            nxt = wrd(stp + 1) if stp < 13 else []
            for x, g_ in zip(nxt, o["krb" if bar else "kr"]): fill.setdefault(int(g_, 16), []).append(x)
            for t in range(4):
                q = 4 * stp + t
                for i in range(4):
                    a = DA + 4 * (4 * t + i)
                    ms.append("v_mfma_f32_16x16x32_bf16 %s, %s, %s, %s" % (R(a, 4), R(WF + 16 * (stp & 1) + 4 * i, 4), R(HR + 4 * (q % NL), 4), "0" if stp == 0 else R(a, 4)))
                pre[4 * t] = ["s_waitcnt vmcnt(%d)%s" % (vm.n("h%d" % q), " lgkmcnt(0)" if t == 0 else "")]
                if q == 0: pre[0].append(s.stamp_s("m", "h0"))
                if q == nf:
                    fill.setdefault(4 * t, []).insert(0, "buffer_store_dwordx2 v[2:3], v28, %s, s%d offen sc1" % (SR(rWS), sFY)); vm.add("fy")
                if q == 4 * o["kx"][0]:
                    fill.setdefault(4 * t, []).insert(0, "buffer_load_dwordx4 %s, v46, %s, s%d offen" % (R(XR_, 4), SR(rC), sOB)); vm.add("x")
                if q == 4 * o["kx"][1]:
                    assert vm.n("x") >= vm.n("h%d" % q); xa = s.xarith(XR_)
                if q + dq < 56:
                    r, u = hld(q + dq)
                    fill.setdefault(4 * t + o["kl"], []).append(r)
                    fill.setdefault(4 * t + 3, []).append(u)
            for g_ in (11, 12, 14, 15, 15):
                if xa: fill.setdefault(g_, []).append(xa.pop(0))
            if bar: pre.setdefault(2, []).append(s.stamp_s("m", "X%da" % (stp >> 1)) + "\ns_barrier\n" + s.stamp_s("m", "X%d" % (stp >> 1)))
            if stp == 13:
                fill.setdefault(ko - 1, []).append("s_nop %d" % max(0, 7 - ko))
                for k in range(16 - ko): fill.setdefault(k + ko, []).extend(out(k & 3, k >> 2))
            s.weave(ms, fill, pre)
        assert not xa
        s.stamp("m", "g2_done")
        for k in range(16 - ko, 16):
            for x in out(k & 3, k >> 2): A(x)
        s.tail(False)

    def xarith(s, b):
        r = ["v_mul_f32 v%d, v%d, v%d" % (MS, MS, MS + 1)]
        for d in range(4): r += ["v_lshlrev_b32 v%d, 16, v%d" % (XF + 2 * d, b + d), "v_and_b32 v%d, 0xffff0000, v%d" % (XF + 2 * d + 1, b + d)]
        for d in range(8): r.append("v_fma_f32 v%d, v%d, v%d, -v%d" % (XN + d, XF + d, MS + 1, MS))
        return r

    def cA(s, st, J): return (128 + 4 * J) if st == 0 else (192 + 4 * J)
    def cB(s, st, m): return (160 + 4 * m) if st == 0 else (96 + 4 * m)

    def conv_addr(s):
        A = s.A
        A("v_and_b32 v27, 3, v20\nv_sub_u32 v27, 3, v27\nv_mul_u32_u24 v27, 4160, v27")
        A("v_lshrrev_b32 v4, 2, v20\nv_lshl_add_u32 v4, v4, 3, v27\nv_lshl_add_u32 v4, v9, 4, v4")
        A("s_lshr_b32 s%d, s%d, 1\ns_and_b32 s%d, s%d, 1\n" % (sT0, sW4, sT1, sW4) +
          "s_mul_i32 s%d, s%d, 16640\ns_lshl_b32 s%d, s%d, 8\ns_add_u32 s%d, s%d, s%d\ns_add_u32 s%d, s%d, %d\n" % (sT2, sT0, sT3, sT1, sT2, sT2, sT3, sT2, sT2, HC + 8) +
          "v_add_u32 v4, s%d, v4" % sT2)
        A("s_mul_i32 s%d, s%d, 4608\ns_add_u32 s%d, s%d, s%d\ns_add_u32 s%d, s%d, %d\n" % (sT2, sT0, sT3, sT3, sT2, sT3, sT3, RB + 4064 - 3584) +
          "v_lshlrev_b32 v27, 5, v20\nv_lshlrev_b32 v5, 4, v9")
        A("v_sub_u32 v5, v5, v27\nv_add_u32 v5, s%d, v5" % sT3)
        A("s_lshl_b32 s%d, s%d, 11\ns_sub_u32 s%d, s%d, s%d\ns_add_u32 s%d, s%d, %d\n" % (sT3, sT1, sT2, sT2, sT3, sT2, sT2, RB + 4088 - 1536) +
          "v_lshl_add_u32 v6, v9, 3, v27\nv_sub_u32 v6, s%d, v6" % sT2)
        A("s_lshl_b32 s%d, s%d, 12\ns_add_u32 s%d, s%d, %d\nv_lshl_add_u32 v7, v1, 4, s%d\nv_xor_b32 v8, 0x1000, v7" % (sT2, sW4, sT2, sT2, RED, sT2))
        A("v_lshrrev_b32 v10, 3, v20\nv_lshl_add_u32 v10, v9, 1, v10")
        A("v_lshlrev_b32 v10, 16, v10\nv_and_b32 v27, 7, v20")
        A("v_lshl_add_u32 v10, v27, 4, v10")

    def conv_reads(s, jj, st):
        def a(J, h): return "ds_read_b64 %s, v4 offset:%d" % (R(s.cA(st, J) + 2 * h, 2), 512 * J + 64 * jj + 8 * h)
        def b(m): return "ds_read_b128 %s, v5 offset:%d" % (R(s.cB(st, m), 4), 512 * (7 - m) + 64 * jj)
        o = [a(0, 0), a(0, 1)] + [b(m) for m in range(8)]
        for J in range(1, 8): o += [a(J, 0), a(J, 1)]
        return o

    def d_addr(s):
        A = s.A
        A("s_and_b32 s%d, s%d, 1\ns_lshr_b32 s%d, s%d, 1" % (sT1, sW4, sT0, sW4))
        A("v_bfe_u32 v27, v1, 2, 2\nv_lshl_add_u32 v30, v9, 2, v27")
        A("v_bfe_u32 v27, v30, 1, 2\nv_lshlrev_b32 v30, 7, v30")
        A("v_lshl_add_u32 v27, v27, 5, v30\nv_and_b32 v30, 3, v1")
        ksp = s.o["ksp"]
        A("s_lshl_b32 s%d, s%d, %d\nv_lshl_add_u32 v27, v30, 3, v27\nv_add_u32 v32, s%d, v27" % (sT2, sW4 if ksp else sT0, 13 if ksp else 14, sT2))
        A("v_xor_b32 v33, 32, v32\nv_xor_b32 v34, 64, v32\nv_xor_b32 v35, 0x60, v32")
        for i in range(4): A("v_add_u32 v%d, 0x10000, v%d" % (36 + i, 32 + i))
        A("v_lshrrev_b32 v40, 1, v9\nv_and_b32 v41, 7, v20\nv_xor_b32 v40, v40, v41")
        A("v_and_b32 v41, 1, v9\nv_lshlrev_b32 v41, 3, v41")
        A("v_lshl_add_u32 v40, v40, 4, v41\nv_lshl_add_u32 v40, v20, 7, v40")
        A("s_lshl_b32 s%d, s%d, %d\ns_add_u32 s%d, s%d, %d\nv_add_u32 v40, s%d, v40\nv_xor_b32 v41, 32, v40" % (sT2, sW4, 12 + ksp, sT2, sT2, PART if ksp else RED, sT2))
        A("v_xor_b32 v42, 64, v40\nv_xor_b32 v43, 0x60, v40")
        if "f" in s.o["dbg"]: A("s_and_b32 s%d, s%d, 1" % (sT0, sC))
        A("s_lshl_b32 s%d, s%d, 1\ns_add_u32 s%d, s%d, s%d\ns_mul_i32 s%d, s%d, %d\ns_add_u32 s%d, s%d, s%d" % (sT2, sM2, sT2, sT2, sT0, sT2, sT2, 14 << ksp, sT2, sT2, sT1))
        s.rot(sROT, sT3)
        A("s_movk_i32 s%d, 0x%x" % (sROT + 1, 0x4000 if ksp else 0x3000))
        A("s_lshl_b32 s%d, s%d, %d\ns_add_u32 s%d, s%d, s%d" % (sT3, sROT, 1 + ksp, sT2, sT2, sT3))
        A("s_lshl_b32 s%d, s%d, %d\ns_add_u32 s%d, s%d, 0x%x" % (sHB, sT2, 13 - ksp, sHB, sHB, WS_H))
        if "f" in s.o["dbg"]: A("s_lshr_b32 s%d, s%d, 1" % (sT0, sW4))
        A("s_lshl_b32 s%d, s%d, 1\ns_add_u32 s%d, s%d, s%d\ns_lshl_b32 s%d, s%d, 9\ns_add_u32 s%d, s%d, s%d" % (sT2, sSLOT, sT2, sT2, sT0, sFY, sT1, sFY, sFY, sT2))
        s.flagoff(sFY, WS_FY)
        A("s_lshl_b32 s%d, s%d, 7\ns_lshl_b32 s%d, s%d, 20\ns_add_u32 s%d, s%d, s%d\ns_add_u32 s%d, s%d, 0x%x\ns_add_u32 s%d, s%d, 0x80000" % (sT2, sT2, sT3, sT1, sT2, sT2, sT3, sY0, sT2, WS_Y, sY1, sY0))

    def tail_addr(s):
        A = s.A
        A("s_and_b32 s%d, s%d, 1\ns_lshl_b32 s%d, s%d, 2\nv_or_b32 v44, s%d, v9\nv_xor_b32 v44, v44, v1" % (sT0, sW8, sT0, sT0, sT0))
        A("s_lshl_b32 s%d, s%d, 10\ns_add_u32 s%d, s%d, %d\nv_lshl_add_u32 v44, v44, 4, s%d" % (sT0, sW8, sT1, sT0, XT, sT1))
        A("v_lshrrev_b32 v45, 3, v1\nv_and_b32 v46, 7, v1")
        A("v_xor_b32 v47, v45, v46\nv_lshlrev_b32 v45, 7, v45")
        A("s_add_u32 s%d, s%d, %d\nv_lshl_add_u32 v45, v47, 4, v45\nv_add_u32 v45, s%d, v45" % (sT1, sT0, PART if s.o["ksp"] else RED, sT1))
        A("v_lshrrev_b32 v47, 5, v1\nv_lshlrev_b32 v47, 18, v47")
        A("v_lshl_add_u32 v46, v46, 4, v47\nv_bfe_u32 v47, v1, 3, 2")
        A("v_lshl_add_u32 v46, v47, 10, v46\n" + s.tokbase(sOB, sM2, sT1))
        A("s_lshl_b32 s%d, s%d, 4\ns_add_u32 s%d, s%d, s%d\ns_lshl_b32 s%d, s%d, 10\ns_lshl_b32 s%d, s%d, 7\ns_add_u32 s%d, s%d, s%d" % (sT1, sW8, sOB, sOB, sT1, sOB, sOB, sT1, sN2, sOB, sOB, sT1))
        A("s_lshl_b32 s%d, s%d, 6\ns_add_u32 s%d, s%d, %d\nv_and_b32 v47, 0x38, v1\nv_add_u32 v47, s%d, v47" % (sT1, sW8, sT1, sT1, STL, sT1))
        A("s_lshl_b32 s%d, s%d, 9\ns_add_u32 s%d, s%d, 0x%x" % (sST, sM2, sST, sST, WS_ST))

    def tail(s, lab=True):
        A = s.A
        if lab: A("L_tail:")
        A("s_waitcnt vmcnt(0) lgkmcnt(0)")
        if s.o["stamps"]:
            if lab: s.nst["m"].append("DEa"); s.nst["h"].append("DEa")
            A("s_memrealtime s[%d:%d]\ns_waitcnt lgkmcnt(0)\nv_writelane_b32 v255, s%d, 62" % (sTS, sTS + 1, sTS))
        A("s_barrier")
        npart = 4 if s.o["ksp"] else 2
        A("ds_read_b128 v[64:67], v44")
        for t in range(npart): A("ds_read_b128 %s, v45 offset:%d" % (R(104 + 4 * t, 4), 8192 * t))
        if s.o["tdot"]: A("s_movk_i32 s%d, 0x3f80\ns_mov_b32 s%d, 0x3f800000" % (sT0, sT1))
        A("s_waitcnt lgkmcnt(%d)" % npart)
        for d in range(4): A("v_lshlrev_b32 v%d, 16, v%d\nv_and_b32 v%d, 0xffff0000, v%d" % (80 + 2 * d, 64 + d, 81 + 2 * d, 64 + d))
        for d in range(4): A("v_pk_fma_f32 %s, %s, %s, %s" % (R(80 + 2 * d, 2), R(80 + 2 * d, 2), R(XN + 2 * d, 2), R(XF + 2 * d, 2)))
        for t in range(npart):
            A("s_waitcnt lgkmcnt(%d)" % (npart - 1 - t))
            b = 96 if t else 88
            for d in range(4):
                p = 104 + 4 * t + d
                if s.o["tdot"] and t: A("v_dot2_f32_bf16 v%d, v%d, s%d, v%d\nv_dot2_f32_bf16 v%d, v%d, s%d, v%d" % (88 + 2 * d, p, sT0, 88 + 2 * d, 89 + 2 * d, p, sT1, 89 + 2 * d))
                else: A("v_lshlrev_b32 v%d, 16, v%d\nv_and_b32 v%d, 0xffff0000, v%d" % (b + 2 * d, p, b + 2 * d + 1, p))
            if t and not s.o["tdot"]:
                for d in range(4): A("v_pk_add_f32 %s, %s, %s" % (R(88 + 2 * d, 2), R(88 + 2 * d, 2), R(96 + 2 * d, 2)))
        for d in range(4): A("v_pk_fma_f32 %s, %s, %s, %s op_sel:[0,1,0] op_sel_hi:[1,1,1]" % (R(80 + 2 * d, 2), R(88 + 2 * d, 2), R(MS, 2), R(80 + 2 * d, 2)))
        for d in range(4): A("v_cvt_pk_bf16_f32 v%d, v%d, v%d" % (64 + d, 80 + 2 * d, 81 + 2 * d))
        A("buffer_store_dwordx4 v[64:67], v46, %s, s%d offen %s" % (SR(rOUT), sOB, s.o["outsc"]))
        if s.o["stamps"]:
            if lab: s.nst["m"].append("end"); s.nst["h"].append("end")
            A("s_memrealtime s[%d:%d]\ns_waitcnt lgkmcnt(0)\nv_writelane_b32 v255, s%d, 63" % (sTS, sTS + 1, sTS))
            A("s_memtime s[%d:%d]\ns_waitcnt lgkmcnt(0)\nv_writelane_b32 v255, s%d, 61" % (sTS, sTS + 1, sTS))
        s.stamp_out()
        A("s_endpgm")

    def spare_m(s):
        A = s.A
        o = s.o
        A("L_spare_m:")
        A(s.aflag())
        A("s_setprio 0")
        s.srd(rA, sH, 2 << 20); s.srd(rB, sW2, 1792 * 1024)
        A("v_lshlrev_b32 v128, 7, v1\nv_lshrrev_b32 v129, 2, v1\nv_and_b32 v130, 3, v1\nv_lshlrev_b32 v129, 10, v129\nv_lshl_add_u32 v129, v130, 7, v129")
        st = {}
        def item(ch):
            if ch == "H":
                A("s_and_b32 s%d, s%d, 3\ns_lshl_b32 s%d, s%d, 2\ns_add_u32 s%d, s%d, s%d\ns_lshl_b32 s%d, s%d, 2\ns_add_u32 s%d, s%d, s%d" % (sT0, sIDX, sT1, sC, sT0, sT0, sT1, sT0, sT0, sT0, sT0, sW4))
                A("s_lshl_b32 s%d, s%d, 14\ns_add_u32 s%d, s%d, 8192" % (sT0, sT0, sT1, sT0))
                A("buffer_load_dword v132, v128, %s, s%d offen %s\nbuffer_load_dword v133, v128, %s, s%d offen %s" % (SR(rA), sT0, o["pH"], SR(rA), sT1, o["pH"]))
            elif ch in "Uab":
                A("s_and_b32 s%d, s%d, 3\ns_and_b32 s%d, s%d, 6\ns_lshl_b32 s%d, s%d, 1\ns_add_u32 s%d, s%d, s%d\ns_lshl_b32 s%d, s%d, 2\ns_add_u32 s%d, s%d, s%d" % (sT0, sIDX, sT1, sC, sT1, sT1, sT0, sT0, sT1, sT0, sT0, sT0, sT0, sW4))
                A("s_mul_i32 s%d, s%d, 56\ns_and_b32 s%d, s%d, 1\ns_add_u32 s%d, s%d, s%d\ns_lshl_b32 s%d, s%d, 9\ns_add_u32 s%d, s%d, 12288" % (sT0, sT0, sT1, sC, sT0, sT0, sT1, sT0, sT0, sT1, sT0))
                if ch in "Ua": A("buffer_load_dword v134, v129, %s, s%d offen %s" % (SR(rB), sT0, o["pU"]))
                if ch in "Ub": A("buffer_load_dword v135, v129, %s, s%d offen %s" % (SR(rB), sT1, o["pU"]))
            elif ch == "V" or ch.isdigit():
                A("s_and_b32 s%d, s%d, 1\ns_lshl_b32 s%d, s%d, 2\ns_add_u32 s%d, s%d, s%d\ns_lshl_b32 s%d, s%d, 14" % (sT0, sIDX, sT0, sT0, sT0, sT0, sW4, sT0, sT0))
                A("s_bfe_u32 s%d, s%d, 0x10001\ns_mul_i32 s%d, s%d, %d\ns_add_u32 s%d, s%d, s%d" % (sT1, sIDX, sT1, sT1, 896 * 1024, sT0, sT0, sT1))
                A("s_and_b32 s%d, s%d, 1\ns_lshl_b32 s%d, s%d, 9\ns_add_u32 s%d, s%d, s%d" % (sT1, sC, sT1, sT1, sT0, sT0, sT1))
                for j in (range(7) if ch == "V" else [int(ch)]):
                    A("s_add_u32 s%d, s%d, %d\nbuffer_load_dword v%d, v129, %s, s%d offen %s" % (sT1, sT0, j * 131072, 136 + j, SR(rB), sT1, o["pV"]))
            elif ch == "W":
                j = st.get("W", 0); st["W"] = j + 1
                if j == 0:
                    A("v_lshrrev_b32 v131, 3, v1\nv_and_b32 v130, 7, v1\nv_lshlrev_b32 v137, 1, v9\nv_xor_b32 v130, v130, v137\nv_lshlrev_b32 v131, 10, v131\nv_lshl_add_u32 v131, v130, 4, v131")
                    A("s_lshl_b32 s%d, s%d, 7\ns_lshl_b32 s%d, s%d, 15\ns_add_u32 s90, s%d, s%d\ns_lshl_b32 s%d, s%d, 17\ns_add_u32 s90, s90, s%d\ns_lshl_b32 s91, s%d, 12" % (sT0, sN2, sT1, sW4, sT0, sT1, sT0, sROT, sT0, sW4))
                A("s_cmp_ge_u32 s%d, %d\ns_cselect_b32 s%d, %d, 0\ns_sub_u32 s%d, s90, s%d" % (sROT, 7 - j, sT1, 7 * 131072, sT1, sT1))
                for kh in range(2):
                    A("s_add_u32 m0, s91, %d" % (((4, 0, 2)[j] + kh) * 16384))
                    for q in range(4):
                        A("s_add_u32 s%d, s%d, %d" % (sT0, sT1, q * (8192 - 1024) + (7 * kh + j) * 131072))
                        A("buffer_load_dwordx4 v131, %s, s%d offen offset:%d lds" % (SR(rB), sT0, q * 1024))
            elif ch == "w": A("s_waitcnt vmcnt(0)")
        a, b = o["sord"].split("|")
        for ch in a: item(ch)
        s.stamp("m", "S1a")
        A("s_waitcnt lgkmcnt(0)\ns_barrier")
        for ch in b: item(ch)
        s.stamp("m", "S2a")
        l0, l1, l2 = s.lab("tl"), s.lab("td"), s.lab("te")
        ld = "buffer_load_dwordx4 v[144:147], v143, %s, s%d offen sc1\nbuffer_load_dwordx4 v[148:151], v143, %s, s%d offen offset:16 sc1" % (SR(rWS), sT1, SR(rWS), sT1)
        assert o["fsp"] == 8
        A("s_xor_b32 s%d, s%d, 3\ns_or_b32 s%d, s2, s%d\ns_cbranch_scc1 %s" % (sPH, sW4, sPH, sPH, l2))
        A("v_lshrrev_b32 v143, 3, v1\nv_and_b32 v144, 7, v1\nv_lshlrev_b32 v143, 10, v143\nv_lshl_add_u32 v143, v144, 5, v143\ns_mov_b32 s%d, 0x%x\ns_mov_b32 s%d, 0" % (sT1, WS_FA, sT3))
        A(ld)
        A("%s:" % l2)
        A("s_barrier")
        if o["prio"]: A("s_setprio %d" % o["prio"])
        A("s_waitcnt vmcnt(0)")
        l2 = s.lab("te")
        A("s_cmp_lg_u32 s%d, 0\ns_cbranch_scc1 %s\n%s:" % (sPH, l2, l0))
        A("v_cmp_ne_u64 vcc, v[144:145], v[2:3]\nv_cmp_ne_u64 s[90:91], v[146:147], v[2:3]\ns_or_b64 vcc, vcc, s[90:91]")
        A("v_cmp_ne_u64 s[90:91], v[148:149], v[2:3]\ns_or_b64 vcc, vcc, s[90:91]\nv_cmp_ne_u64 s[90:91], v[150:151], v[2:3]\ns_or_b64 vcc, vcc, s[90:91]")
        A("s_cbranch_scc0 %s\ns_add_u32 s%d, s%d, 1\ns_cmp_gt_u32 s%d, 0x%x\ns_cbranch_scc1 %s" % (l1, sT3, sT3, sT3, o["spin"], l1))
        A(ld + "\ns_waitcnt vmcnt(0)\ns_branch %s\n%s:" % (l0, l1))
        A("buffer_store_dwordx2 v[2:3], v28, %s, s%d offen sc1\n%s:" % (SR(rWS), sW2B, l2))
        cr = s.conv_reads(0, 0)
        for x in cr:
            if "v4 " in x and not s.alate: A(x)
        A("ds_read_b32 v27, v29 offset:8")
        if o["rchk"] == 8: A("s_branch L_m_rchk")
        else:
            s.rcheck()
            for x in s.crb: A(x)
            A("s_branch L_m_conv")

    def spare_h(s):
        A = s.A
        o = s.o
        XR, SUM = 128, 100
        vm = VM(s)
        A("L_spare_h0:")
        A("v_lshrrev_b32 v112, 5, v1\nv_bfe_u32 v113, v1, 3, 2\nv_lshl_add_u32 v112, v112, 8, v113\nv_and_b32 v114, 7, v1")
        A("v_lshlrev_b32 v112, 10, v112\nv_lshl_add_u32 v112, v114, 4, v112")
        A("s_and_b32 s%d, s%d, 3\ns_lshl_b32 s%d, s%d, 2\ns_add_u32 s%d, s%d, s%d" % (sT0, sIDX, sMI, sC, sMI, sMI, sT0))
        A(s.tokbase(sT0, sMI, sT1))
        A("s_lshl_b32 s%d, s%d, 5\ns_add_u32 s%d, s%d, s%d\ns_lshl_b32 s%d, s%d, 10\ns_add_u32 s%d, s%d, 16384" % (sT1, sW4, sT0, sT0, sT1, sT0, sT0, sT1, sT0))
        H = s.hitems(vm)
        A("s_mov_b32 s0, s%d\ns_mov_b32 s1, s%d" % (sT0, sT1))
        for b in range(2):
            for j in range(8):
                A("buffer_load_dwordx4 %s, v112, %s, s%d offen offset:%d %s" % (R(XR + 32 * b + 4 * j, 4), SR(rA), b, 128 * j, o["nts"])); vm.add("x%d" % (8 * b + j))
                if 8 * b + j == 3:
                    H["S"](); H["D"]()
                    if "Z" in o["ord"]: H["Z"]()
                if 8 * b + j == o["sba"] and "r" not in o["ord"]: H["A"]()
        A("s_setprio 1")
        A("s_waitcnt lgkmcnt(0)\ns_barrier")
        s.stamp("h", "B0")
        if "r" in o["ord"]: H["r"]()
        H["h"]()
        for i in range(8): A("v_mov_b32 v%d, 0" % (SUM + i))
        A("s_mov_b32 s%d, 0x3f803f80" % sT0)
        for b in range(2):
            for j in range(8):
                vm.wait("x%d" % (8 * b + j))
                for d in range(4):
                    x = XR + 32 * b + 4 * j + d
                    A("v_dot2c_f32_bf16 v%d, s%d, v%d" % (SUM + 4 * b + (d & 1), sT0, x))
                    A("v_dot2c_f32_bf16 v%d, v%d, v%d" % (SUM + 4 * b + 2 + (d & 1), x, x))
        for b in range(2):
            A("v_add_f32 v%d, v%d, v%d\nv_add_f32 v%d, v%d, v%d" % (SUM + 2 * b, SUM + 4 * b, SUM + 4 * b + 1, SUM + 2 * b + 1, SUM + 4 * b + 2, SUM + 4 * b + 3))
        A("s_nop 0")
        for ctl in ("quad_perm:[1,0,3,2]", "quad_perm:[2,3,0,1]", "row_half_mirror"):
            for i in range(4): A("v_add_f32_dpp v%d, v%d, v%d %s row_mask:0xf bank_mask:0xf" % (SUM + i, SUM + i, SUM + i, ctl))
        A("v_cmp_eq_u32 vcc, 1, v114\nv_lshrrev_b32 v113, 3, v1\nv_lshl_add_u32 v113, v114, 3, v113")
        SQ = SUM + 1
        A("v_cndmask_b32 v%d, v%d, v%d, vcc\nv_cndmask_b32 v%d, v%d, v%d, vcc" % (SUM, SUM, SUM + 2, SQ, SQ, SUM + 3))
        A("v_mul_f32 v%d, 0x3b000000, v%d\nv_mul_f32 v%d, 0x3b000000, v%d" % (SUM, SUM, SQ, SQ))
        A("v_fma_f32 v%d, -v%d, v%d, v%d\nv_max_f32 v%d, 0, v%d" % (SQ, SUM, SUM, SQ, SQ, SQ))
        A("v_cvt_pk_bf16_f32 v%d, v%d, v%d" % (SUM + 2, SUM, SQ))
        A("v_lshlrev_b32 v%d, 16, v%d\nv_and_b32 v%d, 0xffff0000, v%d" % (SUM, SUM + 2, SQ, SUM + 2))
        A("v_add_f32 v%d, 0x3727c5ac, v%d" % (SQ, SQ))
        A("v_cvt_pk_bf16_f32 v%d, v%d, v%d\nv_lshlrev_b32 v%d, 16, v%d\nv_sqrt_f32 v%d, v%d" % (SQ, SQ, SQ, SQ, SQ, SQ, SQ))
        A("v_cmp_gt_u32 vcc, 2, v114\nv_lshlrev_b32 v113, 3, v113\nv_mov_b32 v115, 0x%x" % OOB)
        A("v_cvt_pk_bf16_f32 v%d, v%d, v%d\nv_lshlrev_b32 v%d, 16, v%d\nv_rcp_f32 v%d, v%d" % (SQ, SQ, SQ, SQ, SQ, SQ, SQ))
        A("v_cndmask_b32 v113, v115, v113, vcc")
        A("s_lshl_b32 s%d, s%d, 2\ns_add_u32 s%d, s%d, s%d\ns_lshl_b32 s%d, s%d, 7\ns_add_u32 s%d, s%d, 0x%x" % (sT0, sMI, sT0, sT0, sW4, sT0, sT0, sT0, sT0, WS_ST))
        A("buffer_store_dwordx2 %s, v113, %s, s%d offen sc1" % (R(SUM, 2), SR(rWS), sT0)); vm.add("st")
        A("s_lshl_b32 s%d, s%d, 3\ns_add_u32 s%d, s%d, s%d" % (sMI, sMI, sMI, sMI, sW4))
        s.flagoff(sMI, WS_FS)
        vm.wait("H", extra=" lgkmcnt(0)")
        s.stamp("h", "S1a")
        A("s_barrier")
        H["N"]()
        if "r" in o["ord"]: H["f"]()
        own = "P" in o["sh"]
        if own: H["nx"]["w"] = 2 * o["sord"].count("W")
        else: assert "W" not in o["sord"]
        assert sorted(re.sub("[pwvxusXtmP]", "", o["sh"])) == sorted("zcdFR|n") and re.search("R.*n", o["sh"]) and re.search("z.*n", o["sh"]) and re.search("d.*n", o["sh"])
        if "X" in s.prejoin and "X" not in o["sh"]: H["X"]()
        for ch in o["sh"]:
            if ch == "F":
                vm.wait("st")
                A("buffer_store_dwordx2 v[28:29], v27, %s, s%d offen sc1" % (SR(rWS), sMI)); vm.add("fs")
                s.stamp("h", "sflag")
            elif ch == "|": A("s_waitcnt lgkmcnt(0)"); s.stamp("h", "S2a"); A("s_barrier\ns_setprio 0")
            else: H[ch]()
        if own:
            assert H["nx"] == {"w": 6, "v": 6 + 2 * o["nreg"]} and re.search("F.*t.*m.*P", o["sh"]) and ("X" in o["sh"] or "X" in s.prejoin or "X" in o["dord"])
            A("s_waitcnt vmcnt(0)\ns_branch L_h_join2")
            return
        for ch in s.prejoin:
            if ch in "wvxu": H[ch]()
        a = [t for t in s.vmjoin if t[0] == "w"]
        assert [t for t in vm.q if t[0] == "w"] == a and (not a or vm.q[-len(a):] == a)
        for t in set(a):
            i = max(k for k, x in enumerate(s.vmjoin) if x == t); j = max(k for k, x in enumerate(vm.q) if x == t)
            if len(s.vmjoin) - i > len(vm.q) - j: A("s_waitcnt vmcnt(0)"); break
        A("s_branch L_h_join")

    def hitems(s, vm):
        A = s.A
        o = s.o
        WREG = 120
        QS = {0: 4, 1: 0, 2: 2, 3: 6, 4: 4, 5: 0, 6: 2}
        nreg = o["nreg"]
        st_ = {"p": False, "S": False, "h": False}
        def stage(k, stream=(), g0=0):
            slot = int(o["slots"][k])
            a, b, c = 0, 1, 3
            if o["rot"] == 2:
                A("s_add_u32 s%d, s%d, %d\ns_and_b32 s%d, s%d, 7\ns_lshl_b32 s%d, s%d, 7\ns_add_u32 s%d, s%d, s%d" % (b, sCNT, k, b, b, a, b, a, a, sXB))
                A("s_mul_i32 s%d, s%d, %d\ns_add_u32 s%d, s%d, s%d" % (b, b, 64 * 3584, b, b, sWB))
            elif o["rot"] == 1 and o["ro"]:
                if k: A("s_add_u32 s%d, s%d, s24\ns_and_b32 s%d, s%d, 7" % (b, sCNT, b, b))
                A("s_lshl_b32 s%d, s%d, 7\ns_add_u32 s%d, s%d, s%d" % (a, b if k else 24, a, a, sXB))
                A("s_mul_i32 s%d, s%d, %d\ns_add_u32 s%d, s%d, s%d" % (b, b if k else 24, 64 * 3584, b, b, sWB))
            elif k == 0 or not o["rot"]:
                A("s_add_u32 s%d, s%d, %d\ns_add_u32 s%d, s%d, %d" % (a, sXB, 128 * k, b, sWB, 64 * 3584 * k))
            else:
                A("s_lshl_b32 s%d, s%d, 7\ns_add_u32 s%d, s%d, s%d" % (a, sCNT, a, a, sXB))
                A("s_mul_i32 s%d, s%d, %d\ns_add_u32 s%d, s%d, s%d" % (b, sCNT, 64 * 3584, b, b, sWB))
            stream = list(stream)
            need = True
            for j in range(8):
                if need or j == 4: A("s_add_u32 m0, s%d, %d" % (sLB, slot * 32768 + (j >> 2) * 16384)); need = False
                if j < 4:
                    A("s_add_u32 s%d, s%d, %d" % (c, a, j * (16384 - 1024)))
                    A("buffer_load_dwordx4 v%d, %s, s%d offen offset:%d %s lds" % (10 + (j & 1), SR(rA), c, j * 1024, o["ntm"] if str(k) in o["ntx"] else ""))
                else:
                    A("s_add_u32 s%d, s%d, %d" % (c, b, (j - 4) * (4 * 3584 - 1024)))
                    A("buffer_load_dwordx4 v%d, %s, s%d offen offset:%d %s lds" % (12 + ((j - 4) >> 1), SR(rB), c, (j - 4) * 1024, o["ntm"] if str(k) in o["ntw"] else ""))
                vm.add("s%d" % k)
                if j == 0 and 0 < k < 7 and o["rot"] == 1:
                    g, a0 = s.rgrp(k); g1, _ = s.rgrp(k + 1)
                    if g1 != g: A("s_mov_b32 s%d, s%d" % (sCNT, RG[g1]))
                    else: A("s_cmp_eq_u32 s%d, %d\ns_cselect_b32 s%d, %d, s%d\ns_add_u32 s%d, s%d, 1" % (sCNT, a0 + o["rgrp"][g] - 1, sCNT, a0 - 1, sCNT, sCNT, sCNT))
                if g0 <= j < 7:
                    n = -(-len(stream) // (7 - j))
                    for x in stream[:n]:
                        if callable(x): x(); need = True
                        else: A(x)
                    stream = stream[n:]
            assert not stream
        def nonce():
            A("s_add_u32 s%d, s%d, 0x7f4a7c15\ns_add_u32 s%d, s%d, 0x9e3779b9\nv_mov_b32 v28, s%d\nv_mov_b32 v29, s%d" % (sN, sN, sN + 1, sN + 1, sN, sN + 1))
        def rout():
            A("ds_read_b128 v[56:59], v18\nds_read_b128 v[60:63], v18 offset:1024")
            A("s_lshl_b32 s%d, s%d, 2\ns_add_u32 s%d, s%d, s%d\ns_lshl_b32 s%d, s%d, 5\ns_sub_u32 s%d, 31, s%d" % (sT0, sC, sT0, sT0, sW4, sFH, sT0, sT1, sIDX))
            A("s_add_u32 s%d, s%d, s%d\ns_lshl_b32 s%d, s%d, 16\ns_lshl_b32 s%d, s%d, 7\ns_add_u32 s%d, s%d, s%d\ns_add_u32 s%d, s%d, 0x8000" % (sFH, sFH, sT1, sT0, sT0, sT1, sT1, sT0, sT0, sT1, sT1, sT0))
            s.flagoff(sFH, WS_FA)
            A("s_waitcnt lgkmcnt(1)\nbuffer_store_dwordx4 v[56:59], v19, %s, s%d offen sc1" % (SR(rWS), sT0))
            A("s_waitcnt lgkmcnt(0)\nbuffer_store_dwordx4 v[60:63], v19, %s, s%d offen sc1" % (SR(rWS), sT1))
            vm.add("r", 2)
        def flag_a():
            vm.wait("r")
            A("buffer_store_dwordx2 v[28:29], v27, %s, s%d offen sc1" % (SR(rWS), sFH)); vm.add("fa")
            s.stamp("h", "aflag")
        def bar_a():
            s.stamp("h", "BAa")
            A("s_barrier")
        def zero():
            A("v_lshrrev_b32 v3, 5, v1\nv_mul_u32_u24 v3, 4608, v3\nv_and_b32 v4, 31, v1\nv_lshl_add_u32 v3, v4, 4, v3\nv_add_u32 v3, %d, v3" % (RB + 4096))
            A("ds_write_b128 v3, v[52:55]")
        def heads():
            A("v_lshrrev_b32 v3, 1, v20\nv_mul_u32_u24 v3, 4160, v3\nv_and_b32 v4, 1, v1\nv_lshl_add_u32 v3, v4, 4, v3\nv_add_u32 v3, %d, v3" % HC)
            A("ds_write_b128 v3, v[52:55]")
        def h_rows():
            if not st_["S"]:
                s.srd(rH, sH, 2 << 20); A("v_lshlrev_b32 v14, 4, v1"); st_["h"] = True
            A("s_lshl_b32 s%d, s%d, 13\ns_lshl_b32 s%d, s%d, 11\ns_add_u32 s%d, s%d, s%d" % (sT2, sSLOT, sT1, sW4, sT2, sT2, sT1))
            A("s_lshr_b32 s%d, s%d, 1\ns_mul_i32 s%d, s%d, %d\ns_add_u32 s%d, s%d, s%d\ns_add_u32 m0, s%d, %d\ns_nop 0" % (sT0, sW4, sT0, sT0, 16640 - 4096, sT0, sT0, sT1, sT0, HC + 32))
            A("buffer_load_dwordx4 v14, %s, s%d offen %s lds" % (SR(rH), sT2, o["ph"]))
            A("buffer_load_dwordx4 v14, %s, s%d offen offset:1024 %s lds" % (SR(rH), sT2, o["ph"])); vm.add("H", 2)
        def copies(ch):
            b = 64
            A("s_lshl_b32 s%d, s%d, 10\ns_add_u32 s%d, s%d, %d\nv_add_u32 v3, s%d, v14" % (sT0, sW4, sT0, sT0, HC + 24 + ch * 16640, sT0))
            A("s_waitcnt lgkmcnt(0)\nds_read_b64 %s, v3\nds_read_b128 %s, v3 offset:8\ns_waitcnt lgkmcnt(0)" % (R(b, 2), R(b + 2, 4)))
            for j in range(4): A("v_alignbyte_b32 v%d, v%d, v%d, 2" % (b + 6 + j, b + 2 + j, b + 1 + j))
            A("ds_write_b128 v3, %s offset:%d" % (R(b + 6, 4), 4160 + 8))
            for j in range(4): A("v_mov_b32 v%d, v%d" % (b + 10 + j, b + 1 + j))
            A("ds_write_b128 v3, %s offset:%d" % (R(b + 10, 4), 2 * 4160 + 8))
            for j in range(4): A("v_alignbyte_b32 v%d, v%d, v%d, 2" % (b + 14 + j, b + 1 + j, b + j))
            A("ds_write_b128 v3, %s offset:%d" % (R(b + 14, 4), 3 * 4160 + 8))
        def p_a():
            A("s_lshr_b32 s%d, s%d, 3\ns_lshl_b32 s%d, s%d, 2\ns_add_u32 s%d, s%d, s%d\ns_lshl_b32 s%d, s%d, 3" % (sT0, sSLOT, sT0, sT0, sT0, sT0, sW4, sFH, sT0))
            s.flagoff(sFH, WS_FA)
            s.poll_issue(8, sFH)
            st_["p"] = True
        def r_in():
            if not st_["p"]: p_a()
            A("s_lshl_b32 s%d, s%d, 13\ns_lshl_b32 s%d, s%d, 10\ns_add_u32 s%d, s%d, s%d\ns_add_u32 m0, s%d, %d" % (sT0, sSLOT, sT1, sW4, sT0, sT0, sT1, sT1, RB))
            s.poll_check(8, sFH)
            s.stamp("h", "pollA")
            A("buffer_load_dwordx4 v14, %s, s%d offen sc1 lds" % (SR(rWS), sT0))
            A("s_add_u32 m0, s%d, %d\ns_add_u32 s%d, s%d, 4096" % (sT1, RB + 4608, sT0, sT0))
            A("buffer_load_dwordx4 v14, %s, s%d offen sc1 lds" % (SR(rWS), sT0)); vm.add("R", 2)
        def setup():
            st_["S"] = True
            A("s_mov_b32 s%d, 0x%x\ns_load_dwordx2 %s, %s, s%d" % (sT0, WS_NONCE, SR(sN, 2), SR(sWS, 2), sT0))
            s.srd(rC, sW2, 1792 * 1024); s.srd(rWS, sWS, WS_SIZE); s.srd(rOUT, sOUT, 2 << 20)
            if not st_["h"]:
                s.srd(rH, sH, 2 << 20); A("v_lshlrev_b32 v14, 4, v1")
            A("v_mov_b32 v52, 0\nv_mov_b32 v53, 0\nv_mov_b32 v54, 0\nv_mov_b32 v55, 0")
            if "Z" not in o["ord"]: heads()
            A("v_mov_b32 v3, %d\nv_min_u32 v27, 1, v1\nv_lshlrev_b32 v27, 31, v27" % NONL)
            A("v_bfrev_b32 v4, 1\nds_write2_b32 v3, v52, v4 offset0:2 offset1:3")
            A("v_lshrrev_b32 v3, 3, v1")
            if "r" in o["ord"]:
                A("v_xor_b32 v4, v3, v5\nv_lshlrev_b32 v18, 7, v3\nv_lshl_add_u32 v18, v4, 4, v18")
                A("s_lshl_b32 s%d, s%d, 11\ns_add_u32 s%d, s%d, %d\nv_add_u32 v18, s%d, v18\nv_lshlrev_b32 v19, 12, v3\nv_lshl_add_u32 v19, v5, 4, v19" % (sT0, sW4, sT0, sT0, ROUT, sT0))
            A("v_lshlrev_b32 v4, 1, v9\nv_xor_b32 v4, v4, v5\nv_lshlrev_b32 v3, 10, v3\nv_lshl_add_u32 v24, v4, 4, v3")
            A("s_lshl_b32 s%d, s%d, 7\ns_lshl_b32 s%d, s%d, 15\ns_add_u32 s%d, s%d, s%d" % (sT0, sN2, sT1, sW4, sW2B, sT0, sT1))
            s.rot(hROT, sT0)
            A("s_lshl_b32 s%d, s%d, 17\ns_add_u32 s%d, s%d, s%d" % (sT0, hROT, sW2B, sW2B, sT0))
        def notify():
            A("v_mov_b32 v3, %d\nv_mov_b32 v4, 1" % NONL)
            vm.wait("R", extra=" lgkmcnt(0)")
            A("s_mov_b64 exec, 1\nds_add_u32 v3, v4 offset:8\ns_mov_b64 exec, -1")
            s.stamp("h", "rnote")
        def w2half(j, kh):
            dma = not (3 <= j < 3 + nreg)
            t = 7 * kh + j
            if dma: A("s_add_u32 m0, s%d, %d" % (sLB, (QS[j] + kh) * 16384))
            A("s_cmp_ge_u32 s%d, %d\ns_cselect_b32 s%d, %d, 0\ns_sub_u32 s%d, s%d, s%d" % (hROT, 7 - j, sT1, 7 * 131072, sT1, sW2B, sT1))
            for q in range(4):
                if dma:
                    A("s_add_u32 s%d, s%d, %d" % (sT0, sT1, q * (8192 - 1024) + t * 131072))
                    A("buffer_load_dwordx4 v24, %s, s%d offen offset:%d lds" % (SR(rC), sT0, q * 1024))
                else:
                    A("s_add_u32 s%d, s%d, %d" % (sT0, sT1, q * 8192 + t * 131072))
                    A("buffer_load_dwordx4 %s, v24, %s, s%d offen" % (R(WREG + 32 * (j - 3) + 16 * kh + 4 * q, 4), SR(rC), sT0))
                vm.add("w%d_%d" % (j, kh))
        def w2load(j):
            for kh in range(2): w2half(j, kh)
        def w2put(j):
            if "d" in o["dbg"] and j >= 3 + nreg:
                for kh in range(2): vm.add("w%d_%d" % (j, kh), 0); vm.q.insert(0, "w%d_%d" % (j, kh))
                return
            if "b" in o["dbg"] and j < 3 + nreg: return
            if not (3 <= j < 3 + nreg): return w2load(j)
            a = 15 if QS[j] < 4 else 16
            for kh in range(2):
                vm.wait("w%d_%d" % (j, kh))
                for q in range(4):
                    A("ds_write_b128 v%d, %s offset:%d" % (a, R(WREG + 32 * (j - 3) + 16 * kh + 4 * q, 4), ((QS[j] & 3) + kh) * 16384 + q * 1024))
        nx = {"w": 0, "v": 6}
        def nxt(k, n=2):
            for _ in range(n):
                j = nx[k]; nx[k] += 1
                assert j < (6 if k == "w" else 6 + 2 * nreg)
                w2half(j >> 1, j & 1)
        def daddr():
            A("v_add_u32 v15, s%d, v14\nv_add_u32 v16, 0x10000, v15" % sLB)
            s.tail_addr()
            A("s_lshl_b32 s%d, s%d, 5\nv_lshl_add_u32 v3, v9, 3, s%d\nv_lshrrev_b32 v4, 1, v20\nv_lshlrev_b32 v4, 4, v4\nv_xor_b32 v3, v3, v4" % (sT0, sW4, sT0))
            A("v_lshl_add_u32 v3, v20, 7, v3\nv_add_u32 v21, %d, v3" % XT)
            A("v_bfe_u32 v4, v1, 2, 2\nv_lshl_add_u32 v4, v9, 2, v4\nv_bfe_u32 v3, v4, 1, 2\nv_lshlrev_b32 v4, 7, v4\nv_and_b32 v6, 3, v1\nv_lshl_add_u32 v4, v6, 3, v4\nv_lshl_add_u32 v4, v3, 5, v4")
            A("s_lshl_b32 s%d, s%d, 11\ns_add_u32 s%d, s%d, %d\nv_add_u32 v22, s%d, v4" % (sT1, sW4, sT1, sT1, YT, sT1))
            A("v_xor_b32 v40, 32, v22\nv_xor_b32 v41, 64, v22\nv_xor_b32 v42, 0x60, v22")
            A("s_xor_b32 s%d, s%d, 1\ns_min_u32 s%d, s%d, 1\ns_lshl_b32 s%d, s%d, 31\ns_add_u32 s%d, s%d, %d" % (sT0, sW4, sT0, sT0, sT0, sT0, sT0, sT0, STL))
            A("v_lshl_add_u32 v30, v1, 3, s%d\ns_sub_u32 s%d, s%d, %d" % (sT0, sST, sST, STL))
            A("s_lshl_b32 s%d, s%d, 2\ns_add_u32 s%d, s%d, s%d\ns_lshr_b32 s%d, s%d, 4\ns_lshl_b32 s%d, s%d, 5" % (sT0, sN2, sT0, sT0, sW4, sT1, sM2, sT1, sT1))
            A("s_add_u32 s%d, s%d, s%d\ns_lshl_b32 s%d, s%d, 4" % (sT1, sT1, sT0, sFY, sT1))
            s.flagoff(sFY, WS_FY)
            A("s_lshl_b32 s%d, s%d, 11\ns_lshl_b32 s%d, s%d, 16\ns_add_u32 s%d, s%d, s%d\ns_add_u32 s%d, s%d, 0x%x" % (sT0, sT0, sT1, sM2, sT0, sT0, sT1, sY1, sT0, WS_Y))
            A("s_lshl_b32 s%d, s%d, 4\ns_add_u32 s%d, s%d, s%d\ns_lshl_b32 s%d, s%d, 2" % (sPH, sM2, sPH, sPH, hROT, sPH, sPH))
            hs = o["hs"]
            if hs == (12, 16, 0, 0): A("s_mul_i32 s%d, s%d, 6" % (sT0, sW4))
            else: A("s_lshl_b32 s%d, s%d, 3\ns_lshr_b32 s%d, 0x%x, s%d\ns_and_b32 s%d, s%d, 255" % (sT0, sW4, sT0, (hs[0] + hs[1] + hs[2]) << 8 | hs[0] << 16 | (hs[0] + hs[1]) << 24, sT0, sT0, sT0))
            A("s_add_u32 s%d, s%d, s%d" % (sPH, sPH, sT0)); s.flagoff(sPH, WS_FH)
            A("v_lshlrev_b32 v3, 5, v9\nv_xor_b32 v26, v3, v14")
            A("s_lshl_b32 s%d, s%d, 3" % (sHB, sM2)); s.flagoff(sHB, WS_FS)
        def v_touch():
            A("v_lshrrev_b32 v3, 2, v1\nv_and_b32 v4, 3, v1\nv_lshlrev_b32 v3, 10, v3\nv_lshl_add_u32 v3, v4, 7, v3")
            A("s_and_b32 s%d, s%d, 1\ns_lshl_b32 s%d, s%d, 2\ns_add_u32 s%d, s%d, s%d\ns_lshr_b32 s%d, s%d, 2\ns_lshl_b32 s%d, s%d, 3\ns_add_u32 s%d, s%d, s%d\ns_lshl_b32 s%d, s%d, 14" % (sT0, sIDX, sT0, sT0, sT0, sT0, sW4, sT1, sIDX, sT1, sT1, sT0, sT0, sT1, sT0, sT0))
            A("s_bfe_u32 s%d, s%d, 0x10001\ns_mul_i32 s%d, s%d, %d\ns_add_u32 s%d, s%d, s%d" % (sT1, sIDX, sT1, sT1, 896 * 1024, sT0, sT0, sT1))
            A("s_and_b32 s%d, s%d, 1\ns_lshl_b32 s%d, s%d, 9\ns_add_u32 s%d, s%d, s%d" % (sT1, sC, sT1, sT1, sT0, sT0, sT1))
            A("buffer_load_dword v31, v3, %s, s%d offen %s" % (SR(rC), sT0, o["pV"])); vm.add("V")
        def f_addr():
            A("s_lshr_b32 s%d, s%d, 2\ns_lshl_b32 s%d, s%d, 2\ns_add_u32 s%d, s%d, s%d\ns_mul_i32 s%d, s%d, 5\nv_min_u32 v17, 4, v1\nv_add_u32 v17, s%d, v17\nv_min_u32 v17, 127, v17" % (sT0, sIDX, sT0, sT0, sT0, sT0, sW4, sT0, sT0, sT0))
            A("v_and_b32 v3, 1, v17\nv_bfe_u32 v4, v17, 1, 2\nv_lshrrev_b32 v17, 3, v17\nv_lshlrev_b32 v17, 14, v17\nv_lshl_add_u32 v17, v3, 18, v17\nv_lshl_add_u32 v17, v4, 10, v17")
            A("s_lshl_b32 s%d, s%d, 16\ns_sub_u32 s%d, s%d, s%d\nv_add_u32 v17, s%d, v17" % (sT0, sW4, sT0, sXB, sT0, sT0))
            A("s_and_b32 s%d, s%d, 3\ns_lshl_b32 s%d, s%d, 2\ns_add_u32 s%d, s%d, s%d\ns_lshl_b32 s%d, s%d, 2\nv_bfe_u32 v18, v1, 1, 2\nv_add_u32 v18, s%d, v18" % (sT0, sIDX, sT0, sT0, sT0, sT0, sW4, sT0, sT0, sT0))
            A("v_mul_u32_u24 v18, 3584, v18\nv_and_b32 v3, 1, v1\nv_lshl_add_u32 v18, v3, 7, v18\ns_lshl_b32 s%d, s%d, 8\nv_add_u32 v18, s%d, v18" % (sT0, sFI, sT0))
        def f_touch(which="xw"):
            k = st_.get("F", o["f0"]); st_["F"] = k + 1
            assert k < 8 and o["rot"] == 2
            A("s_add_u32 s%d, s%d, %d\ns_and_b32 s%d, s%d, 7\ns_lshl_b32 s%d, s%d, 7\ns_mul_i32 s%d, s%d, %d" % (sT1, sCNT, k, sT1, sT1, sT0, sT1, sT1, sT1, 64 * 3584))
            A("buffer_load_dword v31, v18, %s, s%d offen" % (SR(rB), sT1)); vm.add("F")
            A("buffer_load_dword v31, v17, %s, s%d offen" % (SR(rA), sT0)); vm.add("F")
        def t_touch(n=4):
            k = st_.get("T", 0); st_["T"] = k + n
            if k % 4 == 0:
                A("s_lshr_b32 s%d, s%d, 1\ns_add_u32 s%d, s%d, %d\ns_and_b32 s%d, s%d, 3\ns_mul_i32 s%d, s%d, 28\ns_add_u32 s%d, s%d, s%d" % (sT0, sC, sT0, sT0, k >> 2, sT0, sT0, sT0, sT0, sT0, sT0, sIDX))
                A("s_lshl_b32 s%d, s%d, 2\ns_add_u32 s%d, s%d, s%d\ns_lshl_b32 s%d, s%d, 3\ns_and_b32 s%d, s%d, 1\ns_add_u32 s%d, s%d, s%d\ns_lshl_b32 s25, s%d, 9" % (sT0, sT0, sT0, sT0, sW4, sT0, sT0, sT1, sC, sT0, sT0, sT1, sT0))
            for rr in range(k % 4, k % 4 + n):
                for l in range(4):
                    for hh in range(o["th"]): A("s_buffer_load_dword s55, %s, s25 offset:%d" % (SR(rC), rr * 1024 + l * 128 + hh * 64))
        def only(w, f):
            l = s.lab("w")
            A("s_cmp_lg_u32 s%d, %d\ns_cbranch_scc1 %s" % (sW4, w, l)); f(); A("%s:" % l)
        def s_issue(): only(1, lambda: s.poll_issue(4, sHB)); st_["s"] = True
        def s_check():
            if not st_.get("s"): s_issue()
            only(1, lambda: s.poll_check(4, sHB))
            A("buffer_load_dwordx2 v[56:57], v30, %s, s%d offen sc1" % (SR(rWS), sST)); vm.add("ms")
        def m_put():
            vm.wait("ms")
            only(1, lambda: A("ds_write_b64 v30, v[56:57] offset:%d\ns_waitcnt lgkmcnt(0)" % 0))
        def x_load():
            A("buffer_load_dwordx4 v[32:35], v46, %s, s%d offen" % (SR(rA), sOB)); vm.add("x")
        def h_issue():
            only(0, lambda: s.poll_issue(o["hs"][0], sPH)); st_["P"] = True
            for w, n, ch in zip((2, 3, 1), o["hs"][1:], "JKL"):
                if n and ch not in o["dord"]: only(w, lambda: s.poll_issue(n, sPH))
        def h_check():
            if not st_.get("P"): h_issue()
            only(0, lambda: (s.poll_check(o["hs"][0], sPH), A("v_mov_b32 v3, %d\nds_write_b32 v3, v52 offset:12" % NONL), s.stamp("h", "pollH1")))
        H = dict(V=v_touch, F=f_touch, G=f_addr, T=t_touch, Y=lambda: t_touch(2), s=s_issue, t=s_check, m=m_put, X=x_load, P=h_issue, Q=h_check, only=only, N=nonce, A=bar_a, r=rout, f=flag_a, z=zero, Z=heads, h=h_rows, c=lambda: copies(0), d=lambda: copies(1), R=r_in, n=notify, D=daddr,
                 w=lambda: nxt("w"), v=lambda: nxt("v"), x=lambda: nxt("w", 1), u=lambda: nxt("v", 1), put=w2put, p=p_a, S=setup)
        for ch in o.get("skip", ""): H[ch] = lambda: None
        def dot():
            st_["dot"] = st_.get("dot", 0) + 1
            s.stamp("h", "t%d" % st_["dot"])
        H["."] = dot
        H["+"] = lambda: A("s_setprio 3")
        H["-"] = lambda: A("s_setprio 0")
        def cap(f):
            old = s.L; s.L = []
            f()
            r = s.L; s.L = old
            return r
        def section(sec):
            for m in re.finditer(r"(\d)(?:\((?:(\d):)?([^)]*)\))?|(.)", sec):
                if m.group(4): H[m.group(4)](); continue
                stream = []
                for ch in m.group(3) or "":
                    if ch in "SDzZcdNTYG": stream += cap(H[ch])
                    else: stream.append(H[ch])
                stage(int(m.group(1)), stream, int(m.group(2) or 0))
        H["section"] = section; H["nx"] = nx
        return H

    def helper_waves(s):
        A = s.A
        o = s.o
        s.stamp("h", "start")
        vm = VM(s)
        H = s.hitems(vm)
        A("v_lshrrev_b32 v3, 5, v1\nv_bfe_u32 v4, v1, 3, 2\nv_lshl_add_u32 v3, v3, 8, v4\nv_lshlrev_b32 v3, 10, v3")
        A("v_and_b32 v5, 7, v1\nv_lshrrev_b32 v9, 4, v1\nv_xor_b32 v6, v5, v9\nv_lshl_add_u32 v10, v6, 4, v3\nv_xor_b32 v11, 64, v10")
        A("s_lshr_b32 s%d, s%d, 2\ns_lshl_b32 s%d, s%d, 7\ns_and_b32 s%d, s%d, 3\ns_add_u32 s%d, s%d, s%d" % (sT0, sMI, sT0, sT0, sT1, sMI, sT0, sT0, sT1))
        A("s_lshl_b32 s%d, s%d, 12\ns_lshl_b32 s%d, s%d, 16\ns_add_u32 s%d, s%d, s%d" % (sT0, sT0, sT1, sW4, sXB, sT0, sT1))
        A("v_and_b32 v20, 15, v1\nv_lshlrev_b32 v6, 1, v9\nv_xor_b32 v6, v6, v20\nv_mul_u32_u24 v7, 3584, v9\nv_lshl_add_u32 v12, v6, 4, v7\nv_xor_b32 v13, 0x80, v12")
        A("s_lshl_b32 s%d, s%d, 8\ns_mul_i32 s%d, s%d, %d\ns_add_u32 s%d, s%d, s%d" % (sT0, sFI, sT1, sW4, 16 * 3584, sWB, sT0, sT1))
        A("s_lshl_b32 s%d, s%d, 12" % (sLB, sW4))
        if o["rot"] == 2: A("s_lshr_b32 s%d, s%d, 1\ns_mul_i32 s%d, s%d, %d" % (sCNT, sC, sCNT, sCNT, o["rx"]))
        if o["rot"] == 1:
            A("s_and_b32 s%d, s%d, 3\ns_lshr_b32 s%d, s%d, 2\ns_lshr_b32 s%d, s%d, %d\ns_add_u32 s%d, s%d, s%d" % (sT0, sIDX, sT1, sIDX, sT2, sC, 3 if o["ro"] else 1, sT1, sT1, sT2))
            assert sum(o["rgrp"]) == 7
            a0 = 1
            for g, n in enumerate(o["rgrp"]):
                r = RG[g]
                A("s_lshl_b32 s%d, s%d, %d\ns_add_u32 s%d, s%d, s%d" % (r, sT0, int(n > 5), r, r, sT1))
                if n & (n - 1): A("s_mul_i32 s%d, s%d, %d\ns_lshr_b32 s%d, s%d, 8\ns_mul_i32 s%d, s%d, %d\ns_sub_u32 s%d, s%d, s%d" % (sT2, r, -(-256 // n), sT2, sT2, sT2, sT2, n, r, r, sT2))
                else: A("s_and_b32 s%d, s%d, %d" % (r, r, n - 1))
                A("s_add_u32 s%d, s%d, %d" % (r, r, a0))
                a0 += n
        if o["ro"]: A("s_lshr_b32 s%d, s%d, 1\ns_mul_i32 s%d, s%d, %d\ns_and_b32 s%d, s%d, 7" % (sT3, sC, sT3, sT3, o["ro"], sT3, sT3))
        A("s_cmp_eq_u32 s%d, 0\ns_waitcnt lgkmcnt(0)" % sISB)
        s.srd(rA, sQ, 2 << 20); s.srd(rB, sW1, 512 * 3584)
        if o["ro"]: A("s_mov_b32 s24, s%d" % sT3)
        A("s_cbranch_scc1 L_spare_h0")
        sched = o["ord"].split("|")
        assert len(sched) == 10
        s.sched = sched
        assert "N" in "".join(sched[1:]) and "S" in sched[0] and ("A" in sched[0]) != ("r" in o["ord"]) and o["flate"] >= 1 and o["sfirst"]
        if "r" in o["ord"]:
            sec = lambda ch: [i for i, x in enumerate(sched) if ch in x][0]
            assert sec("r") < sec("z") and sec("r") < sec("R") and re.search("N.*f", o["ord"]) and re.search("f.*p", o["ord"])
        assert re.match(r"[^tsmX]*n.*t.*m", sched[9]) and ("X" in o["ord"]) != ("X" in o["dord"]) and re.match("[^X]*D", o["ord"])
        sec = {ch: i for i, x in enumerate(sched) for ch in x}
        SL = o["slots"]
        free = lambda slot, k=8: max([p + 2 for p in range(k) if SL[p] == slot] + [0])
        for k in range(8): assert free(SL[k], k) <= sec[str(k)] <= k, k
        assert sec["h"] >= free("3") and sec.get("Z", 0) >= free("3")
        n = 0
        for i, x in enumerate(sched):
            for ch in x:
                for _ in range({"w": 2, "x": 1}.get(ch, 0)):
                    assert i >= free("201"[n >> 1]); n += 1
        H["section"](sched[0])
        hk = [i for i, x in enumerate(sched) if "c" in x][0] - 1
        vm.wait(*(["s0", "H"] if hk == 0 else ["s0"]), extra=" lgkmcnt(0)")
        s.stamp("h", "s0")
        A("s_barrier")
        for k in range(8):
            s.stamp("h", "B%d" % k)
            H["section"](sched[k + 1])
            s.stamp("h", "I%d" % k)
            tags = ["s%d" % (k + 1)] if k < 7 else []
            if k + 1 == hk: tags.append("H")
            pend = re.sub(r"^.*R", "", "".join(sched[:8]))
            lg = " lgkmcnt(0)" if (k == 6 and set(pend) & set("zcd")) or (k + 1 == hk and "Z" in re.sub(r"^.*R", "", "".join(sched[:k + 2]))) else ""
            if tags: vm.wait(*tags, extra=lg)
            s.stamp("h", "B%da" % (k + 1))
            A("s_barrier")
        s.stamp("h", "B8")
        k = max([i + 1 for i, ch in enumerate(sched[9]) if ch in "cdnR"] + [0])
        H["section"](sched[9][:k])
        s.vmjoin = list(vm.q); s.prejoin = "".join(sched[:9]) + sched[9][:k]
        A("L_h_join:")
        s.stamp("h", "join")
        H["section"](sched[9][k:])
        A("L_h_join2:")
        s.stamp("h", "w2_issued")
        if "Q" not in sched[9]: H["Q"]()
        vm.wait("w0_0", "w0_1")
        s.stamp("h", "BC2a")
        A("s_barrier")
        nreg = o["nreg"]
        isreg = lambda j: 3 <= j < 3 + nreg
        XV, YV = 64, 72
        lq = ["sm"] if o["hs"][2:] != (0, 0) else []
        def lwait(*tags):
            idx = [i for i, x in enumerate(lq) if x in tags]
            if not idx: return ""
            n = len(lq) - 1 - max(idx)
            n = 0 if "sm" in lq else min(n, 15)
            del lq[:len(lq) - n]
            return " lgkmcnt(%d)" % n
        def item(ch):
            if ch == "X": H["X"]()
            elif ch in "3456":
                H["put"](int(ch))
                if isreg(int(ch)): lq.extend([ch] * 8)
            elif ch in "qkl":
                i = "qkl".index(ch)
                H["only"]((2, 3, 1)[i], lambda: (s.poll_check(o["hs"][i + 1], sPH), s.stamp("h", "pollH%d" % (i + 2))))
            elif ch in "JKL":
                i = "JKL".index(ch)
                H["only"]((2, 3, 1)[i], lambda: s.poll_issue(o["hs"][i + 1], sPH)); lq.append("sm")
            elif ch in "vuwx": H[ch]()
            elif ch == "r": A("ds_read_b64 %s, v47" % R(MS, 2)); lq.append("r")
            elif ch == "a":
                vm.wait("x", extra=lwait("r"))
                for x in s.xarith(32): A(x)
            elif ch == "p": s.poll_issue(16, sFY); lq.append("sm")
            elif ch == "y":
                s.poll_check(16, sFY); lq.clear()
                s.stamp("h", "pollY")
                A("s_lshl_b32 s%d, s%d, 11\ns_add_u32 m0, s%d, %d\ns_nop 0" % (sT0, sW4, sT0, YT))
                A("buffer_load_dwordx4 v26, %s, s%d offen sc1 lds" % (SR(rWS), sY1))
                A("buffer_load_dwordx4 v26, %s, s%d offen offset:1024 sc1 lds" % (SR(rWS), sY1)); vm.add("y", 2)
            elif ch == ".": H["."]()
            elif ch == "+": A("s_setprio 3")
            elif ch == "-": A("s_setprio 0")
            else: assert 0, ch
        segs = o["dord"].split("|")
        bars = [int(x[0]) for x in segs[1:]]
        at = {ch: (i, k) for i, x in enumerate(segs) for k, ch in enumerate(x if i == 0 else " " + x[1:])}
        for j in (4, 5, 6): assert at[str(j)][0] >= 1 and bars[at[str(j)][0] - 1] >= j - 4 and bars[at[str(j)][0]] <= j - 1
        hs = o["hs"]
        assert sum(hs) == 28 and hs[0] >= 8 and hs[0] + hs[1] >= 12 and hs[0] + hs[1] + hs[2] >= 16 and max(hs) <= 16 and bars[:3] == [0, 1, 2] and o["depth"] == 5
        for i, (a, b) in enumerate(zip("JKL", "qkl")): assert (b in at) == (hs[i + 1] > 0) and (b not in at or at[b][0] <= i and at[b] < at["p"]) and (a not in at or at[a] < at[b])
        assert bars[0] == 0 and at["3"][0] < len(bars) and bars[at["3"][0]] <= 2
        assert at["r"][0] < at["y"][0] and at["r"] < at["a"] and at["p"] < at["y"]
        for i, x in enumerate(segs):
            for ch in (x if i == 0 else x[1:]): item(ch)
            if i < len(bars):
                nb = bars[i + 1] if i + 1 < len(bars) else 6
                tiles = range(bars[i] + 1, nb + 1)
                lt = [str(j) for j in tiles if isreg(j)] + (["r"] if at["y"][0] == i + 1 else [])
                wt = ["w%d_%d" % (j, kh) for j in tiles if not isreg(j) for kh in range(2)]
                w = lwait(*lt)
                if wt: vm.wait(*wt, extra=w)
                elif w: A("s_waitcnt" + w)
                s.stamp("h", "X%da" % bars[i])
                A("s_barrier")
        A("s_waitcnt vmcnt(0)")
        s.stamp("h", "y_landed")
        for i in range(4): A("ds_read_b64_tr_b16 %s, v%d" % (R(YV + 2 * i, 2), 39 + i if i else 22))
        for i in range(4):
            A("s_waitcnt lgkmcnt(%d)" % 3)
            A("ds_write_b64 v21, %s offset:%d" % (R(YV + 2 * i, 2), 2048 * i))


HEAD = open("cdna_kernels/%s.s.ref" % NAME).read()


def render(g):
    head = HEAD[:HEAD.index("; @launch")]
    t = head + "; @launch grid=(256,1,1) block=(512,1,1) lds=%d\n" % LDS_SIZE
    t += '.amdgcn_target "amdgcn-amd-amdhsa--gfx950"\n.text\n.globl %s_kernel\n.p2align 8\n.type %s_kernel,@function\n%s_kernel:\n' % (NAME, NAME, NAME)
    for x in g.L:
        t += (x if x.endswith(":") else "    " + x) + "\n"
    t += HEAD[HEAD.index("s_endpgm"):]
    return t


if __name__ == "__main__":
    out = sys.argv[1]
    opts = dict(eval("dict(%s)" % sys.argv[2])) if len(sys.argv) > 2 else {}
    g = Gen(**opts).build()
    open(out, "w").write(render(g))
    print("wrote", out, len(g.L), "lines", g.nst)
```
